```python
import torch

def _softmax(x, axis=-1):
    return torch.softmax(x, dim=axis)

def _gelu(x):
    return torch.nn.functional.gelu(x, approximate='tanh')

def _silu(x):
    return torch.nn.functional.silu(x)

def _sigmoid(x):
    return torch.sigmoid(x)

def _layernorm(x, axis=-1, eps=1e-05):
    m = x.mean(dim=axis, keepdim=True)
    v = x.var(dim=axis, keepdim=True, unbiased=False)
    return (x - m) / torch.sqrt(v + eps)

def _scatter_add(tgt, idx, src, axis=0):
    return tgt.clone().index_add_(axis, idx, src)

def _segment_sum(src, seg, n):
    out = torch.zeros((n,) + src.shape[1:], dtype=src.dtype)
    return out.index_add_(0, seg, src)

def _pad(x, pw):
    flat = tuple((v for pair in reversed(pw) for v in pair))
    return torch.nn.functional.pad(x, flat)
kernel_name = 'gated_mix__memory_aug_recurrent_mem_tr__linear_attn_block__prompt'

def setup_inputs():

    _w = lambda a: (lambda t: t.to(torch.bfloat16) if t.is_floating_point() else t)(torch.as_tensor(a))

    def _A_setup():
        B, S, Dm = (1, 2048, 576)
        H, Dh = (32, 128)
        M, seg = (8, 32)
        seg = min(seg, S)
        S = S // seg * seg
        return {'x': _w((lambda *s: torch.randn(*s, dtype=torch.bfloat16) * 0.05)(B, S, Dm)), 'mem0': _w((lambda *s: torch.randn(*s, dtype=torch.bfloat16) * 0.8)(B, M, Dm)), 'Wq': _w((lambda *s: torch.randn(*s, dtype=torch.bfloat16) * 3.2)(Dm, H, Dh) * Dm ** (-0.5)), 'Wk': _w((lambda *s: torch.randn(*s, dtype=torch.bfloat16) * 3.2)(Dm, H, Dh) * Dm ** (-0.5)), 'Wv': _w((lambda *s: torch.randn(*s, dtype=torch.bfloat16) * 0.8)(Dm, H, Dh) * Dm ** (-0.5)), 'Wo': _w((lambda *s: torch.randn(*s, dtype=torch.bfloat16) * 0.8)(H, Dh, Dm) * (H * Dh) ** (-0.5)), 'seg_len': seg}
    _A_in = _A_setup()

    def _B_setup():
        B, S, D = (1, 2048, 576)
        return {'x': _w((lambda *s: torch.randn(*s, dtype=torch.bfloat16) * 0.05)(B, S, D)), 'wqkv': _w((lambda *s: torch.randn(*s, dtype=torch.bfloat16) * 0.8)(D, 3 * D)), 'wo': _w((lambda *s: torch.randn(*s, dtype=torch.bfloat16) * 0.2)(D, D))}
    _B_in = _B_setup()
    return {'A_x': _A_in['x'], 'A_mem0': _A_in['mem0'], 'A_Wq': _A_in['Wq'], 'A_Wk': _A_in['Wk'], 'A_Wv': _A_in['Wv'], 'A_Wo': _A_in['Wo'], 'A_seg_len': _A_in['seg_len'], 'B_x': _B_in['x'], 'B_wqkv': _B_in['wqkv'], 'B_wo': _B_in['wo'], 'gate_w': _w((lambda *s: torch.randn(*s, dtype=torch.bfloat16) * 0.05)(576) * 16.0)}

def reference(A_x, A_mem0, A_Wq, A_Wk, A_Wv, A_Wo, A_seg_len, B_x, B_wqkv, B_wo, gate_w):

    def _A_ref(x, mem0, Wq, Wk, Wv, Wo, seg_len):
        B, S, Dm = x.shape
        H, Dh = (Wq.shape[1], Wq.shape[2])
        M = mem0.shape[1]
        scale = Dh ** (-0.5)
        n_seg = S // seg_len
        L = M + seg_len
        idx = torch.arange(L)
        mask = (idx[:, None] < M) | (idx[:, None] >= idx[None, :])
        mem = mem0
        outs = []
        for s in range(n_seg):
            xs = x[:, s * seg_len:(s + 1) * seg_len, :].clone()
            h = torch.concatenate([mem, xs], axis=1)
            q = torch.einsum('btd,dhe->bhte', h, Wq)
            k = torch.einsum('btd,dhe->bhte', h, Wk)
            v = torch.einsum('btd,dhe->bhte', h, Wv)
            scores = torch.einsum('bhqe,bhke->bhqk', q, k) * scale
            scores = torch.where(mask[None, None], scores, -1000000000.0)
            p = _softmax(scores, axis=-1)
            o = torch.einsum('bhqk,bhke->bhqe', p, v)
            o = torch.einsum('bhte,hed->btd', o, Wo)
            mem = o[:, :M, :].clone()
            outs.append(o[:, M:, :])
        return torch.concatenate(outs, axis=1)

    def _B_ref(x, wqkv, wo):
        B, S, D = x.shape
        H = 32
        Dh = D // H
        qkv = (lambda x, *d: x.permute(*d))((x @ wqkv).reshape(B, S, 3, H, Dh), 2, 0, 3, 1, 4)
        q, k, v = (qkv[0], qkv[1], qkv[2])
        phi = lambda t: torch.where(t > 0, t + 1, torch.exp(t)) + 1e-06
        pq, pk = (phi(q), phi(k))
        kv = torch.einsum('bhsd,bhse->bhde', pk, v)
        z = torch.einsum('bhsd->bhd', pk)
        num = torch.einsum('bhqd,bhde->bhqe', pq, kv)
        den = torch.einsum('bhqd,bhd->bhq', pq, z)[..., None] + 1e-06
        o = num / den
        return (lambda x, *d: x.permute(*d))(o, 0, 2, 1, 3).reshape(B, S, D) @ wo
    x = A_x
    g = _sigmoid((x * gate_w).sum(-1, keepdims=True))
    a = _A_ref(x, A_mem0, A_Wq, A_Wk, A_Wv, A_Wo, A_seg_len)
    b = _B_ref(x, B_wqkv, B_wo)
    return g * a + (1 - g) * b
```

```python
import re


def v(n, c=1):
    return "v%d" % n if c == 1 else "v[%d:%d]" % (n, n + c - 1)


def a(n, c=1):
    return "a%d" % n if c == 1 else "a[%d:%d]" % (n, n + c - 1)


def s(n, c=1):
    return "s%d" % n if c == 1 else "s[%d:%d]" % (n, n + c - 1)


_REG = re.compile(r"^-?\|?(?:abs\()?([vas])(?:(\d+)|\[(\d+):(\d+)\])\)?\|?$")


def regs_of(tok):
    tok = tok.strip()
    if tok in ("vcc", "vcc_lo", "vcc_hi"):
        return {("vcc", 0)}
    if tok in ("exec", "exec_lo", "exec_hi"):
        return {("exec", 0)}
    if tok == "m0":
        return {("m0", 0)}
    m = _REG.match(tok)
    if not m:
        return set()
    k = m.group(1)
    if m.group(2) is not None:
        return {(k, int(m.group(2)))}
    return {(k, i) for i in range(int(m.group(3)), int(m.group(4)) + 1)}


TRANS = ("v_exp_", "v_log_", "v_rcp_", "v_rsq_", "v_sqrt_", "v_sin_", "v_cos_")


class Ins:
    __slots__ = ("text", "op", "ops", "mods", "kind", "w", "r", "srcC", "srcAB", "passes",
                 "label", "target", "nop", "sdata", "dpp", "maskr")

    def __init__(self, text):
        self.text = text
        self.label = None
        self.target = None
        self.op = None
        self.kind = "none"
        self.w = set()
        self.r = set()
        self.srcC = set()
        self.srcAB = set()
        self.sdata = set()
        self.maskr = set()
        self.passes = 0
        self.nop = 0
        self.dpp = False
        t = text.split(";")[0].strip()
        if not t:
            return
        if t.endswith(":"):
            self.label = t[:-1]
            self.kind = "label"
            return
        if t.startswith("."):
            self.kind = "directive"
            return
        parts = t.split(None, 1)
        op = parts[0]
        self.op = op
        rest = parts[1] if len(parts) > 1 else ""
        toks = []
        cur = ""
        depth = 0
        for ch in rest:
            if ch in "[(":
                depth += 1
            if ch in "])":
                depth -= 1
            if ch == "," and depth == 0:
                toks.append(cur.strip())
                cur = ""
            else:
                cur += ch
        if cur.strip():
            toks.append(cur.strip())
        mods = ""
        if toks:
            last = toks[-1].split(None, 1)
            toks[-1] = last[0]
            if len(last) > 1:
                mods = last[1]
        self.ops = toks
        self.mods = mods
        R = [regs_of(x) for x in toks]
        if op == "s_nop":
            self.kind = "nop"
            self.nop = int(toks[0], 0) + 1
        elif op.startswith("v_mfma") or op.startswith("v_smfmac"):
            self.kind = "mfma"
            self.w = R[0]
            self.srcAB = R[1] | R[2]
            if op.startswith("v_mfma"):
                self.srcC = R[3]
            else:
                self.srcC = R[0]
                self.srcAB |= R[3]
            self.r = self.srcAB | self.srcC
            if "32x32" in op:
                self.passes = 8
            elif "16x16" in op:
                self.passes = 4
            else:
                raise ValueError("unknown mfma " + op)
            assert "f32_" in op and ("bf16" in op or "f16" in op), op
        elif op.startswith("v_"):
            self.kind = "valu"
            self.dpp = op.endswith("_dpp") or "row_" in mods or "quad_perm" in mods
            if op.startswith("v_permlane"):
                self.kind = "permlane"
                self.w = R[0] | R[1]
                self.r = R[0] | R[1]
            elif op.startswith("v_cmp"):
                assert not op.startswith("v_cmpx")
                self.w = R[0]
                for x in R[1:]:
                    self.r |= x
            elif op.startswith("v_readfirstlane") or op.startswith("v_readlane"):
                self.kind = "readlane"
                self.w = R[0]
                for x in R[1:]:
                    self.r |= x
            elif "_co_" in op:
                self.w = R[0] | R[1]
                for x in R[2:]:
                    self.r |= x
            else:
                self.w = R[0]
                for x in R[1:]:
                    self.r |= x
                if op.startswith("v_fmac") or op.startswith("v_dot2c") or self.dpp or op.startswith("v_writelane"):
                    self.r |= R[0]
                if op.startswith("v_cndmask") and len(toks) == 3:
                    self.r |= {("vcc", 0)}
        elif op.startswith("ds_"):
            self.kind = "ds"
            if op.startswith("ds_read") or op.startswith("ds_bpermute") or op.startswith("ds_permute") or op.startswith("ds_swizzle") or "_rtn_" in op:
                self.w = R[0]
                for x in R[1:]:
                    self.r |= x
            else:
                for x in R:
                    self.r |= x
        elif op.startswith("buffer_") or op.startswith("global_"):
            self.kind = "vmem"
            islds = (" lds" in " " + mods) or "load_lds" in op
            if op in ("buffer_wbl2", "buffer_inv"):
                pass
            elif "load" in op and not islds:
                self.w = R[0]
                for x in R[1:]:
                    self.r |= x
            elif islds:
                for x in R:
                    self.r |= x
                self.r |= {("m0", 0)}
                self.kind = "vmem"
                self.maskr = {("m0", 0)}
            elif "atomic" in op:
                for x in R:
                    self.r |= x
                if "sc0" in mods:
                    self.w = R[0]
            else:
                for x in R:
                    self.r |= x
                if op.endswith("x4") or op.endswith("x3"):
                    self.sdata = R[0] if op.startswith("buffer_") else R[1]
        elif op.startswith("s_"):
            self.kind = "salu"
            if op.startswith("s_cbranch") or op == "s_branch":
                self.kind = "branch"
                self.target = toks[0]
            elif op == "s_endpgm":
                self.kind = "end"
            elif op.startswith("s_cmp") or op.startswith("s_bitcmp") or op in ("s_waitcnt", "s_barrier", "s_sleep", "s_setprio"):
                for x in R:
                    self.r |= x
            else:
                if R:
                    self.w = R[0]
                for x in R[1:]:
                    self.r |= x
                if "saveexec" in op:
                    self.w |= {("exec", 0)}
        else:
            raise ValueError("cannot parse " + text)

    def states(self):
        if self.kind in ("none", "label", "directive"):
            return 0
        if self.kind == "nop":
            return self.nop
        return 1


def isv(x):
    return x[0] in ("v", "a")


def need(p, c):
    n = 0
    valu_like = ("valu", "permlane", "readlane")
    pv = {x for x in p.w if isv(x)}
    ps = {x for x in p.w if not isv(x)}
    if p.kind in valu_like:
        if c.kind == "mfma" and pv & c.r:
            n = max(n, 2)
        if c.kind == "permlane" and pv & c.r:
            n = max(n, 2)
        if c.kind in valu_like and c.dpp and pv & c.r:
            n = max(n, 2)
        if c.kind == "readlane" and pv & c.r:
            n = max(n, 1)
        if p.op.startswith(TRANS) and c.kind in valu_like + ("mfma",) and pv & c.r:
            n = max(n, 1)
        if p.op.startswith(TRANS) and c.kind in ("ds", "vmem") and pv & c.r:
            n = max(n, 1)
        if ps:
            if c.kind in valu_like and ps & c.r:
                n = max(n, 4 if c.kind == "readlane" else 2)
            if c.kind == "vmem" and ps & c.r:
                n = max(n, 5)
            if c.kind in ("salu", "branch") and ps & c.r:
                n = max(n, 1)
    if p.kind == "mfma":
        P = p.passes
        big = {4: 8, 8: 12}[P]
        ovl = {4: 6, 8: 10}[P]
        war = {4: 3, 8: 7}[P]
        if c.kind == "mfma":
            if pv & c.srcAB:
                n = max(n, big)
            if pv & c.srcC:
                if not (c.srcC == pv and c.op == p.op):
                    n = max(n, ovl)
            elif pv & c.w:
                n = max(n, ovl)
        elif c.kind in valu_like:
            if pv & (c.r | c.w):
                n = max(n, big)
            if p.srcC & c.w:
                n = max(n, war)
        elif c.kind in ("ds", "vmem"):
            if pv & (c.r | c.w):
                n = max(n, big)
    if p.kind == "vmem" and p.sdata:
        if p.sdata & c.w:
            n = max(n, 2)
    if p.kind == "salu" and ("m0", 0) in p.w and c.kind == "vmem" and c.maskr:
        n = max(n, 1)
    return n


class Prog:
    def __init__(self):
        self.lines = []
        self.uid = 0

    def __call__(self, text):
        for ln in text.split("\n"):
            self.lines.append(ln.strip())

    def label(self, name):
        self.lines.append(name + ":")

    def newlabel(self, base="L"):
        self.uid += 1
        return "%s_%d" % (base, self.uid)

    def c(self, text):
        self.lines.append("; " + text)

    def extend(self, lines):
        for ln in lines:
            self(ln)


def fix_hazards(lines, verbose=False):
    MAXD = 13
    total = 0
    for _it in range(200):
        ins = [Ins(t) for t in lines]
        lab = {x.label: i for i, x in enumerate(ins) if x.label}
        fixes = {}
        n = len(ins)
        for i, p in enumerate(ins):
            if p.kind not in ("valu", "permlane", "readlane", "mfma", "vmem", "salu"):
                continue
            if p.kind == "vmem" and not p.sdata:
                continue
            if p.kind == "salu" and ("m0", 0) not in p.w:
                continue
            lim = MAXD if p.kind == "mfma" else 5
            stack = [(i + 1, 0)]
            seen = {}
            while stack:
                j, d = stack.pop()
                while j < n and d < lim:
                    if seen.get(j, 99) <= d:
                        break
                    seen[j] = d
                    c = ins[j]
                    if c.kind in ("none", "label", "directive"):
                        j += 1
                        continue
                    if c.kind == "end":
                        break
                    k = need(p, c) if c.kind != "nop" else 0
                    if k > d:
                        fixes[j] = max(fixes.get(j, 0), k - d)
                        break
                    d += c.states()
                    if c.kind == "branch":
                        if c.target in lab:
                            stack.append((lab[c.target], d))
                        if c.op == "s_branch":
                            break
                    j += 1
        if not fixes:
            if verbose:
                print("hazard pass: inserted %d wait states" % total)
            return lines
        out = []
        for j, t in enumerate(lines):
            if j in fixes:
                k = fixes[j]
                total += k
                out.append("s_nop %d ; hz" % (k - 1))
            out.append(t)
        lines = out
    raise RuntimeError("hazard pass did not converge")


def kernel_text(name, body_lines, vgpr, sgpr, accum):
    hdr = [".globl %s" % name, ".p2align 8", ".type %s,@function" % name, "%s:" % name]
    desc = [
        ".amdhsa_kernel %s" % name,
        "  .amdhsa_next_free_vgpr %d" % vgpr,
        "  .amdhsa_next_free_sgpr %d" % sgpr,
        "  .amdhsa_accum_offset %d" % accum,
        "  .amdhsa_group_segment_fixed_size 0",
        "  .amdhsa_kernarg_size 112",
        "  .amdhsa_user_sgpr_count 2",
        "  .amdhsa_user_sgpr_kernarg_segment_ptr 1",
        "  .amdhsa_system_sgpr_workgroup_id_x 1",
        "  .amdhsa_float_denorm_mode_32 3",
        ".end_amdhsa_kernel",
    ]
    return hdr + ["    " + x if not x.endswith(":") else x for x in body_lines], desc


def build_file(launches, kernels):
    out = []
    for k, g, b, lds in launches:
        out.append("; @launch kernel=%s grid=(%d,1,1) block=(%d,1,1) lds=%d" % (k, g, b, lds))
    out.append('.amdgcn_target "amdgcn-amd-amdhsa--gfx950"')
    out.append(".text")
    descs = []
    for name, lines, vg, sg, ac in kernels:
        t, d = kernel_text(name, lines, vg, sg, ac)
        out += t
        descs.append(d)
    out.append('.section .rodata,"a"')
    for d in descs:
        out.append(".p2align 6")
        out += d
    return "\n".join(out) + "\n"
```

```python
S = 2048
DM = 576
H = 32
DH = 128
NSEG = 64

OFF_PB = 0x0
PB_PAR = 32 * 9216
OFF_MB = 0x100000
OFF_HIST = 0x120000
OFF_FLAG = 0x200000
OFF_STAMP = 0x300000
OFF_KX = 0x1000000
OFF_VX = 0x2000000
OFF_QX = 0x3000000
OFF_KM = 0x4000000
OFF_VM = 0x4800000
OFF_OC = 0x5000000
OFF_WT = 0x6400000
OFF_PQ = 0x6A00000
OFF_KV = 0x7000000
WS_BYTES = 268435456

A_X, A_MEM0, A_WQ, A_WK, A_WV, A_WO, A_SEG, B_X, B_WQKV, B_WO, GATE, D_OUT, D_DBG, D_WS = range(14)

F_G1 = 0x0
F_TEAM = 0x8000
F_O = 0xA000
F_KV = 0xC000
F_B2 = 0xD000
FLAG_BYTES = 0x10000
OFF_G = 0x280000
```

```python
import math
import struct
from asmlib import *
from layout import *

L_MEM = 0
L_Q = 9216
L_O = L_Q
L_K = 11264
L_PX = L_K
L_PM = L_K + 512
L_RI = L_K + 1024
L_SX = 13312
L_WL = 16384
LDS_BYTES = 163840

MA = 0
AQ = 36
AK = 44
KXF = 52
QF = 60
VXF = 52
STG0 = 64
IDX = 72
L16 = 73
TRA = 74
QWA = 75
SXR = 76
T0, T1, T2 = 77, 78, 79

SWS = 4
SW = 8
S_H, S_W, S_STEP, S_BUD = 16, 17, 18, 19
S_MB, S_M0, S_KX0, S_KX1, S_VX, S_KM, S_VM, S_PB = 20, 21, 22, 23, 24, 25, 26, 27
S_U, S_RL, S_PUB = 28, 29, 30
S_T0 = 31
S_PUBM = 32
S_PART = 34
S_C = 36
S_W512 = 37
S_T1, S_T2, S_T3 = 38, 39, 40
S_STAMP = 42
S_STO = 44
S_SAFE = 45
S_PAR = 46
SENT = 0xFFBFFFBF
S_SENT = 47
S_HIST = 41
S_TF, S_KVF, S_KVC = 42, 43, 45


def f2u(x):
    return struct.unpack("<I", struct.pack("<f", x))[0]


def wt_reg(mat, j, tt, r, n):
    i = (mat * 9 + j) * 2 + tt
    if i < 32:
        return a(8 * i + r, n)
    return v(80 + 8 * (i - 32) + r, n)


def wt(mat, j, tt):
    return wt_reg(mat, j, tt, 0, 8)


def slot_addr(t, w):
    if t < 16:
        return L_WL + t * 8192 + w * 2048
    return L_WL + 131072 + (t - 16) * 4096 + (w - 2) * 2048


def lref(addr):
    b, off = divmod(addr, 65536)
    if off > 65536 - 2048:
        raise ValueError("tile straddles base")
    return v([L16, T1, T2][b]), off


def smf(acc, A, B):
    return "v_smfmac_f32_16x16x64_bf16 %s, %s, %s, %s" % (v(acc, 4), v(A, 4), B, v(IDX))


def gen_rec(p, nsteps=64, stamps=False, st_flags="", EXP="sc1", NQKL=4, FD0=0, FD1=0, R0=3, R1=4, R2=4, hist=1, RT=0, LIN=0, TWO=0, flags=1, census=0):
    RD0 = [R0, R1, R2]
    ST = st_flags

    NSTAMP = 20

    def stamp(k):
        if not stamps:
            return
        p("%s %s" % ("s_memrealtime" if RT else "s_memtime", s(60 + 2 * k, 2)))

    def flush_stamps():
        if not stamps:
            return
        p("s_waitcnt lgkmcnt(0)")
        for k in range(NSTAMP):
            p("v_writelane_b32 %s, %s, %d" % (v(T2), s(60 + 2 * k), k))
        p("v_lshrrev_b32 %s, 2, %s" % (v(T1), v(L16)))
        p("s_mov_b64 exec, 0xfffff")
        p("buffer_store_dword %s, %s, %s, %s offen" % (v(T2), v(T1), s(SWS, 4), s(S_STO)))
        p("s_mov_b64 exec, -1")

    p.c("---- recurrence setup")
    p("s_load_dwordx2 %s, s[0:1], %d" % (s(SWS, 2), D_WS * 8))
    p("s_load_dwordx2 s[48:49], s[0:1], %d" % (A_WQ * 8))
    p("s_load_dwordx2 s[50:51], s[0:1], %d" % (A_WK * 8))
    p("s_load_dwordx2 s[52:53], s[0:1], %d" % (A_WV * 8))
    p("s_load_dwordx2 s[54:55], s[0:1], %d" % (A_WO * 8))
    p("s_load_dwordx2 s[56:57], s[0:1], %d" % (A_MEM0 * 8))
    p("v_lshrrev_b32 v1, 6, v0")
    p("v_and_b32 v0, 63, v0")
    p("v_readfirstlane_b32 %s, v1" % s(S_W))
    p("s_mov_b32 %s, %d" % (s(SWS + 2), WS_BYTES))
    p("s_mov_b32 %s, 0x20000" % s(SWS + 3))
    p("s_mov_b32 %s, %d" % (s(SW + 2), DM * H * DH * 2))
    p("s_mov_b32 %s, 0x20000" % s(SW + 3))
    p("s_mov_b32 %s, 0x00ff00ff" % s(S_PUBM))
    p("s_mov_b32 %s, 0x00ff00ff" % s(S_PUBM + 1))
    p("s_mov_b32 %s, 0xff00ff00" % s(S_PART))
    p("s_mov_b32 %s, 0xff00ff00" % s(S_PART + 1))
    p("s_mov_b32 %s, 0x%x" % (s(S_C), f2u(DH ** -0.5 * math.log2(math.e))))
    p("s_mov_b32 %s, 1000000" % s(S_BUD))
    p("s_mov_b32 %s, 0x%x" % (s(S_SENT), SENT))
    p("s_lshl_b32 %s, %s, 9" % (s(S_W512), s(S_W)))
    p("v_and_b32 v1, 15, v0")
    p("v_lshrrev_b32 v2, 4, v0")
    p("v_bfe_u32 v3, v0, 2, 2")
    p("v_and_b32 v4, 3, v0")
    p("v_lshlrev_b32 %s, 4, v0" % v(L16))
    p("v_mov_b32 %s, 0x4444" % v(IDX))
    p("v_mov_b32 v5, 0xeeee")
    p("v_cndmask_b32 %s, %s, v5, %s" % (v(IDX), v(IDX), s(S_PART, 2)))
    p("v_lshl_add_u32 v5, v2, 2, v3")
    p("v_lshlrev_b32 v5, 4, v5")
    p("v_and_b32 v6, 1, v4")
    p("v_lshl_add_u32 %s, v6, 3, v5" % v(TRA))
    p("v_lshrrev_b32 v5, 5, v0")
    p("v_lshl_add_u32 v5, v5, 4, v1")
    p("v_lshlrev_b32 v5, 4, v5")
    p("v_and_b32 v6, 1, v2")
    p("v_lshl_add_u32 %s, v6, 3, v5" % v(QWA))
    p("v_and_b32 v5, 7, v0")
    p("v_lshl_add_u32 v5, v2, 3, v5")
    p("v_lshlrev_b32 %s, 4, v5" % v(SXR))
    p("s_waitcnt lgkmcnt(0)")

    p("s_lshl_b32 %s, %s, 2" % (s(S_T0), s(S_H)))
    p("s_add_u32 %s, %s, %s" % (s(S_T0), s(S_T0), s(S_W)))
    p("s_lshl_b32 %s, %s, 13" % (s(S_T0), s(S_T0)))
    p("s_add_u32 %s, %s, 0x%x" % (s(S_STO), s(S_T0), OFF_STAMP))

    p("s_lshl_b32 %s, %s, 5" % (s(S_U), s(S_W)))
    p("s_add_u32 %s, %s, %s" % (s(S_U), s(S_U), s(S_H)))

    lab = p.newlabel("NOPUB0")
    p("s_cmp_ge_u32 %s, 72" % s(S_U))
    p("s_cbranch_scc1 %s" % lab)
    p("s_mov_b32 %s, s56" % s(12))
    p("s_mov_b32 %s, s57" % s(13))
    p("s_mov_b32 %s, 9216" % s(14))
    p("s_mov_b32 %s, 0x20000" % s(15))
    p("v_and_b32 v5, 1, v2")
    p("v_lshlrev_b32 v5, 3, v5")
    p("v_lshrrev_b32 v6, 1, v2")
    p("v_lshl_add_u32 v7, v6, 2, v5")
    p("v_and_b32 v5, 7, v0")
    p("v_mul_u32_u24 v6, 1152, v5")
    p("v_add_u32 v6, v6, v7")
    p("v_lshl_add_u32 v7, v5, 4, v7")
    p("s_lshl_b32 %s, %s, 4" % (s(S_T0), s(S_U)))
    p("s_lshl_b32 %s, %s, 7" % (s(S_T1), s(S_U)))
    p("s_add_u32 %s, %s, 0x%x" % (s(S_T1), s(S_T1), OFF_MB))
    p("s_mov_b64 exec, %s" % s(S_PUBM, 2))
    p("buffer_load_dword v8, v6, s[12:15], %s offen" % s(S_T0))
    p("s_waitcnt vmcnt(0)")
    p("v_cmp_eq_u32 vcc, 0x%x, v8" % SENT)
    p("v_mov_b32 v9, 0xffffffff")
    p("v_cndmask_b32 v8, v8, v9, vcc")
    p("buffer_store_dword v8, v7, %s, %s offen sc1" % (s(SWS, 4), s(S_T1)))
    p("s_mov_b64 exec, -1")
    p("s_waitcnt vmcnt(0)")
    p.label(lab)
    p("s_load_dwordx2 s[12:13], s[0:1], %d" % (D_DBG * 8))
    p("s_mov_b32 s14, 256")
    p("s_mov_b32 s15, 0x20000")
    p("s_waitcnt lgkmcnt(0)")

    p.c("---- weight load through LDS with transposing reads")
    p("v_and_b32 v5, 1, v2")
    p("s_lshl_b32 %s, %s, 1" % (s(S_T0), s(S_W)))
    p("v_or_b32 v5, %s, v5" % s(S_T0))
    p("v_lshlrev_b32 v5, 1, v5")
    p("v_xor_b32 v5, v5, v1")
    p("v_lshlrev_b32 v5, 4, v5")
    p("v_lshl_add_u32 v8, v2, 13, v5")
    p("s_lshl_b32 %s, %s, 15" % (s(S_T0), s(S_W)))
    p("s_lshl_b32 %s, %s, 8" % (s(S_T1), s(S_H)))
    p("s_add_u32 %s, %s, %s" % (s(S_T0), s(S_T0), s(S_T1)))
    p("v_add_u32 v8, %s, v8" % s(S_T0))
    p("v_and_b32 v5, 1, v2")
    p("s_and_b32 %s, %s, 1" % (s(S_T0), s(S_W)))
    p("s_lshl_b32 %s, %s, 1" % (s(S_T0), s(S_T0)))
    p("v_or_b32 v5, %s, v5" % s(S_T0))
    p("v_lshlrev_b32 v5, 2, v5")
    p("v_xor_b32 v5, v5, v1")
    p("v_lshlrev_b32 v5, 4, v5")
    p("v_mul_u32_u24 v6, 1152, v2")
    p("v_add_u32 v9, v5, v6")
    p("s_mul_i32 %s, %s, %d" % (s(S_T0), s(S_W), 16 * 1152))
    p("s_mul_i32 %s, %s, 147456" % (s(S_T1), s(S_H)))
    p("s_add_u32 %s, %s, %s" % (s(S_T0), s(S_T0), s(S_T1)))
    p("v_add_u32 v9, %s, v9" % s(S_T0))
    p("v_and_b32 v5, 7, v0")
    p("v_lshlrev_b32 v5, 4, v5")
    p("v_lshrrev_b32 v6, 3, v0")
    p("v_mul_u32_u24 v6, 1152, v6")
    p("s_mul_i32 %s, %s, %d" % (s(S_T0), s(S_W), 32 * 1152))
    p("s_add_u32 %s, %s, %s" % (s(S_T0), s(S_T0), s(S_T1)))
    p("s_add_u32 %s, %s, 1024" % (s(S_T0), s(S_T0)))
    p("v_add_u32 v6, %s, v6" % s(S_T0))
    p("v_add_u32 v60, v5, v6")
    p("v_xor_b32 v5, 64, v5")
    p("v_add_u32 v61, v5, v6")
    p("v_lshrrev_b32 v5, 1, v2")
    p("v_lshlrev_b32 v5, 4, v5")
    p("v_and_b32 v6, 1, v2")
    p("v_lshl_add_u32 v5, v6, 2, v5")
    p("v_and_b32 v7, 1, v3")
    p("v_add_u32 v5, v5, v7")
    p("v_lshrrev_b32 v10, 1, v3")
    p("v_lshl_add_u32 v5, v10, 3, v5")
    p("v_lshl_or_b32 v11, v6, 1, v7")
    p("v_lshl_or_b32 v11, v10, 2, v11")
    p("s_lshl_b32 %s, %s, 1" % (s(S_T0), s(S_W)))
    p("v_xor_b32 v12, %s, v11" % s(S_T0))
    p("v_lshlrev_b32 v12, 5, v12")
    p("v_lshl_add_u32 v12, v4, 3, v12")
    p("v_lshl_add_u32 v12, v5, 8, v12")
    p("v_add_u32 v12, %d, v12" % L_WL)
    p("v_xor_b32 v13, 32, v12")
    p("v_lshrrev_b32 v5, 1, v2")
    p("v_lshl_add_u32 v5, v5, 2, v7")
    p("v_lshl_add_u32 v5, v6, 4, v5")
    p("v_lshl_or_b32 v14, v6, 1, v7")
    p("v_lshl_or_b32 v14, v14, 1, v10")
    p("s_lshl_b32 %s, %s, 1" % (s(S_T0), s(S_W)))
    p("v_xor_b32 v14, %s, v14" % s(S_T0))
    p("v_lshlrev_b32 v14, 5, v14")
    p("v_lshl_add_u32 v14, v4, 3, v14")
    p("v_lshl_add_u32 v14, v5, 8, v14")
    p("v_add_u32 v14, %d, v14" % L_WL)
    p("v_lshl_or_b32 v62, v6, 1, v10")
    p("v_lshlrev_b32 v62, 5, v62")
    p("v_lshl_add_u32 v62, v4, 3, v62")
    p("v_lshl_add_u32 v62, v5, 7, v62")
    p("s_lshl_b32 %s, %s, 12" % (s(S_T0), s(S_W)))
    p("s_add_u32 %s, %s, %d" % (s(S_T0), s(S_T0), L_WL + 8 * 16384))
    p("v_add_u32 v62, %s, v62" % s(S_T0))
    p("v_xor_b32 v63, 64, v62")
    p("v_add_u32 v64, %s, %s" % (s(S_T0), v(L16)))
    p("s_lshl_b32 %s, %s, 12" % (s(S_T3), s(S_W)))
    p("s_lshl_b32 %s, %s, 11" % (s(S_T0), s(S_W)))
    p("v_add_u32 v15, %s, %s" % (s(S_T0), v(L16)))
    p("v_add_u32 v15, %d, v15" % L_WL)
    p("s_lshl_b32 %s, %s, 10" % (s(S_T2), s(S_W)))

    cur_mat = [None]

    def set_mat(mi):
        if cur_mat[0] != mi:
            p("s_mov_b32 %s, s%d" % (s(SW), 48 + 2 * mi))
            p("s_mov_b32 %s, s%d" % (s(SW + 1), 49 + 2 * mi))
            cur_mat[0] = mi

    def issue_group(G):
        slot = G % 9
        if G < 27:
            mi, j = divmod(G, 9)
            set_mat(mi)
            for qq in range(4):
                p("s_add_u32 m0, %s, %d" % (s(S_T2), L_WL + slot * 16384 + qq * 4096))
                p("s_mov_b32 %s, %d" % (s(S_T0), (64 * j + 16 * qq) * 8192))
                p("buffer_load_dwordx4 v8, %s, %s offen lds" % (s(SW, 4), s(S_T0)))
        else:
            set_mat(3)
            tau, kp = divmod(slot, 2)
            for qq in range(4):
                p("s_add_u32 m0, %s, %d" % (s(S_T3), L_WL + slot * 16384 + qq * 1024))
                if slot < 8:
                    p("s_mov_b32 %s, %d" % (s(S_T0), (64 * kp + 4 * qq) * 1152 + tau * 256))
                    p("buffer_load_dwordx4 v9, %s, %s offen lds" % (s(SW, 4), s(S_T0)))
                else:
                    p("s_mov_b32 %s, %d" % (s(S_T0), 8 * qq * 1152))
                    p("buffer_load_dwordx4 v%d, %s, %s offen lds" % (60 + (qq >> 1), s(SW, 4), s(S_T0)))

    NG = 36
    for G in range(9):
        issue_group(G)
    issued = 9
    for G in range(NG):
        slot = G % 9
        p("s_waitcnt vmcnt(%d) lgkmcnt(0)" % (4 * (issued - G - 1)))
        p("s_barrier")
        if G >= 1 and issued < NG:
            issue_group(issued)
            issued += 1
        if G >= 28:
            pb = 20 + 16 * ((G - 1) & 1)
            ps = (G - 1) % 9
            p("v_add_u32 v18, %d, v15" % (ps * 16384))
            for j2 in range(2):
                for hf in range(2):
                    p("ds_write_b128 v18, %s offset:%d" % (v(pb + 8 * j2 + 4 * hf, 4), j2 * 8192 + hf * 1024))
        if G < 27:
            mi, j = divmod(G, 9)
            p("v_add_u32 v16, %d, v12" % (slot * 16384))
            p("v_add_u32 v17, %d, v13" % (slot * 16384))
            for tt in range(2):
                for rd in range(4):
                    off = (rd & 1) * 512 + (rd >> 1) * 8192
                    p("ds_read_b64_tr_b16 %s, v%d offset:%d" % (wt_reg(mi, j, tt, 2 * rd, 2), 16 + tt, off))
        else:
            b = 20 + 16 * (G & 1)
            if slot < 8:
                p("v_add_u32 v16, %d, v14" % (slot * 16384))
                for j2 in range(2):
                    for rd in range(4):
                        off = j2 * 8192 + (rd & 1) * 512 + (rd >> 1) * 2048
                        p("ds_read_b64_tr_b16 %s, v16 offset:%d" % (v(b + 8 * j2 + 2 * rd, 2), off))
            else:
                for pp in range(2):
                    for rd in range(4):
                        off = (rd & 1) * 256 + (rd >> 1) * 1024
                        p("ds_read_b64_tr_b16 %s, v%d offset:%d" % (v(b + 8 * pp + 2 * rd, 2), 62 + pp, off))
    p("s_waitcnt lgkmcnt(0)")
    p("s_barrier")
    pb = 20 + 16 * ((NG - 1) & 1)
    for pp in range(2):
        for hf in range(2):
            p("ds_write_b128 v64, %s offset:%d" % (v(pb + 8 * pp + 4 * hf, 4), pp * 2048 + hf * 1024))

    p("s_mov_b32 %s, 0" % s(S_STEP))
    p("s_mov_b32 %s, 0" % s(S_PAR))
    p("s_lshl_b32 %s, %s, 11" % (s(S_T0), s(S_W)))
    p("s_add_u32 %s, %s, 0x%x" % (s(S_MB), s(S_T0), OFF_MB))
    p("s_lshl_b32 %s, %s, 13" % (s(S_T0), s(S_H)))
    p("s_add_u32 %s, %s, 0x%x" % (s(S_VX), s(S_T0), OFF_VX))
    p("s_add_u32 %s, %s, 0x%x" % (s(S_M0), s(S_T0), OFF_KX + 0x40000))
    p("s_add_u32 %s, %s, 0x%x" % (s(S_KX0), s(S_T0), OFF_KX))
    p("s_add_u32 %s, %s, 4096" % (s(S_KX1), s(S_KX0)))
    p("s_lshl_b32 %s, %s, 12" % (s(S_T0), s(S_H)))
    p("s_add_u32 %s, %s, 0x%x" % (s(S_KM), s(S_T0), OFF_KM))
    p("s_add_u32 %s, %s, 0x%x" % (s(S_VM), s(S_T0), OFF_VM))
    p("s_lshl_b32 %s, %s, 7" % (s(S_PUB), s(S_U)))
    p("s_add_u32 %s, %s, 0x%x" % (s(S_HIST), s(S_PUB), OFF_HIST + 9216))
    p("s_add_u32 %s, %s, 0x%x" % (s(S_PUB), s(S_PUB), OFF_MB + 16384))
    p("s_lshl_b32 %s, %s, 7" % (s(S_TF), s(S_H)))
    p("s_add_u32 %s, %s, 0x%x" % (s(S_TF), s(S_TF), OFF_FLAG + F_TEAM))
    p("s_lshl_b32 %s, %s, 9" % (s(S_KVF), s(S_H)))
    p("s_add_u32 %s, %s, 0x%x" % (s(S_KVF), s(S_KVF), OFF_FLAG + F_G1))
    p("s_mov_b32 %s, 0" % s(S_KVC))
    p("v_add_u32 %s, 65536, %s" % (v(T1), v(L16)))
    p("v_add_u32 %s, 131072, %s" % (v(T2), v(L16)))
    p("s_waitcnt lgkmcnt(0)")
    p("s_barrier")
    for w in range(1, 4):
        p("s_cmp_eq_u32 %s, %d" % (s(S_W), w))
        p("s_cbranch_scc1 REC_W%d" % w)
    MODES = ["", "sc1"] if census else [st_flags]

    def budget():
        p("s_sub_u32 %s, %s, 1" % (s(S_BUD), s(S_BUD)))
        p("s_cbranch_scc1 REC_FAIL")

    def bg(q, n=1):
        for _ in range(n):
            if q:
                x = q.pop(0)
                if callable(x):
                    x()
                else:
                    p(x)

    def combine(acc):
        return ([("v_permlane32_swap_b32 %s, %s" % (v(acc + r), v(acc + 4 + r))) for r in range(4)]
                + [("v_add_f32 %s, %s, %s" % (v(acc + r), v(acc + r), v(acc + 4 + r))) for r in range(4)]
                + ["v_cvt_pk_bf16_f32 %s, %s, %s" % (v(acc), v(acc), v(acc + 1)),
                   "v_cvt_pk_bf16_f32 %s, %s, %s" % (v(acc + 1), v(acc + 2), v(acc + 3))])

    def rdtile(dst, addr):
        b, off = lref(addr)
        p("ds_read_b128 %s, %s offset:%d" % (v(dst, 4), b, off))
        p("ds_read_b128 %s, %s offset:%d" % (v(dst + 4, 4), b, off + 1024))

    def bases():
        p("v_add_u32 %s, 65536, %s" % (v(T1), v(L16)))
        p("v_add_u32 %s, 131072, %s" % (v(T2), v(L16)))

    def kexport():
        for ks in range(4):
            p("buffer_store_dwordx4 %s, %s, %s, %s offen offset:%d %s" % (v(52 + 4 * ks, 4), v(L16), s(SWS, 4), s(S_KM), ks * 1024, EXP))
        p("s_add_u32 %s, %s, 0x20000" % (s(S_KM), s(S_KM)))

    def teamflag(sval):
        p("v_mov_b32 %s, %s" % (v(T0), s(sval)))
        p("s_mov_b64 exec, 1")
        p("buffer_store_dword %s, %s, %s, %s offen sc1" % (v(T0), v(L16), s(SWS, 4), s(S_TF)))
        p("s_mov_b64 exec, -1")

    def kv_wait(sseg):
        if not flags:
            return
        ok = p.newlabel("KVOK")
        top = p.newlabel("KVP")
        p("s_cmp_ge_u32 %s, 64" % s(sseg))
        p("s_cbranch_scc1 %s" % ok)
        p.label(top)
        p("s_cmp_gt_u32 %s, %s" % (s(S_KVC), s(sseg)))
        p("s_cbranch_scc1 %s" % ok)
        p("s_lshr_b32 s56, %s, 4" % s(sseg))
        p("s_lshl_b32 s57, s56, 7")
        p("s_add_u32 s57, s57, %s" % s(S_KVF))
        p("s_mov_b64 exec, 1")
        p("buffer_load_dword %s, %s, %s, s57 offen sc1" % (v(T0), v(L16), s(SWS, 4)))
        p("s_mov_b64 exec, -1")
        p("s_waitcnt vmcnt(0)")
        p("v_readfirstlane_b32 s57, %s" % v(T0))
        p("s_lshl_b32 s56, s56, 4")
        p("s_add_u32 %s, s56, s57" % s(S_KVC))
        budget()
        p("s_branch %s" % top)
        p.label(ok)

    def gen_wave(w):
        W = "W%d_" % w
        own = [2 * w, 2 * w + 1] + ([8] if w == 3 else [])
        oth = [j for j in range(9) if j not in own]
        nt = 16 if w < 2 else 20
        seq1 = [(0, j, tt) for j in own for tt in range(2)] + [(1, j, tt) for j in own for tt in range(2)]
        seq2 = [(0, j, tt) for j in oth for tt in range(2)]
        seq3 = [(1, j, tt) for j in oth for tt in range(2)]
        seq = seq1 + seq2 + seq3
        if w < 3:
            lds_qk = [seq[i] for i in (0, 8, 16, 24)][:NQKL]
            reg_wo = [4, 5, 10, 11][:NQKL]
            swaps = list(zip(lds_qk, reg_wo))
        else:
            lds_qk = []
            reg_wo = list(range(18))
            swaps = [((2, k // 2, k % 2), k) for k in range(18)]
        wo_reg = {t: tile for tile, t in swaps}
        qk_addr = {tile: slot_addr(t, w) for tile, t in swaps}

        p.label("REC_W%d" % w)
        for base in range(0, len(swaps), 4):
            grp = swaps[base:base + 4]
            for i, (tile, t) in enumerate(grp):
                rdtile(8 * i, slot_addr(t, w))
            p("s_waitcnt lgkmcnt(0)")
            for i, (tile, t) in enumerate(grp):
                b, off = lref(slot_addr(t, w))
                p("ds_write_b128 %s, %s offset:%d" % (b, wt_reg(*tile, 0, 4), off))
                p("ds_write_b128 %s, %s offset:%d" % (b, wt_reg(*tile, 4, 4), off + 1024))
            p("s_waitcnt lgkmcnt(0)")
            for i, (tile, t) in enumerate(grp):
                for r in range(8):
                    d = wt_reg(*tile, r, 1)
                    p("%s %s, %s" % ("v_accvgpr_write_b32" if d[0] == "a" else "v_mov_b32", d, v(8 * i + r)))
        if w == 2:
            kv_wait(S_STEP)
        p("s_barrier")

        def wsrc(tile):
            return v(STG0, 8) if tile in lds_qk else wt(*tile)

        def qk(tile):
            m, j, tt = tile
            return smf((AQ, AK)[m] + 4 * tt, MA + 4 * j, wsrc(tile))

        MSK = [48, 50, 52, 54]

        def fetch(masked=False):
            for i, j in enumerate(own):
                if masked:
                    p("s_mov_b64 exec, %s" % s(MSK[i], 2))
                p("buffer_load_dwordx4 %s, %s, %s, %s offen offset:%d sc1" % (v(MA + 4 * j, 4), v(L16), s(SWS, 4), s(S_MB), i * 1024))
            if masked:
                p("s_mov_b64 exec, -1")

        def masks(bases_, tmps):
            for i, b in enumerate(bases_):
                p("v_max3_u32 %s, %s, %s, %s" % (v(tmps[i]), v(b), v(b + 1), v(b + 2)))
                p("v_max_u32 %s, %s, %s" % (v(tmps[i]), v(tmps[i]), v(b + 3)))
            for i, b in enumerate(bases_):
                p("v_cmp_eq_u32 %s, %s, %s" % (s(MSK[i], 2), s(S_SENT), v(tmps[i])))
            p("s_or_b64 s[56:57], %s, %s" % (s(MSK[0], 2), s(MSK[1], 2)))
            for i in range(2, len(bases_)):
                p("s_or_b64 s[56:57], s[56:57], %s" % s(MSK[i], 2))

        if census:
            top = p.newlabel("CEN")
            p.label(top)
            p("s_mov_b64 exec, 1")
            p("buffer_load_dword %s, %s, s[12:15], 0 offen offset:36 sc1" % (v(T0), v(L16)))
            p("s_waitcnt vmcnt(0)")
            p("buffer_load_dword %s, %s, s[12:15], 0 offen sc1" % (v(QF), v(L16)))
            p("s_mov_b64 exec, -1")
            p("s_waitcnt vmcnt(0)")
            p("v_readfirstlane_b32 s56, %s" % v(T0))
            p("v_readfirstlane_b32 s57, %s" % v(QF))
            budget()
            p("s_cmp_lt_u32 s56, 256")
            p("s_cbranch_scc1 %s" % top)
            p("s_cmp_lt_u32 s57, 32")
            p("s_cbranch_scc1 W%dsc1_LOOP" % w)
        for ST in MODES:
            gen_loop(w, ST, "W%d%s_" % (w, ST), locals())

    def gen_loop(w, ST, W, env):
        own, oth, nt, seq1, seq2, seq3, lds_qk, reg_wo, wo_reg, qk_addr = [env[k] for k in
            ("own", "oth", "nt", "seq1", "seq2", "seq3", "lds_qk", "reg_wo", "wo_reg", "qk_addr")]
        qk, fetch, masks, MSK = env["qk"], env["fetch"], env["masks"], env["MSK"]
        p.label(W + "LOOP")
        stamp(0)
        no = len(own)
        for _ in range(FD0):
            p("s_nop 15")
        fetch()
        bases()
        if lds_qk:
            rdtile(STG0, qk_addr[lds_qk[0]])
        for r in range(16):
            p("v_mov_b32 %s, 0" % v(AQ + r))
        for _ in range(FD1):
            p("s_nop 15")
        fetch()
        p.label(W + "CHK")
        p("s_waitcnt vmcnt(%d)" % no)
        masks([MA + 4 * j for j in own], [T0, QF, QF + 1])
        p("s_cbranch_scc1 %sRETRY" % W)
        stamp(1)
        for j in own:
            p("ds_write_b128 %s, %s offset:%d" % (v(L16), v(MA + 4 * j, 4), L_MEM + j * 1024))
        pend = []
        state = dict(n=0)

        def issue_qk(tile, need_wait=True):
            p(qk(tile))
            if pend:
                rdtile(STG0, qk_addr[pend.pop()])
                state["n"] += 2
            if tile in lds_qk:
                i = lds_qk.index(tile)
                if i + 1 < len(lds_qk):
                    pend.append(lds_qk[i + 1])

        vt = {0: [0, 1, 6], 1: [2, 3, 7], 2: [4, 5], 3: []}[w]
        KX = [[52, 56, 60, 64], [68, 24, 28, 32]]

        def ldkx(kt, ks):
            p("buffer_load_dwordx4 %s, %s, %s, %s offen offset:%d" % (v(KX[kt][ks], 4), v(L16), s(SWS, 4), s((S_KX0, S_KX1)[kt]), ks * 1024) + " sc1")

        def ldvx(i):
            et = vt[i]
            so, off = (S_VX, et * 1024) if et < 4 else (S_T0, (et - 4) * 1024)
            p("buffer_load_dwordx4 %s, %s, %s, %s offen offset:%d" % (v(VXF + 4 * i, 4), v(L16), s(SWS, 4), s(so), off) + " sc1")

        S1 = list(seq1)
        if lds_qk:
            p("s_waitcnt lgkmcnt(%d)" % len(own))
        p("s_add_u32 %s, %s, 4096" % (s(S_T0), s(S_VX)))
        for i in range(4):
            issue_qk(S1.pop(0))
            if w == 3:
                ldkx(0, i)
            elif i < len(vt):
                ldvx(i)
        p("s_add_u32 %s, %s, 0x40000" % (s(S_VX), s(S_VX)))
        p("s_waitcnt lgkmcnt(%d)" % state["n"])
        p("s_barrier")
        stamp(2)
        if w == 1 and flags:
            teamflag(S_STEP)
        for j in oth:
            p("ds_read_b128 %s, %s offset:%d" % (v(MA + 4 * j, 4), v(L16), L_MEM + j * 1024))
        state["n"] = 0
        if w == 3:
            ldkx(1, 0)
        while S1:
            issue_qk(S1.pop(0))
        for i, tile in enumerate(seq2):
            jj = i // 2
            if tile in lds_qk and lds_qk.index(tile) >= 2:
                p("s_waitcnt lgkmcnt(0)")
                state["n"] = 0
                state["all"] = True
            elif i % 2 == 0 and not state.get("all"):
                p("s_waitcnt lgkmcnt(%d)" % (len(oth) - 1 - jj + state["n"]))
            issue_qk(tile)
            if w == 3 and 1 <= i <= 3:
                ldkx(1, i)
            if w == 2 and i == 2:
                pass
        if w == 3:
            for r in (S_KX0, S_KX1):
                p("s_add_u32 %s, %s, 0x40000" % (s(r), s(r)))
        stamp(3)
        Kq = [(lambda t=t: issue_qk(t)) for t in seq3]
        bg(Kq, 2)
        if len(lds_qk) > 3:
            p("s_waitcnt lgkmcnt(0)")
        bg(Kq, 1)
        cq = combine(AQ)
        for i, x in enumerate(cq):
            p(x)
            if i % 2 == 1:
                bg(Kq)
        p("ds_write_b64 %s, %s offset:%d" % (v(QWA), v(AQ, 2), L_Q + 512 * w))
        if w < 2:
            rdtile(STG0, slot_addr(w, 3))
        if w < 3:
            Z = ["v_mov_b32 %s, 0" % v(AQ + r) for r in (2, 3, 4, 5, 6, 7)]
            for i in range(3):
                bg(Kq)
                bg(Z, 2)
            p("s_waitcnt lgkmcnt(%d)" % (2 if w < 2 else 0))
            p("s_barrier")
            p("v_mov_b32 %s, 0" % v(AQ))
            bg(Kq)
            p("v_mov_b32 %s, 0" % v(AQ + 1))
            bg(Kq, 99)
        else:
            bg(Kq, 3)
            p("s_waitcnt lgkmcnt(0)")
            p("s_barrier")
            QFR = 0
            for ks in range(4):
                for b in range(2):
                    p("ds_read_b64_tr_b16 %s, %s offset:%d" % (v(QFR + 4 * ks + 2 * b, 2), v(TRA), L_Q + (32 * ks + 16 * b) * 16))
                if ks == 1:
                    bg(Kq)
            assert not Kq
        stamp(4)
        stamp(5)

        STG = [8, 16, 24, STG0, VXF]
        NST = len(STG)
        OA = AQ
        ACC = [0, 4, 32, QF, 0] if w < 3 else [0, 4, 32, QF, 24]
        RI = None
        lt = [t for t in range(nt) if t not in reg_wo]

        if w < 3:
            AVs = [AQ, AQ + 4, AK + 4]
            nv = len(vt)

            def vr(j, tt):
                return smf(AVs[tt], MA + 4 * j, wt(2, j, tt))

            p(vr(0, 0))
            p(vr(0, 1))
            for x in combine(AK):
                p(x)
            p("ds_write_b64 %s, %s offset:%d" % (v(QWA), v(AK, 2), L_K + 512 * w))
            stamp(6)
            if nv == 3:
                for r in range(4):
                    p("v_mov_b32 %s, 0" % v(AVs[2] + r))
                slots = {0: STG0, 1: STG0, 2: STG0, 3: 0, 4: STG0, 5: 0, 6: 8, 7: STG0, 8: 0}

                def vl(j):
                    return smf(AVs[2], MA + 4 * j, v(slots[j], 8))

                def req(j):
                    rdtile(slots[j], slot_addr(2 * j + w, 3))
                p(vl(0))
                p(vr(1, 0))
                req(1)
                p(vr(1, 1))
                p(vr(2, 0))
                p("s_waitcnt lgkmcnt(2)")
                p("s_barrier")
                stamp(7)
                p(vr(2, 1))
                p("s_waitcnt lgkmcnt(0)")
                p(vl(1))
                p(vr(3, 0))
                req(2)
                req(3)
                p(vr(3, 1))
                p(vr(4, 0))
                p(vr(4, 1))
                p("s_waitcnt lgkmcnt(2)")
                p(vl(2))
                p("s_waitcnt lgkmcnt(0)")
                p(vl(3))
                p(vr(5, 0))
                req(4)
                req(5)
                req(6)
                p(vr(5, 1))
                p(vr(6, 0))
                p(vr(6, 1))
                p("s_waitcnt lgkmcnt(4)")
                p(vl(4))
                p("s_waitcnt lgkmcnt(2)")
                p(vl(5))
                req(7)
                p("s_waitcnt lgkmcnt(2)")
                p(vl(6))
                req(8)
                p(vr(7, 0))
                p(vr(7, 1))
                p(vr(8, 0))
                p(vr(8, 1))
                p("s_waitcnt lgkmcnt(2)")
                p(vl(7))
                p("s_waitcnt lgkmcnt(0)")
                p(vl(8))
            else:
                for j in (1, 2):
                    p(vr(j, 0))
                    p(vr(j, 1))
                p("s_waitcnt lgkmcnt(0)")
                p("s_barrier")
                stamp(7)
                p("s_add_u32 %s, %s, 1" % (s(S_T0), s(S_STEP)))
                kv_wait(S_T0)
                p("v_lshlrev_b32 %s, 3, %s" % (v(T0), v(L16)))
                p("s_mov_b32 m0, %d" % L_SX)
                p("s_add_u32 %s, %s, 0x%x" % (s(S_T0), s(S_M0), OFF_VX - OFF_KX))
                p("buffer_load_dword %s, %s, %s offen lds" % (v(T0), s(SWS, 4), s(S_M0)))
                p("buffer_load_dword %s, %s, %s offen lds" % (v(T0), s(SWS, 4), s(S_T0)))
                p("s_add_u32 %s, %s, 0x40000" % (s(S_M0), s(S_M0)))
                for j in range(3, 9):
                    p(vr(j, 0))
                    p(vr(j, 1))
            for i in range(2):
                rdtile(STG[i], slot_addr(lt[i], w))
            for i in range(nv):
                p("v_cvt_pk_bf16_f32 %s, %s, %s" % (v(AVs[i]), v(AVs[i]), v(AVs[i] + 1)))
                p("v_cvt_pk_bf16_f32 %s, %s, %s" % (v(AVs[i] + 1), v(AVs[i] + 2), v(AVs[i] + 3)))
            rdtile(STG[2], slot_addr(lt[2], w))
            rdtile(STG[3], slot_addr(lt[3], w))
            p("v_lshrrev_b32 %s, 1, %s" % (v(T0), v(L16)))
            for i, et in enumerate(vt):
                p("buffer_store_dwordx2 %s, %s, %s, %s offen offset:%d %s" % (v(AVs[i], 2), v(T0), s(SWS, 4), s(S_VM), et * 512, EXP))
            p("v_lshrrev_b32 %s, 1, %s" % (v(T0), v(SXR)))
            p("s_add_u32 %s, %s, 0x20000" % (s(S_VM), s(S_VM)))
            p("s_cmp_eq_u32 %s, %d" % (s(S_STEP), nsteps - 1))
            p("s_cbranch_scc1 REC_LAST")
            p("s_waitcnt vmcnt(%d)" % (nv + (2 if w == 2 else 0)))
            stamp(8)
            p("s_barrier")
            stamp(9)
            PX, PM = AK, AQ + 2
            p("ds_read_b128 %s, %s offset:%d" % (v(PX, 4), v(SXR), L_PX))
            p("ds_read_b64 %s, %s offset:%d" % (v(PM, 2), v(T0), L_PM))
            OX = [0, 4, 32]
            p("s_waitcnt lgkmcnt(1)")
            for i in range(nv):
                p("v_mfma_f32_16x16x32_bf16 %s, %s, %s, 0" % (v(OX[i], 4), v(VXF + 4 * i, 4), v(PX, 4)))
            p("s_waitcnt lgkmcnt(0)")
            for i in range(nv):
                p("v_mfma_f32_16x16x16_bf16 %s, %s, %s, %s" % (v(OX[i], 4), v(AVs[i], 2), v(PM, 2), v(OX[i], 4)))
            p("v_cvt_pk_bf16_f32 %s, %s, %s" % (v(0), v(0), v(1)))
            p("v_cvt_pk_bf16_f32 %s, %s, %s" % (v(1), v(2), v(3)))
            p("v_cvt_pk_bf16_f32 %s, %s, %s" % (v(2), v(4), v(5)))
            p("v_cvt_pk_bf16_f32 %s, %s, %s" % (v(3), v(6), v(7)))
            p("ds_write_b128 %s, %s offset:%d" % (v(SXR), v(0, 4), L_O + 512 * w))
            if nv == 3:
                p("v_cvt_pk_bf16_f32 %s, %s, %s" % (v(32), v(32), v(33)))
                p("v_cvt_pk_bf16_f32 %s, %s, %s" % (v(33), v(34), v(35)))
                p("ds_write_b64 %s, %s offset:%d" % (v(SXR), v(32, 2), L_O + 512 * 3 + 8 * w))
            stamp(10)
            rdtile(STG[4], slot_addr(lt[4], w))
            for r in range(4):
                p("v_mov_b32 %s, 0" % v(ACC[1] + r))
                p("v_mov_b32 %s, 0" % v(ACC[3] + r))
            p("s_waitcnt lgkmcnt(2)")
            npre = 5
        else:
            KFR = [52, 56, 60, 64]
            SX = AQ
            SM = AK
            MX, LX, FX, TM = AK + 4, AK + 5, AK + 6, AK + 7
            CK = combine(AK)
            CK.append("ds_write_b64 %s, %s offset:%d" % (v(QWA), v(AK, 2), L_K + 512 * w))
            p("s_waitcnt vmcnt(0)")
            n = 0
            for ks in range(4):
                p("s_waitcnt lgkmcnt(%d)" % (6 - 2 * ks))
                for kt in range(2):
                    p("v_mfma_f32_16x16x32_bf16 %s, %s, %s, %s" % (v(SX + 4 * kt, 4), v(KX[kt][ks], 4), v(QFR + 4 * ks, 4), "0" if ks == 0 else v(SX + 4 * kt, 4)))
                    n += 1
                    if n >= 3 and n < 7:
                        bg(CK, 2)
            bg(CK, 99)
            stamp(6)
            X = []
            X.append("v_bfe_u32 %s, %s, 7, 1" % (v(T1), v(L16)))
            X.append("v_lshl_add_u32 %s, %s, 3, %s" % (v(T1), v(T1), v(SXR)))
            X.append("v_lshrrev_b32 %s, 1, %s" % (v(T2), v(SXR)))
            for r in range(4):
                X.append("v_cndmask_b32 %s, %s, %s, %s" % (v(SX + r), v(SX + r), v(SX + 4 + r), s(S_PART, 2)))
            X.append("v_max3_f32 %s, %s, %s, %s" % (v(MX), v(SX), v(SX + 1), v(SX + 2)))
            X.append("v_max_f32 %s, %s, %s" % (v(MX), v(MX), v(SX + 3)))
            X.append("v_max_f32_dpp %s, %s, %s row_ror:8 row_mask:0xf bank_mask:0xf" % (v(MX), v(MX), v(MX)))
            X.append("v_mov_b32 %s, %s" % (v(T0), v(MX)))
            X.append("v_permlane16_swap_b32 %s, %s" % (v(MX), v(T0)))
            X.append("v_max_f32 %s, %s, %s" % (v(MX), v(MX), v(T0)))
            X.append("v_mov_b32 %s, %s" % (v(T0), v(MX)))
            X.append("v_permlane32_swap_b32 %s, %s" % (v(MX), v(T0)))
            X.append("v_max_f32 %s, %s, %s" % (v(MX), v(MX), v(T0)))
            X.append("v_mul_f32 %s, %s, %s" % (v(FX), s(S_C), v(MX)))
            for r in range(4):
                X.append("v_fma_f32 %s, %s, %s, -%s" % (v(SX + r), v(SX + r), s(S_C), v(FX)))
            for r in range(4):
                X.append("v_exp_f32 %s, %s" % (v(SX + r), v(SX + r)))
            X.append("v_add_f32 %s, %s, %s" % (v(LX), v(SX), v(SX + 1)))
            X.append("v_add_f32 %s, %s, %s" % (v(T0), v(SX + 2), v(SX + 3)))
            X.append("v_add_f32 %s, %s, %s" % (v(LX), v(LX), v(T0)))
            X.append("v_add_f32_dpp %s, %s, %s row_ror:8 row_mask:0xf bank_mask:0xf" % (v(LX), v(LX), v(LX)))
            X.append("v_mov_b32 %s, %s" % (v(T0), v(LX)))
            X.append("v_permlane32_swap_b32 %s, %s" % (v(LX), v(T0)))
            X.append("v_add_f32 %s, %s, %s" % (v(LX), v(LX), v(T0)))
            bg(X, 10)
            p("s_waitcnt lgkmcnt(0)")
            p("s_barrier")
            stamp(7)
            for ks in range(4):
                for b in range(2):
                    p("ds_read_b64_tr_b16 %s, %s offset:%d" % (v(KFR[ks] + 2 * b, 2), v(TRA), L_K + (32 * ks + 16 * b) * 16))
            bg(X, 7)
            for ks in range(4):
                p("s_waitcnt lgkmcnt(%d)" % (6 - 2 * ks))
                p("v_mfma_f32_16x16x32_bf16 %s, %s, %s, %s" % (v(SM, 4), v(KFR[ks], 4), v(QFR + 4 * ks, 4), "0" if ks == 0 else v(SM, 4)))
                bg(X, 2)
            p("s_cmp_eq_u32 %s, %d" % (s(S_STEP), nsteps - 1))
            p("s_cbranch_scc1 REC_LAST3")
            bg(X, 99)
            p("v_max3_f32 %s, %s, %s, %s" % (v(TM), v(SM), v(SM + 1), v(SM + 2)))
            p("v_max3_f32 %s, %s, %s, %s" % (v(TM), v(TM), v(SM + 3), v(MX)))
            p("v_mov_b32 %s, %s" % (v(MX), v(TM)))
            p("v_permlane16_swap_b32 %s, %s" % (v(TM), v(MX)))
            p("v_max_f32 %s, %s, %s" % (v(TM), v(TM), v(MX)))
            p("v_mul_f32 %s, %s, %s" % (v(TM), s(S_C), v(TM)))
            for r in range(4):
                p("v_fma_f32 %s, %s, %s, -%s" % (v(SM + r), v(SM + r), s(S_C), v(TM)))
            p("v_sub_f32 %s, %s, %s" % (v(FX), v(FX), v(TM)))
            for r in range(4):
                p("v_exp_f32 %s, %s" % (v(SM + r), v(SM + r)))
            p("v_exp_f32 %s, %s" % (v(FX), v(FX)))
            p("v_add_f32 %s, %s, %s" % (v(MX), v(SM), v(SM + 1)))
            p("v_add_f32 %s, %s, %s" % (v(TM), v(SM + 2), v(SM + 3)))
            p("v_add_f32 %s, %s, %s" % (v(MX), v(MX), v(TM)))
            p("v_fma_f32 %s, %s, %s, %s" % (v(LX), v(LX), v(FX), v(MX)))
            p("v_mov_b32 %s, %s" % (v(T0), v(LX)))
            p("v_permlane16_swap_b32 %s, %s" % (v(LX), v(T0)))
            p("v_add_f32 %s, %s, %s" % (v(LX), v(LX), v(T0)))
            p("v_rcp_f32 %s, %s" % (v(LX), v(LX)))
            p("v_mul_f32 %s, %s, %s" % (v(FX), v(FX), v(LX)))
            for r in range(4):
                p("v_mul_f32 %s, %s, %s" % (v(SM + r), v(SM + r), v(LX)))
            for r in range(4):
                p("v_mul_f32 %s, %s, %s" % (v(SX + r), v(SX + r), v(FX)))
            p("v_cvt_pk_bf16_f32 %s, %s, %s" % (v(SM), v(SM), v(SM + 1)))
            p("v_cvt_pk_bf16_f32 %s, %s, %s" % (v(SM + 1), v(SM + 2), v(SM + 3)))
            p("ds_write_b64 %s, %s offset:%d" % (v(T2), v(SM, 2), L_PM))
            p("v_cvt_pk_bf16_f32 %s, %s, %s" % (v(SX), v(SX), v(SX + 1)))
            p("v_cvt_pk_bf16_f32 %s, %s, %s" % (v(SX + 1), v(SX + 2), v(SX + 3)))
            p("ds_write_b64 %s, %s offset:%d" % (v(T1), v(SX, 2), L_PX))
            p("s_waitcnt lgkmcnt(0)")
            stamp(8)
            p("s_barrier")
            stamp(9)
            kexport()
            bases()
            for i in range(len(lt)):
                rdtile(STG[i], slot_addr(lt[i], w))
            stamp(10)
            for t in range(5):
                for r in range(4):
                    p("v_mov_b32 %s, 0" % v(ACC[t] + r))
            npre = len(lt)
        stamp(11)
        p("s_barrier")
        stamp(12)
        for ks in range(4):
            p("ds_read_b128 %s, %s offset:%d" % (v(OA + 4 * ks, 4), v(SXR), L_O + 512 * ks))
        if w < 3:
            for r in range(4):
                p("v_mov_b32 %s, 0" % v(ACC[0] + r))
                p("v_mov_b32 %s, 0" % v(ACC[2] + r))
        if LIN:
            p("v_lshrrev_b32 %s, 1, %s" % (v(TRA), v(L16)))
        p("s_mul_i32 %s, %s, 9216" % (s(S_PB), s(S_H)))
        p("s_add_u32 %s, %s, %s" % (s(S_PB), s(S_PB), s(S_PAR)))
        p("s_add_u32 %s, %s, 4096" % (s(S_T0), s(S_PB)))
        p("s_add_u32 %s, %s, 7168" % (s(S_T1), s(S_PB)))
        log = [("w", lt[npre - 1])] * 2 + [("o", k) for k in range(4)]
        nxt = npre
        freed = []
        RI = None

        def post(tau):
            A0 = ACC[tau]
            so, off = [(S_PB, 0), (S_PB, 2048), (S_T0, 0), (S_T0, 2048), (S_T1, 0)][tau]
            L = []
            L.append("v_cvt_pk_bf16_f32 %s, %s, %s" % (v(A0), v(A0), v(A0 + 1)))
            L.append("v_cvt_pk_bf16_f32 %s, %s, %s" % (v(A0 + 1), v(A0 + 2), v(A0 + 3)))
            L.append("buffer_store_dwordx2 %s, %s, %s, %s offen offset:%d %s" % (v(A0, 2), v(TRA if LIN else QWA), s(SWS, 4), s(so), off + 512 * w, ST))
            if tau == 0 and w == 2:
                for r in range(4):
                    L.append("v_mov_b32 %s, 0" % v(A0 + r))
            return L

        slot_of = {t: i % NST for i, t in enumerate(lt[:npre])}
        PQ = []
        for t in range(nt):
            tau, ks = divmod(t, 4)
            needs = []
            if t < 4:
                needs.append(("o", ks))
            if t in lt:
                needs.append(("w", t))
            hit = [i for i, x in enumerate(log) if x in needs]
            if hit:
                p("s_waitcnt lgkmcnt(%d)" % min(15, len(log) - 1 - max(hit)))
            if ks == 0 and tau == 4:
                bg(PQ, 99)
            if t in lt:
                p(smf(ACC[tau], OA + 4 * ks, v(STG[slot_of[t]], 8)))
            else:
                p(smf(ACC[tau], OA + 4 * ks, wt(*wo_reg[t])))
            if freed:
                sl = freed.pop()
                if nxt < len(lt):
                    rdtile(STG[sl], slot_addr(lt[nxt], w))
                    slot_of[lt[nxt]] = sl
                    log += [("w", lt[nxt])] * 2
                    nxt += 1
            if t in lt:
                freed.append(slot_of[t])
            if ks == 2 and tau >= 1:
                bg(PQ, 99)
                PQ = post(tau - 1)
            bg(PQ, 1)
        bg(PQ, 99)
        for x in post(nt // 4 - 1):
            p(x)
        stamp(13)
        if w < 3:
            labn = W + "NORED"
            if w == 2:
                p("s_cmp_ge_u32 %s, 72" % s(S_U))
                p("s_cbranch_scc1 %s" % labn)
            RD = 16
            SEL = 32
            RA = 36
            RP = 37
            RACC = 40
            p("v_lshrrev_b32 %s, 7, %s" % (v(T0), v(L16)))
            p("v_mul_u32_u24 %s, 9216, %s" % (v(T0), v(T0)))
            p("v_and_b32 %s, 0x70, %s" % (v(RP), v(L16)))
            p("v_add_u32 %s, %s, %s" % (v(RA), v(T0), v(RP)))
            p("s_lshl_b32 %s, %s, 7" % (s(S_RL), s(S_U)))
            p("s_add_u32 %s, %s, %s" % (s(S_RL), s(S_RL), s(S_PAR)))
            p("s_add_u32 %s, %s, %d" % (s(S_T0), s(S_RL), 73728))
            p("s_add_u32 %s, %s, %d" % (s(S_T1), s(S_RL), 2 * 73728))
            p("s_add_u32 %s, %s, %d" % (s(S_T2), s(S_RL), 3 * 73728))
            soffs = [S_RL, S_T0, S_T1, S_T2]

            def rload(masked=False):
                for ld in range(4):
                    if masked:
                        p("s_mov_b64 exec, %s" % s(MSK[ld], 2))
                    p("buffer_load_dwordx4 %s, %s, %s, %s offen sc1" % (v(RD + 4 * ld, 4), v(RA), s(SWS, 4), s(soffs[ld])))
                if masked:
                    p("s_mov_b64 exec, -1")
            for _ in range(RD0[w]):
                p("s_nop 15")
            rload()
            for r in range(4):
                p("v_mov_b32 %s, 0x%x" % (v(8 + r), SENT))
            p("v_bfe_u32 %s, %s, 4, 4" % (v(T0), v(L16)))
            p("v_and_b32 %s, 1, %s" % (v(T1), v(T0)))
            p("v_lshlrev_b32 %s, 4, %s" % (v(T1), v(T1)))
            p("v_mov_b32 %s, 0x3f80" % v(T2))
            p("v_lshlrev_b32 %s, %s, %s" % (v(T1), v(T1), v(T2)))
            p("v_lshrrev_b32 %s, 1, %s" % (v(T0), v(T0)))
            for r in range(4):
                p("v_cmp_eq_u32 vcc, %d, %s" % (r, v(T0)))
                p("v_cndmask_b32 %s, 0, %s, vcc" % (v(SEL + r), v(T1)))
            p("v_bfe_u32 %s, %s, 8, 1" % (v(T2), v(L16)))
            p("v_lshl_add_u32 %s, %s, 3, %s" % (v(RP), v(T2), v(RP)))
            p("v_bfe_u32 %s, %s, 9, 1" % (v(T2), v(L16)))
            p("v_lshl_add_u32 %s, %s, 2, %s" % (v(RP), v(T2), v(RP)))
            if TWO:
                rload()
            p("s_branch %sRED1" % W)
            p.label(W + "RED")
            rload(True)
            budget()
            p.label(W + "RED1")
            p("s_waitcnt vmcnt(%d)" % (4 if TWO else 0))
            masks([RD + 4 * ld for ld in range(4)], [44, 45, 46, 47])
            p("s_cbranch_scc1 %sRED" % W)
            for ld in range(4):
                b = RD + 4 * ld
                p("v_mfma_f32_16x16x32_bf16 %s, %s, %s, %s" % (v(RACC, 4), v(b, 4), v(SEL, 4), "0" if ld == 0 else v(RACC, 4)))
            stamp(14)
            p("v_permlane32_swap_b32 %s, %s" % (v(RACC), v(RACC + 2)))
            p("v_permlane32_swap_b32 %s, %s" % (v(RACC + 1), v(RACC + 3)))
            p("v_add_f32 %s, %s, %s" % (v(RACC), v(RACC), v(RACC + 2)))
            p("v_add_f32 %s, %s, %s" % (v(RACC + 1), v(RACC + 1), v(RACC + 3)))
            p("v_cvt_pk_bf16_f32 %s, %s, %s" % (v(RACC), v(RACC), v(RACC + 1)))
            p("s_mov_b64 exec, %s" % s(S_PUBM, 2))
            p("buffer_store_dword %s, %s, %s, %s offen %s" % (v(RACC), v(RP), s(SWS, 4), s(S_PUB), ST))
            p("s_xor_b32 %s, %s, 16384" % (s(S_T3), s(S_PUB)))
            p("buffer_store_dword v8, %s, %s, %s offen %s" % (v(RP), s(SWS, 4), s(S_T3), ST))
            if hist:
                p("buffer_store_dword %s, %s, %s, %s offen" % (v(RACC), v(RP), s(SWS, 4), s(S_HIST)))
                p("s_add_u32 %s, %s, 9216" % (s(S_HIST), s(S_HIST)))
            p("s_mov_b64 exec, -1")
            for ld in range(4):
                p("buffer_store_dwordx4 v[8:11], %s, %s, %s offen %s" % (v(RA), s(SWS, 4), s(soffs[ld]), ST))
            p.label(labn)
        stamp(15)
        p("s_xor_b32 %s, %s, 16384" % (s(S_PUB), s(S_PUB)))
        p("s_xor_b32 %s, %s, 16384" % (s(S_MB), s(S_MB)))
        p("s_xor_b32 %s, %s, %d" % (s(S_PAR), s(S_PAR), PB_PAR))
        p("s_add_u32 %s, %s, 1" % (s(S_STEP), s(S_STEP)))
        if stamps:
            flush_stamps()
            p("s_add_u32 %s, %s, 128" % (s(S_STO), s(S_STO)))
        p("s_barrier")
        p("s_branch %sLOOP" % W)
        p.label(W + "RETRY")
        fetch(True)
        budget()
        p("s_branch %sCHK" % W)

    for w in range(4):
        gen_wave(w)

    p.label("REC_LAST3")
    kexport()
    p.label("REC_LAST")
    p("s_waitcnt vmcnt(0)")
    p("s_barrier")
    p("s_mov_b32 %s, %d" % (s(S_T0), nsteps))
    teamflag(S_T0)
    p("s_branch REC_DONE")
```

```python
import math
import struct
from asmlib import *
from layout import *

SWS = 4
SA = 8
SB = 12
SX = 16
S_WV = 20
S_RANK = 21
S_BUDW = 22
S_A, S_B, S_C_, S_D, S_E, S_F, S_G, S_H_ = 24, 25, 26, 27, 28, 29, 30, 31
S_I, S_J, S_K, S_L = 32, 33, 34, 35

V_L16 = 200
V_LANE = 201


def f2u(x):
    return struct.unpack("<I", struct.pack("<f", x))[0]


def srd(p, sreg, slot, nbytes):
    p("s_load_dwordx2 %s, s[0:1], %d" % (s(sreg, 2), slot * 8))
    p("s_mov_b32 %s, %d" % (s(sreg + 2), nbytes))
    p("s_mov_b32 %s, 0x20000" % s(sreg + 3))


def worker_setup(p):
    srd(p, SWS, D_WS, WS_BYTES)
    srd(p, SX, A_X, S * DM * 2)
    p("v_lshrrev_b32 v1, 6, v0")
    p("v_and_b32 %s, 63, v0" % v(V_LANE))
    p("v_readfirstlane_b32 %s, v1" % s(S_WV))
    p("v_lshlrev_b32 %s, 4, %s" % (v(V_L16), v(V_LANE)))
    p("s_mov_b32 %s, 300000" % s(S_BUDW))
    p("s_waitcnt lgkmcnt(0)")


def lane_fields(p, r16, g, r, c):
    p("v_and_b32 %s, 15, %s" % (v(r16), v(V_LANE)))
    p("v_lshrrev_b32 %s, 4, %s" % (v(g), v(V_LANE)))
    p("v_bfe_u32 %s, %s, 2, 2" % (v(r), v(V_LANE)))
    p("v_and_b32 %s, 3, %s" % (v(c), v(V_LANE)))


def bfrag(i, r=0, n=4):
    if i < 64:
        return a(4 * i + r, n)
    return v(208 + 4 * (i - 64) + r, n)


XB0 = 98304
XB1 = 0
V_XA = 202


def x_dma_setup(p):
    p("v_and_b32 v1, 15, %s" % v(V_LANE))
    p("v_mul_u32_u24 v1, 1152, v1")
    p("v_lshrrev_b32 v2, 4, %s" % v(V_LANE))
    p("v_lshl_add_u32 %s, v2, 4, v1" % v(V_XA))


def x_dma(p, srow, sbuf, st0, st1):
    p("s_add_u32 %s, %s, %s" % (s(st0), s(srow), s(S_K)))
    p("s_add_u32 %s, %s, %s" % (s(st1), s(sbuf), s(S_L)))
    for i in range(9):
        p("s_add_u32 m0, %s, %d" % (s(st1), i * 1024))
        if i:
            p("s_add_u32 %s, %s, 64" % (s(st0), s(st0)))
        else:
            p("s_nop 0")
        p("buffer_load_dwordx4 %s, %s, %s offen lds" % (v(V_XA), s(SX, 4), s(st0)))


def x_dma_consts(p):
    p("s_lshr_b32 %s, %s, 1" % (s(S_K), s(S_WV)))
    p("s_mul_i32 %s, %s, %d" % (s(S_K), s(S_K), 16 * 1152))
    p("s_and_b32 %s, %s, 1" % (s(S_L), s(S_WV)))
    p("s_mul_i32 %s, %s, 576" % (s(S_L), s(S_L)))
    p("s_add_u32 %s, %s, %s" % (s(S_K), s(S_K), s(S_L)))
    p("s_mul_i32 %s, %s, 9216" % (s(S_L), s(S_WV)))


def gen_gemm1(p, done_label):
    S_Q, S_ROW, S_OUT, S_FLAG, S_IT, S_BUF, S_VT = S_A, S_B, S_C_, S_D, S_E, S_F, S_G
    S_T0, S_T1 = S_H_, S_I
    NB = DM * H * DH * 2
    p.c("---- projection GEMM role")
    p("s_load_dwordx2 s[40:41], s[0:1], %d" % (A_WQ * 8))
    p("s_load_dwordx2 s[42:43], s[0:1], %d" % (A_WK * 8))
    p("s_load_dwordx2 s[44:45], s[0:1], %d" % (A_WV * 8))
    p("s_mov_b32 %s, %d" % (s(SA + 2), NB))
    p("s_mov_b32 %s, 0x20000" % s(SA + 3))
    p("s_mov_b32 %s, %d" % (s(SB + 2), NB))
    p("s_mov_b32 %s, 0x20000" % s(SB + 3))
    p("s_and_b32 %s, %s, 3" % (s(S_Q), s(S_RANK)))
    p("s_lshr_b32 %s, %s, 2" % (s(S_T0), s(S_RANK)))
    p("s_lshr_b32 %s, %s, 1" % (s(S_T1), s(S_WV)))
    p("s_waitcnt lgkmcnt(0)")
    lq = p.newlabel("G1Q")
    le = p.newlabel("G1E")
    p("s_cmp_ge_u32 %s, 32" % s(S_T0))
    p("s_cbranch_scc1 %s" % lq)
    p("s_mov_b32 %s, s42" % s(SA))
    p("s_mov_b32 %s, s43" % s(SA + 1))
    p("s_mov_b32 %s, s44" % s(SB))
    p("s_mov_b32 %s, s45" % s(SB + 1))
    p("s_lshl_b32 s46, %s, 8" % s(S_T0))
    p("s_mov_b32 s47, s46")
    p("s_mov_b32 %s, %s" % (s(S_VT), s(S_T1)))
    p("s_lshl_b32 %s, %s, 13" % (s(S_OUT), s(S_T0)))
    p("s_mul_i32 %s, %s, 0x%x" % (s(S_T1), s(S_T1), OFF_VX - OFF_KX))
    p("s_add_u32 %s, %s, %s" % (s(S_OUT), s(S_OUT), s(S_T1)))
    p("s_add_u32 %s, %s, 0x%x" % (s(S_OUT), s(S_OUT), OFF_KX))
    p("s_branch %s" % le)
    p.label(lq)
    p("s_mov_b32 %s, s40" % s(SA))
    p("s_mov_b32 %s, s41" % s(SA + 1))
    p("s_mov_b32 %s, s40" % s(SB))
    p("s_mov_b32 %s, s41" % s(SB + 1))
    p("s_sub_u32 %s, %s, 32" % (s(S_T0), s(S_T0)))
    p("s_lshl_b32 s46, %s, 9" % s(S_T0))
    p("s_add_u32 s47, s46, 256")
    p("s_mov_b32 %s, 0" % s(S_VT))
    p("s_lshl_b32 %s, %s, 1" % (s(S_T0), s(S_T0)))
    p("s_add_u32 %s, %s, %s" % (s(S_T0), s(S_T0), s(S_T1)))
    p("s_lshl_b32 %s, %s, 13" % (s(S_OUT), s(S_T0)))
    p("s_add_u32 %s, %s, 0x%x" % (s(S_OUT), s(S_OUT), OFF_QX))
    p.label(le)
    p("s_lshl_b32 %s, %s, 22" % (s(S_T0), s(S_Q)))
    p("s_add_u32 %s, %s, %s" % (s(S_OUT), s(S_OUT), s(S_T0)))
    p("s_and_b32 %s, %s, 1" % (s(S_T0), s(S_WV)))
    p("s_add_u32 %s, %s, 11" % (s(S_T1), s(S_VT)))
    p("s_lshl_b32 %s, %s, %s" % (s(S_T0), s(S_T0), s(S_T1)))
    p("s_add_u32 %s, %s, %s" % (s(S_OUT), s(S_OUT), s(S_T0)))
    p("s_lshl_b32 %s, %s, 7" % (s(S_FLAG), s(S_RANK)))
    p("s_add_u32 %s, %s, 0x%x" % (s(S_FLAG), s(S_FLAG), OFF_FLAG + F_G1))
    p("s_mul_i32 %s, %s, %d" % (s(S_ROW), s(S_Q), 512 * 1152))
    x_dma_setup(p)
    x_dma_consts(p)
    p("s_mov_b32 %s, %d" % (s(S_BUF), XB0))
    x_dma(p, S_ROW, S_BUF, S_T0, S_T1)
    lane_fields(p, 1, 2, 3, 4)
    p("s_lshr_b32 %s, %s, 1" % (s(S_T0), s(S_WV)))
    p("s_lshl_b32 %s, %s, 2" % (s(S_T0), s(S_T0)))
    p("v_or_b32 v5, %s, v2" % s(S_T0))
    p("v_lshlrev_b32 v5, 1, v5")
    p("v_xor_b32 v5, v5, v1")
    p("v_lshlrev_b32 v5, 4, v5")
    p("v_lshl_add_u32 v5, v2, 13, v5")
    p("s_lshl_b32 %s, %s, 15" % (s(S_T0), s(S_WV)))
    p("v_add_u32 v5, %s, v5" % s(S_T0))
    p("v_add_u32 v8, s46, v5")
    p("v_add_u32 v9, s47, v5")
    p("v_and_b32 v6, 1, v2")
    p("v_lshl_or_b32 v6, v6, 2, v3")
    p("s_and_b32 %s, %s, 1" % (s(S_T0), s(S_WV)))
    p("s_lshl_b32 %s, %s, 2" % (s(S_T0), s(S_T0)))
    p("v_xor_b32 v6, %s, v6" % s(S_T0))
    p("v_lshl_add_u32 v7, v2, 3, v3")
    p("v_lshlrev_b32 v7, 8, v7")
    p("v_lshl_add_u32 v7, v4, 3, v7")
    p("s_lshr_b32 %s, %s, 1" % (s(S_T0), s(S_WV)))
    p("s_lshl_b32 %s, %s, 14" % (s(S_T0), s(S_T0)))
    p("v_add_u32 v7, %s, v7" % s(S_T0))
    for t in range(4):
        p("v_xor_b32 v10, %d, v6" % t)
        p("v_lshl_add_u32 v%d, v10, 5, v7" % (12 + t))
    p("s_lshl_b32 %s, %s, 10" % (s(S_J), s(S_WV)))

    def issue(kb):
        slot = kb % 3
        for grp in range(2):
            for qq in range(4):
                p("s_add_u32 m0, %s, %d" % (s(S_J), slot * 32768 + grp * 16384 + qq * 4096))
                p("s_mov_b32 %s, %d" % (s(S_T0), (64 * kb + 16 * qq) * 8192))
                p("buffer_load_dwordx4 v%d, %s, %s offen lds" % (8 + grp, s((SA, SB)[grp], 4), s(S_T0)))

    for kb in range(3):
        issue(kb)
    issued = 3
    for kb in range(9):
        slot = kb % 3
        p("s_waitcnt vmcnt(%d) lgkmcnt(0)" % (8 * (issued - kb - 1)))
        p("s_barrier")
        if kb >= 1 and issued < 9:
            issue(issued)
            issued += 1
        for t in range(4):
            p("v_add_u32 v%d, %d, v%d" % (16 + t, slot * 32768, 12 + t))
        for k2 in range(2):
            for t in range(4):
                for hf in range(2):
                    i = t * 18 + 2 * kb + k2
                    p("ds_read_b64_tr_b16 %s, v%d offset:%d" % (bfrag(i, 2 * hf, 2), 16 + t, k2 * 8192 + hf * 1024))
    p("s_mov_b32 %s, 0" % s(S_IT))
    p("v_mov_b32 v203, 0")
    p("s_waitcnt vmcnt(0) lgkmcnt(0)")
    lv = p.newlabel("G1V")
    p("s_cmp_lg_u32 %s, 0" % s(S_VT))
    p("s_cbranch_scc1 %s" % lv)
    for vtype in (0, 1):
        if vtype:
            p.label(lv)
        top = p.newlabel("G1L")
        p.label(top)
        p("s_waitcnt vmcnt(4)")
        p("s_barrier")
        p("s_max_u32 %s, %s, 1" % (s(S_T0), s(S_IT)))
        p("s_sub_u32 %s, %s, 1" % (s(S_T0), s(S_T0)))
        p("v_mov_b32 v204, %s" % s(S_T0))
        p("s_mov_b64 exec, 1")
        p("buffer_store_dword v204, v203, %s, %s offen sc1" % (s(SWS, 4), s(S_FLAG)))
        p("s_mov_b64 exec, -1")
        p("v_add_u32 v205, %s, %s" % (s(S_BUF), v(V_L16)))
        p("s_add_u32 %s, %s, %d" % (s(S_ROW), s(S_ROW), 32 * 1152))
        p("s_xor_b32 %s, %s, %d" % (s(S_BUF), s(S_BUF), XB0 ^ XB1))
        x_dma(p, S_ROW, S_BUF, S_T0, S_T1)
        NX = 6
        XR = 40
        for f in range(NX):
            p("ds_read_b128 %s, v205 offset:%d" % (v(XR + 4 * f, 4), f * 1024))
        for f in range(36):
            rt, ks = divmod(f, 18)
            p("s_waitcnt lgkmcnt(%d)" % min(NX - 2, 35 - f) if f else "s_waitcnt lgkmcnt(%d)" % (NX - 1))
            xr = v(XR + 4 * (f % NX), 4)
            for t in range(4):
                acc = v(16 * rt + 4 * t, 4)
                c = "0" if ks == 0 else acc
                if vtype:
                    p("v_mfma_f32_16x16x32_bf16 %s, %s, %s, %s" % (acc, xr, bfrag(t * 18 + ks), c))
                else:
                    p("v_mfma_f32_16x16x32_bf16 %s, %s, %s, %s" % (acc, bfrag(t * 18 + ks), xr, c))
                if t == 0 and f >= 1 and f - 1 + NX < 36:
                    g_ = f - 1 + NX
                    p("ds_read_b128 %s, v205 offset:%d" % (v(XR + 4 * (g_ % NX), 4), g_ * 1024))
        PK = 64
        p("s_add_u32 %s, %s, 4096" % (s(S_T0), s(S_OUT)))
        for o in range(4):
            if vtype:
                src = [4 * o, 16 + 4 * o]
                so, off = S_OUT, o * 1024
            else:
                rt, tp = divmod(o, 2)
                src = [16 * rt + 8 * tp, 16 * rt + 8 * tp + 4]
                so, off = (S_OUT, S_T0)[rt], tp * 1024
            d = PK + 4 * o
            for i, b in enumerate(src):
                p("v_cvt_pk_bf16_f32 %s, %s, %s" % (v(d + 2 * i), v(b), v(b + 1)))
                p("v_cvt_pk_bf16_f32 %s, %s, %s" % (v(d + 2 * i + 1), v(b + 2), v(b + 3)))
            p("buffer_store_dwordx4 %s, %s, %s, %s offen offset:%d sc1" % (v(d, 4), v(V_L16), s(SWS, 4), s(so), off))
        p("s_add_u32 %s, %s, 0x40000" % (s(S_OUT), s(S_OUT)))
        p("s_add_u32 %s, %s, 1" % (s(S_IT), s(S_IT)))
        p("s_cmp_lt_u32 %s, 16" % s(S_IT))
        p("s_cbranch_scc1 %s" % top)
        p("s_waitcnt vmcnt(0)")
        p("s_barrier")
        p("v_mov_b32 v204, 16")
        p("s_mov_b64 exec, 1")
        p("buffer_store_dword v204, v203, %s, %s offen sc1" % (s(SWS, 4), s(S_FLAG)))
        p("s_mov_b64 exec, -1")
        p("s_branch %s" % done_label)


def poll_flags(p, voff, soff, nlanes, target, tmp, fail="W_FAIL", cmp_sgpr=None):
    top = p.newlabel("POLL")
    ok = p.newlabel("POLLOK")
    p("s_mov_b32 exec_lo, 0x%x" % ((1 << nlanes) - 1))
    p("s_mov_b32 exec_hi, 0")
    p.label(top)
    p("buffer_load_dword %s, %s, %s, %s offen sc1" % (v(tmp), v(voff), s(SWS, 4), s(soff)))
    p("s_waitcnt vmcnt(0)")
    p("v_cmp_gt_u32 vcc, %s, %s" % (s(cmp_sgpr) if cmp_sgpr is not None else str(target), v(tmp)))
    p("s_cbranch_vccz %s" % ok)
    p("s_sleep 8")
    p("s_sub_u32 %s, %s, 1" % (s(S_BUDW), s(S_BUDW)))
    p("s_cbranch_scc0 %s" % top)
    p("s_mov_b64 exec, -1")
    p("s_branch %s" % fail)
    p.label(ok)
    p("s_mov_b64 exec, -1")


LOG2E = f2u(math.log2(math.e))
EPS6 = f2u(1e-6)


def phi(p, dst, src, t0):
    p("v_min_f32 %s, 0, %s" % (v(t0), v(src)))
    p("v_mul_f32 %s, s36, %s" % (v(t0), v(t0)))
    p("v_exp_f32 %s, %s" % (v(t0), v(t0)))
    p("v_max_f32 %s, 0, %s" % (v(dst), v(src)))
    p("v_add_f32 %s, 0x%x, %s" % (v(dst), EPS6, v(dst)))
    p("v_add_f32 %s, %s, %s" % (v(dst), v(dst), v(t0)))


def gen_bbranch(p, done_label):
    S_Q, S_ROW, S_PQ, S_FLAG, S_IT, S_BUF, S_HD = S_A, S_B, S_C_, S_D, S_E, S_F, S_G
    S_T0, S_T1 = S_H_, S_I
    S_GO, S_ISG, S_OC = 37, 38, 39
    p.c("---- branch B role")
    srd(p, SA, B_WQKV, DM * 3 * DM * 2)
    srd(p, SB, GATE, DM * 2)
    p("s_mov_b32 s36, 0x%x" % LOG2E)
    p("s_sub_u32 %s, %s, 192" % (s(S_T0), s(S_RANK)))
    p("s_and_b32 %s, %s, 3" % (s(S_Q), s(S_T0)))
    p("s_and_b32 %s, %s, 0xfc" % (s(S_HD), s(S_T0)))
    p("s_add_u32 %s, %s, %s" % (s(S_HD), s(S_HD), s(S_WV)))
    p("s_lshl_b32 %s, %s, 7" % (s(S_FLAG), s(S_T0)))
    p("s_add_u32 %s, %s, 0x%x" % (s(S_FLAG), s(S_FLAG), OFF_FLAG + F_KV))
    p("s_mul_i32 %s, %s, %d" % (s(S_ROW), s(S_Q), 512 * 1152))
    p("s_lshl_b32 %s, %s, 2" % (s(S_T0), s(S_T0)))
    p("s_add_u32 %s, %s, %s" % (s(S_T0), s(S_T0), s(S_WV)))
    p("s_lshl_b32 %s, %s, 15" % (s(S_PQ), s(S_T0)))
    p("s_add_u32 %s, %s, 0x%x" % (s(S_PQ), s(S_PQ), OFF_PQ))
    p("s_lshl_b32 %s, %s, 11" % (s(S_GO), s(S_Q)))
    p("s_add_u32 %s, %s, 0x%x" % (s(S_GO), s(S_GO), OFF_G))
    x_dma_setup(p)
    x_dma_consts(p)
    p("s_mov_b32 %s, %d" % (s(S_BUF), XB0))
    p("s_waitcnt lgkmcnt(0)")
    x_dma(p, S_ROW, S_BUF, S_T0, S_T1)
    lane_fields(p, 1, 2, 3, 4)
    GF = 128
    p("v_lshlrev_b32 v5, 4, v2")
    for ks in range(18):
        p("buffer_load_dwordx4 %s, v5, %s, 0 offen offset:%d" % (v(GF + 4 * ks, 4), s(SB, 4), ks * 64))
    p("s_mul_i32 %s, %s, 36" % (s(S_T0), s(S_HD)))
    p("v_and_b32 v5, 7, %s" % v(V_LANE))
    p("v_bfe_u32 v6, %s, 3, 2" % v(V_LANE))
    p("v_lshrrev_b32 v7, 5, %s" % v(V_LANE))
    p("v_mul_u32_u24 v7, 3456, v7")
    p("v_add_u32 v7, %s, v7" % s(S_T0))
    p("v_lshlrev_b32 v12, 2, v5")
    p("v_mov_b32 v13, 0x40000000")
    for j, o in ((0, 1184), (1, 2336), (2, 32)):
        p("v_cmp_eq_u32 vcc, %d, v5" % j)
        p("v_mov_b32 v14, %d" % o)
        p("v_cndmask_b32 v13, v13, v14, vcc")
    for f2 in range(4):
        p("v_xor_b32 v14, %d, v6" % f2)
        p("v_add_u32 v15, 1152, v12")
        p("v_add_u32 v16, 2304, v12")
        p("v_cmp_eq_u32 vcc, 1, v14")
        p("v_cndmask_b32 v15, v15, v16, vcc")
        p("v_cmp_eq_u32 vcc, 2, v14")
        p("v_cndmask_b32 v15, v15, v13, vcc")
        p("v_cmp_eq_u32 vcc, 3, v14")
        p("v_cndmask_b32 v15, v15, v12, vcc")
        p("v_add_u32 v%d, v15, v7" % (8 + f2))
    p("v_and_b32 v5, 1, v2")
    p("v_lshrrev_b32 v6, 1, v3")
    p("v_lshl_or_b32 v6, v5, 1, v6")
    p("v_lshl_add_u32 v7, v2, 3, v3")
    p("v_lshlrev_b32 v7, 7, v7")
    p("v_lshl_add_u32 v7, v4, 3, v7")
    p("s_mul_i32 %s, %s, 24576" % (s(S_J), s(S_WV)))
    p("v_add_u32 v7, %s, v7" % s(S_J))
    for t in range(4):
        p("v_xor_b32 v5, %d, v6" % t)
        p("v_lshl_add_u32 v%d, v5, 5, v7" % (12 + t))
    p("s_waitcnt vmcnt(0)")

    def issue(ks):
        slot = ks % 3
        for i in range(16):
            f2 = (i & 1) | (((i >> 2) & 1) << 1)
            p("s_add_u32 m0, %s, %d" % (s(S_J), slot * 4096 + i * 256))
            p("s_mov_b32 %s, %d" % (s(S_T0), (32 * ks + 2 * i) * 3456))
            p("buffer_load_dword v%d, %s, %s offen lds" % (8 + f2, s(SA, 4), s(S_T0)))

    for ks in range(3):
        issue(ks)
    issued = 3
    for ks in range(18):
        slot = ks % 3
        p("s_waitcnt vmcnt(%d)" % (16 * (issued - ks - 1)))
        for t in range(4):
            for hf in range(2):
                p("ds_read_b64_tr_b16 %s, v%d offset:%d" % (bfrag(t * 18 + ks, 2 * hf, 2), 12 + t, slot * 4096 + hf * 512))
        if issued < 18:
            p("s_waitcnt lgkmcnt(0)")
            issue(issued)
            issued += 1
    KV = 96
    ONE = 120
    for r in range(24):
        p("v_mov_b32 %s, 0" % v(KV + r))
    for r in range(4):
        p("v_mov_b32 %s, 0x3f803f80" % v(ONE + r))
    p("s_mov_b32 %s, 0" % s(S_IT))
    p("v_mov_b32 v203, 0")
    p("s_mov_b32 s40, 0xffff0000")
    p("s_mov_b32 s41, 0")
    p("s_waitcnt vmcnt(0) lgkmcnt(0)")
    top = p.newlabel("BL")
    p.label(top)
    p("s_waitcnt vmcnt(0)")
    p("s_barrier")
    p("v_add_u32 v205, %s, %s" % (s(S_BUF), v(V_L16)))
    p("s_add_u32 %s, %s, %d" % (s(S_ROW), s(S_ROW), 32 * 1152))
    p("s_xor_b32 %s, %s, %d" % (s(S_BUF), s(S_BUF), XB0 ^ XB1))
    x_dma(p, S_ROW, S_BUF, S_T0, S_T1)
    NX = 6
    XR = 40
    for f in range(NX):
        p("ds_read_b128 %s, v205 offset:%d" % (v(XR + 4 * f, 4), f * 1024))
    for f in range(36):
        rt, ks = divmod(f, 18)
        p("s_waitcnt lgkmcnt(%d)" % min(NX - 2, 35 - f) if f else "s_waitcnt lgkmcnt(%d)" % (NX - 1))
        xr = v(XR + 4 * (f % NX), 4)
        for i, (t, tr) in enumerate(((0, 0), (1, 0), (2, 0), (3, 1), (2, 1))):
            acc = v(20 * rt + 4 * i, 4)
            c = "0" if ks == 0 else acc
            if not tr:
                p("v_mfma_f32_16x16x32_bf16 %s, %s, %s, %s" % (acc, xr, bfrag(t * 18 + ks), c))
            else:
                p("v_mfma_f32_16x16x32_bf16 %s, %s, %s, %s" % (acc, bfrag(t * 18 + ks), xr, c))
            if i == 0 and f >= 1 and f - 1 + NX < 36:
                g_ = f - 1 + NX
                p("ds_read_b128 %s, v205 offset:%d" % (v(XR + 4 * (g_ % NX), 4), g_ * 1024))
    ng = p.newlabel("NOG")
    p("s_cmp_lg_u32 %s, 0" % s(S_HD))
    p("s_cbranch_scc1 %s" % ng)
    GA = 64
    for f0 in range(0, 36, 6):
        for f in range(f0, f0 + 6):
            p("ds_read_b128 %s, v205 offset:%d" % (v(XR + 4 * (f % 6), 4), f * 1024))
        p("s_waitcnt lgkmcnt(0)")
        for f in range(f0, f0 + 6):
            rt, ks = divmod(f, 18)
            acc = v(GA + 4 * rt, 4)
            p("v_mfma_f32_16x16x32_bf16 %s, %s, %s, %s" % (acc, v(GF + 4 * ks, 4), v(XR + 4 * (f % 6), 4), "0" if ks == 0 else acc))
    p("v_lshlrev_b32 v72, 2, %s" % v(V_LANE))
    for rt in range(2):
        g = GA + 4 * rt
        p("v_mul_f32 %s, s36, %s" % (v(g), v(g)))
        p("v_exp_f32 %s, -%s" % (v(g), v(g)))
        p("v_add_f32 %s, 1.0, %s" % (v(g), v(g)))
        p("v_rcp_f32 %s, %s" % (v(g), v(g)))
        p("s_mov_b64 exec, 0xffff")
        p("buffer_store_dword %s, v72, %s, %s offen offset:%d sc1" % (v(g), s(SWS, 4), s(S_GO), rt * 64))
        p("s_mov_b64 exec, -1")
    p("s_add_u32 %s, %s, 128" % (s(S_GO), s(S_GO)))
    p.label(ng)
    KA, XA, VB, XB, PQ = 64, 68, 72, 76, 80
    T = 88
    for rt in range(2):
        b = 20 * rt
        p("v_cvt_pk_bf16_f32 %s, %s, %s" % (v(VB + 2 * rt), v(b + 4), v(b + 5)))
        p("v_cvt_pk_bf16_f32 %s, %s, %s" % (v(VB + 2 * rt + 1), v(b + 6), v(b + 7)))
        p("v_cvt_pk_bf16_f32 %s, %s, %s" % (v(XB + 2 * rt), v(b + 8), v(b + 9)))
        p("v_cvt_pk_bf16_f32 %s, %s, %s" % (v(XB + 2 * rt + 1), v(b + 10), v(b + 11)))
        for i, r in enumerate(list(range(0, 4)) + list(range(8, 18))):
            phi(p, b + r, b + r, T + (i & 3))
        p("v_cvt_pk_bf16_f32 %s, %s, %s" % (v(KA + 2 * rt), v(b), v(b + 1)))
        p("v_cvt_pk_bf16_f32 %s, %s, %s" % (v(KA + 2 * rt + 1), v(b + 2), v(b + 3)))
        p("v_cvt_pk_bf16_f32 %s, %s, %s" % (v(XA + 2 * rt), v(b + 8), v(b + 9)))
        p("v_cvt_pk_bf16_f32 %s, %s, %s" % (v(XA + 2 * rt + 1), v(b + 10), v(b + 11)))
        p("v_cvt_pk_bf16_f32 %s, %s, %s" % (v(PQ + 2 * rt), v(b + 12), v(b + 13)))
        p("v_cvt_pk_bf16_f32 %s, %s, %s" % (v(PQ + 2 * rt + 1), v(b + 14), v(b + 15)))
        p("v_cvt_pk_bf16_f32 %s, %s, %s" % (v(T), v(b + 16), v(b + 17)))
        p("v_cndmask_b32 %s, 0, %s, s[40:41]" % (v(PQ + 4 + rt), v(T)))
    for dp, A_ in enumerate((KA, XA)):
        for E, B_ in enumerate((VB, XB, ONE)):
            acc = v(KV + 4 * (3 * dp + E), 4)
            p("v_mfma_f32_16x16x32_bf16 %s, %s, %s, %s" % (acc, v(A_, 4), v(B_, 4), acc))
    p("buffer_store_dwordx4 %s, %s, %s, %s offen" % (v(PQ, 4), v(V_L16), s(SWS, 4), s(S_PQ)))
    p("buffer_store_dwordx2 %s, %s, %s, %s offen offset:1024" % (v(PQ + 4, 2), v(V_L16), s(SWS, 4), s(S_PQ)))
    p("s_add_u32 %s, %s, 2048" % (s(S_PQ), s(S_PQ)))
    p("s_add_u32 %s, %s, 1" % (s(S_IT), s(S_IT)))
    p("s_cmp_lt_u32 %s, 16" % s(S_IT))
    p("s_cbranch_scc1 %s" % top)
    p("s_lshl_b32 %s, %s, 2" % (s(S_T0), s(S_HD)))
    p("s_mul_i32 %s, %s, 6144" % (s(S_OC), s(S_T0)))
    p("s_add_u32 %s, %s, 0x%x" % (s(S_OC), s(S_OC), OFF_KV))
    p("s_mul_i32 %s, %s, 6144" % (s(S_T0), s(S_Q)))
    p("s_add_u32 %s, %s, %s" % (s(S_T0), s(S_T0), s(S_OC)))
    p("s_add_u32 %s, %s, 3072" % (s(S_T1), s(S_T0)))
    for t in range(6):
        p("buffer_store_dwordx4 %s, %s, %s, %s offen offset:%d sc1" % (v(KV + 4 * t, 4), v(V_L16), s(SWS, 4), s((S_T0, S_T1)[t // 3]), (t % 3) * 1024))
    p("s_waitcnt vmcnt(0)")
    p("s_barrier")
    p("v_mov_b32 v204, 1")
    p("s_mov_b64 exec, 1")
    p("buffer_store_dword v204, v203, %s, %s offen sc1" % (s(SWS, 4), s(S_FLAG)))
    p("s_mov_b64 exec, -1")
    p("v_lshlrev_b32 v1, 3, %s" % v(V_L16))
    p("s_and_b32 %s, %s, 0xfffffe00" % (s(S_T0), s(S_FLAG)))
    poll_flags(p, 1, S_T0, 4, 1, 2)
    p("v_and_b32 v1, 0xf0, %s" % v(V_L16))
    for q in range(4):
        p("s_add_u32 %s, %s, %d" % (s(S_T0), s(S_OC), q * 6144))
        p("s_add_u32 %s, %s, %d" % (s(S_T1), s(S_OC), q * 6144 + 3072))
        for t in range(6):
            p("buffer_load_dwordx4 %s, %s, %s, %s offen offset:%d sc1" % (v(8 + 24 * q + 4 * t, 4), v(V_L16) if t < 3 else "v1", s(SWS, 4), s((S_T0, S_T1)[t // 3]), (t % 3) * 1024))
    p("s_waitcnt vmcnt(0)")
    AK_ = 104
    for r in range(24):
        p("v_add_f32 %s, %s, %s" % (v(8 + r), v(8 + r), v(32 + r)))
        p("v_add_f32 %s, %s, %s" % (v(56 + r), v(56 + r), v(80 + r)))
        p("v_add_f32 %s, %s, %s" % (v(8 + r), v(8 + r), v(56 + r)))
    for t in range(6):
        p("v_cvt_pk_bf16_f32 %s, %s, %s" % (v(AK_ + 2 * t), v(8 + 4 * t), v(9 + 4 * t)))
        p("v_cvt_pk_bf16_f32 %s, %s, %s" % (v(AK_ + 2 * t + 1), v(10 + 4 * t), v(11 + 4 * t)))
    p("s_sub_u32 %s, %s, 32768" % (s(S_PQ), s(S_PQ)))
    p("s_mul_i32 %s, %s, %d" % (s(S_OC), s(S_Q), 32 * 146 * 1024))
    p("s_add_u32 %s, %s, 0x%x" % (s(S_OC), s(S_OC), OFF_OC))
    p("s_lshr_b32 %s, %s, 1" % (s(S_T0), s(S_HD)))
    p("s_lshl_b32 %s, %s, 10" % (s(S_T0), s(S_T0)))
    p("s_and_b32 %s, %s, 1" % (s(S_T1), s(S_HD)))
    p("s_lshl_b32 %s, %s, 3" % (s(S_T1), s(S_T1)))
    p("s_add_u32 s42, %s, %s" % (s(S_T0), s(S_T1)))
    p("s_add_u32 s42, s42, %d" % (128 * 1024))
    p("s_add_u32 s42, s42, %s" % s(S_OC))
    p("s_lshr_b32 %s, %s, 2" % (s(S_T0), s(S_HD)))
    p("s_lshl_b32 %s, %s, 8" % (s(S_T0), s(S_T0)))
    p("s_and_b32 %s, %s, 3" % (s(S_T1), s(S_HD)))
    p("s_lshl_b32 %s, %s, 2" % (s(S_T1), s(S_T1)))
    p("s_add_u32 s43, %s, %s" % (s(S_T0), s(S_T1)))
    p("s_add_u32 s43, s43, %d" % (144 * 1024))
    p("s_add_u32 s43, s43, %s" % s(S_OC))
    p("v_mov_b32 v9, 0")
    p("v_mov_b32 v11, 0")
    p("s_mov_b32 %s, 0" % s(S_IT))
    top = p.newlabel("B2L")
    p.label(top)
    p("buffer_load_dwordx4 v[4:7], %s, %s, %s offen sc1" % (v(V_L16), s(SWS, 4), s(S_PQ)))
    p("buffer_load_dwordx2 v[12:13], %s, %s, %s offen offset:1024 sc1" % (v(V_L16), s(SWS, 4), s(S_PQ)))
    p("s_add_u32 %s, %s, 2048" % (s(S_PQ), s(S_PQ)))
    p("s_waitcnt vmcnt(0)")
    p("v_mov_b32 v8, v12")
    p("v_mov_b32 v10, v13")
    for rt in range(2):
        for E in range(3):
            acc = v(16 + 12 * rt + 4 * E, 4)
            p("v_mfma_f32_16x16x16_bf16 %s, %s, %s, 0" % (acc, v(AK_ + 2 * E, 2), v(4 + 2 * rt, 2)))
            p("v_mfma_f32_16x16x16_bf16 %s, %s, %s, %s" % (acc, v(AK_ + 2 * (3 + E), 2), v(8 + 2 * rt, 2), acc))
    for rt in range(2):
        b = 16 + 12 * rt
        p("v_add_f32 %s, 0x%x, %s" % (v(b + 8), EPS6, v(b + 8)))
        p("v_rcp_f32 %s, %s" % (v(b + 8), v(b + 8)))
        for r in (0, 1, 2, 3, 6, 7):
            p("v_mul_f32 %s, %s, %s" % (v(b + r), v(b + r), v(b + 8)))
        p("v_cvt_pk_bf16_f32 %s, %s, %s" % (v(b), v(b), v(b + 1)))
        p("v_cvt_pk_bf16_f32 %s, %s, %s" % (v(b + 1), v(b + 2), v(b + 3)))
        p("v_cvt_pk_bf16_f32 %s, %s, %s" % (v(b + 2), v(b + 6), v(b + 7)))
        p("buffer_store_dwordx2 %s, %s, %s, s42 offen sc1" % (v(b, 2), v(V_L16), s(SWS, 4)))
        p("s_mov_b64 exec, 0xffff")
        p("buffer_store_dword %s, %s, %s, s43 offen sc1" % (v(b + 2), v(V_L16), s(SWS, 4)))
        p("s_mov_b64 exec, -1")
        p("s_add_u32 s42, s42, %d" % (146 * 1024))
        p("s_add_u32 s43, s43, %d" % (146 * 1024))
    p("s_add_u32 %s, %s, 1" % (s(S_IT), s(S_IT)))
    p("s_cmp_lt_u32 %s, 16" % s(S_IT))
    p("s_cbranch_scc1 %s" % top)
    p("s_waitcnt vmcnt(0)")
    p("s_barrier")
    p("s_add_u32 %s, %s, %d" % (s(S_FLAG), s(S_FLAG), F_B2 - F_KV))
    p("s_mov_b64 exec, 1")
    p("buffer_store_dword v204, v203, %s, %s offen sc1" % (s(SWS, 4), s(S_FLAG)))
    p("s_mov_b64 exec, -1")
    p("s_branch %s" % done_label)


def gen_attn(p, done_label, NP):
    S_U, S_SEG, S_HD, S_BASE = S_A, S_B, S_C_, S_D
    S_T0, S_T1, S_T2 = S_H_, S_I, S_J
    p.c("---- x-row attention role")
    p("s_mov_b32 s36, 0x%x" % f2u(DH ** -0.5 * math.log2(math.e)))
    p("s_and_b32 %s, %s, 7" % (s(S_HD), s(S_U)))
    p("s_lshl_b32 %s, %s, 2" % (s(S_HD), s(S_HD)))
    p("s_add_u32 %s, %s, %s" % (s(S_HD), s(S_HD), s(S_WV)))
    p("s_lshr_b32 %s, %s, 3" % (s(S_SEG), s(S_U)))
    QF, KF, VF, KM, VM, SC, OA = 0, 32, 64, 96, 112, 128, 208
    p("v_and_b32 v1, 15, %s" % v(V_LANE))
    p("v_lshrrev_b32 v2, 4, %s" % v(V_LANE))
    p("v_lshlrev_b32 v2, 2, v2")
    for r in range(4):
        p("v_add_u32 v3, %d, v2" % r)
        p("v_cmp_gt_u32 %s, v3, v1" % s(40 + 2 * r, 2))
    p("v_mov_b32 v203, 0")
    p("v_lshrrev_b32 v204, 1, %s" % v(V_L16))
    p("s_lshl_b32 %s, %s, 9" % (s(S_T0), s(S_HD)))
    p("s_lshr_b32 %s, %s, 1" % (s(S_T1), s(S_HD)))
    p("s_lshl_b32 %s, %s, 9" % (s(S_T1), s(S_T1)))
    p("s_add_u32 %s, %s, %d" % (s(S_T1), s(S_T1), 128 * 128))
    p("v_mov_b32 v205, %s" % s(S_T0))
    p("v_writelane_b32 v205, %s, 1" % s(S_T1))
    p("v_mov_b32 v206, 0xff800000")
    top = p.newlabel("AL")
    p.label(top)
    p("s_lshr_b32 %s, %s, 4" % (s(S_T0), s(S_SEG)))
    p("s_lshl_b32 %s, %s, 7" % (s(S_T0), s(S_T0)))
    p("s_add_u32 %s, %s, 0x%x" % (s(S_T0), s(S_T0), OFF_FLAG + F_G1))
    p("s_and_b32 %s, %s, 15" % (s(S_T1), s(S_SEG)))
    p("s_add_u32 %s, %s, 1" % (s(S_T1), s(S_T1)))
    poll_flags(p, 205, S_T0, 2, None, 207, cmp_sgpr=S_T1)
    p("s_lshl_b32 %s, %s, 5" % (s(S_BASE), s(S_SEG)))
    p("s_add_u32 %s, %s, %s" % (s(S_BASE), s(S_BASE), s(S_HD)))
    p("s_lshl_b32 %s, %s, 13" % (s(S_T2), s(S_BASE)))
    for reg, off in ((QF, OFF_QX), (KF, OFF_KX), (VF, OFF_VX)):
        p("s_add_u32 %s, %s, 0x%x" % (s(S_T0), s(S_T2), off))
        p("s_add_u32 %s, %s, 0x%x" % (s(S_T1), s(S_T2), off + 4096))
        for i in range(8):
            p("buffer_load_dwordx4 %s, %s, %s, %s offen offset:%d sc1" % (v(reg + 4 * i, 4), v(V_L16), s(SWS, 4), s((S_T0, S_T1)[i // 4]), (i % 4) * 1024))
    p("s_waitcnt vmcnt(8)")
    for qt, kt in ((0, 0), (1, 0), (1, 1)):
        acc = v(SC + 12 * qt + 4 * (1 + kt), 4)
        for ks in range(4):
            p("v_mfma_f32_16x16x32_bf16 %s, %s, %s, %s" % (acc, v(KF + 16 * kt + 4 * ks, 4), v(QF + 16 * qt + 4 * ks, 4), "0" if ks == 0 else acc))
    p("s_lshl_b32 %s, %s, 7" % (s(S_T0), s(S_HD)))
    p("s_add_u32 %s, %s, 0x%x" % (s(S_T0), s(S_T0), OFF_FLAG + F_TEAM))
    p("s_add_u32 %s, %s, 1" % (s(S_T1), s(S_SEG)))
    poll_flags(p, 203, S_T0, 1, None, 207, cmp_sgpr=S_T1)
    p("s_lshl_b32 %s, %s, 12" % (s(S_T2), s(S_BASE)))
    p("s_add_u32 %s, %s, 0x%x" % (s(S_T0), s(S_T2), OFF_KM))
    p("s_add_u32 %s, %s, 0x%x" % (s(S_T1), s(S_T2), OFF_VM))
    for i in range(4):
        p("buffer_load_dwordx4 %s, %s, %s, %s offen offset:%d sc1" % (v(KM + 4 * i, 4), v(V_L16), s(SWS, 4), s(S_T0), i * 1024))
    for i in range(8):
        p("buffer_load_dwordx2 %s, v204, %s, %s offen offset:%d sc1" % (v(VM + 2 * i, 2), s(SWS, 4), s(S_T1), i * 512))
    for qt in range(2):
        for r in range(4):
            d = SC + 12 * qt + 4 * (1 + qt) + r
            p("v_cndmask_b32 %s, %s, v206, %s" % (v(d), v(d), s(40 + 2 * r, 2)))
    p("s_waitcnt vmcnt(8)")
    for qt in range(2):
        acc = v(SC + 12 * qt, 4)
        for ks in range(4):
            p("v_mfma_f32_16x16x32_bf16 %s, %s, %s, %s" % (acc, v(KM + 4 * ks, 4), v(QF + 16 * qt + 4 * ks, 4), "0" if ks == 0 else acc))
    PXr, PMr, RI = 152, 160, 164
    T0, T1 = 166, 167
    for qt in range(2):
        b = SC + 12 * qt
        n = 8 + 4 * qt
        M = T0
        p("v_max3_f32 %s, %s, %s, %s" % (v(M), v(b), v(b + 1), v(b + 2)))
        k = 3
        while k < n:
            if k + 1 < n:
                p("v_max3_f32 %s, %s, %s, %s" % (v(M), v(M), v(b + k), v(b + k + 1)))
                k += 2
            else:
                p("v_max_f32 %s, %s, %s" % (v(M), v(M), v(b + k)))
                k += 1
        for sw in ("16", "32"):
            p("v_mov_b32 %s, %s" % (v(T1), v(M)))
            p("v_permlane%s_swap_b32 %s, %s" % (sw, v(M), v(T1)))
            p("v_max_f32 %s, %s, %s" % (v(M), v(M), v(T1)))
        p("v_mul_f32 %s, s36, %s" % (v(M), v(M)))
        for r in range(n):
            p("v_fma_f32 %s, %s, s36, -%s" % (v(b + r), v(b + r), v(M)))
        for r in range(n):
            p("v_exp_f32 %s, %s" % (v(b + r), v(b + r)))
        L = RI + qt
        p("v_add_f32 %s, %s, %s" % (v(L), v(b), v(b + 1)))
        p("v_add_f32 %s, %s, %s" % (v(L), v(L), v(b + 2)))
        p("v_add_f32 %s, %s, %s" % (v(L), v(L), v(b + 3)))
        p("v_mul_f32 %s, 0.5, %s" % (v(L), v(L)))
        for r in range(4, n):
            p("v_add_f32 %s, %s, %s" % (v(L), v(L), v(b + r)))
        for sw in ("16", "32"):
            p("v_mov_b32 %s, %s" % (v(T1), v(L)))
            p("v_permlane%s_swap_b32 %s, %s" % (sw, v(L), v(T1)))
            p("v_add_f32 %s, %s, %s" % (v(L), v(L), v(T1)))
        p("v_rcp_f32 %s, %s" % (v(L), v(L)))
        p("v_cvt_pk_bf16_f32 %s, %s, %s" % (v(PMr + 2 * qt), v(b), v(b + 1)))
        p("v_cvt_pk_bf16_f32 %s, %s, %s" % (v(PMr + 2 * qt + 1), v(b + 2), v(b + 3)))
        for i in range(4):
            if 4 + 2 * i < n:
                p("v_cvt_pk_bf16_f32 %s, %s, %s" % (v(PXr + 4 * qt + i), v(b + 4 + 2 * i), v(b + 5 + 2 * i)))
            else:
                p("v_mov_b32 %s, 0" % v(PXr + 4 * qt + i))
    p("s_waitcnt vmcnt(0)")
    p("s_mul_i32 %s, %s, %d" % (s(S_T0), s(S_SEG), 2 * 146 * 1024))
    p("s_lshl_b32 %s, %s, 12" % (s(S_T1), s(S_HD)))
    p("s_add_u32 %s, %s, %s" % (s(S_T0), s(S_T0), s(S_T1)))
    p("s_add_u32 %s, %s, 0x%x" % (s(S_T0), s(S_T0), OFF_OC))
    p("s_add_u32 %s, %s, %d" % (s(S_T1), s(S_T0), 146 * 1024))
    for qt in range(2):
        ob = (0, 32)[qt]
        for et in range(8):
            acc = v(ob + 4 * et, 4)
            p("v_mfma_f32_16x16x32_bf16 %s, %s, %s, 0" % (acc, v(VF + 4 * et, 4), v(PXr + 4 * qt, 4)))
        for et in range(8):
            acc = v(ob + 4 * et, 4)
            p("v_mfma_f32_16x16x16_bf16 %s, %s, %s, %s" % (acc, v(VM + 2 * et, 2), v(PMr + 2 * qt, 2), acc))
    for qt in range(2):
        ob = (0, 32)[qt]
        for tp in range(4):
            b = ob + 8 * tp
            for r in range(8):
                p("v_mul_f32 %s, %s, %s" % (v(b + r), v(b + r), v(RI + qt)))
            d = OA + 16 * qt + 4 * tp
            for i in range(4):
                p("v_cvt_pk_bf16_f32 %s, %s, %s" % (v(d + i), v(b + 2 * i), v(b + 2 * i + 1)))
            p("buffer_store_dwordx4 %s, %s, %s, %s offen offset:%d sc1" % (v(d, 4), v(V_L16), s(SWS, 4), s((S_T0, S_T1)[qt]), tp * 1024))
    p("s_lshl_b32 %s, %s, 2" % (s(S_T0), s(S_BASE)))
    p("s_add_u32 %s, %s, 0x%x" % (s(S_T0), s(S_T0), OFF_FLAG + F_O))
    p("v_mov_b32 v207, 1")
    p("s_waitcnt vmcnt(0)")
    p("s_mov_b64 exec, 1")
    p("buffer_store_dword v207, v203, %s, %s offen sc1" % (s(SWS, 4), s(S_T0)))
    p("s_mov_b64 exec, -1")
    p("s_add_u32 %s, %s, %d" % (s(S_SEG), s(S_SEG), NP))
    p("s_cmp_lt_u32 %s, 64" % s(S_SEG))
    p("s_cbranch_scc1 %s" % top)
    p("s_branch %s" % done_label)


def gen_final(p, done_label, NG):
    S_U, S_SEG, S_NG, S_AB, S_BB, S_XB, S_PARW = S_A, S_B, S_C_, S_D, S_E, S_F, S_G
    S_T0, S_T1, S_T2 = S_H_, S_I, S_J
    p.c("---- final GEMM role")
    srd(p, SA, A_WO, H * DH * DM * 2)
    srd(p, SB, B_WO, DM * DM * 2)
    srd(p, SX, D_OUT, S * DM * 2)
    p("s_mov_b32 %s, 0" % s(S_SEG))
    p("s_mov_b32 %s, %s" % (s(S_NG), s(S_U)))
    for _ in range(NG - 1):
        p("s_cmp_ge_u32 %s, 18" % s(S_NG))
        p("s_cselect_b32 %s, 18, 0" % s(S_T0))
        p("s_cselect_b32 %s, 1, 0" % s(S_T1))
        p("s_sub_u32 %s, %s, %s" % (s(S_NG), s(S_NG), s(S_T0)))
        p("s_add_u32 %s, %s, %s" % (s(S_SEG), s(S_SEG), s(S_T1)))
    lane_fields(p, 1, 2, 3, 4)
    p("v_lshrrev_b32 v5, 2, %s" % v(V_LANE))
    p("v_mul_u32_u24 v6, 1152, v5")
    p("v_lshl_add_u32 v8, v4, 4, v6")
    p("s_lshl_b32 %s, %s, 6" % (s(S_T0), s(S_NG)))
    p("v_add_u32 v8, %s, v8" % s(S_T0))
    p("v_lshrrev_b32 v6, 1, v5")
    p("v_mul_u32_u24 v6, 18, v6")
    p("v_and_b32 v7, 1, v5")
    p("v_add3_u32 v6, v6, v7, 16")
    p("v_mul_u32_u24 v6, 1152, v6")
    p("v_lshl_add_u32 v9, v4, 4, v6")
    p("v_add_u32 v9, %s, v9" % s(S_T0))
    p("v_lshl_add_u32 v5, v2, 2, v3")
    p("v_lshlrev_b32 v5, 6, v5")
    p("v_lshl_add_u32 v5, v4, 3, v5")
    p("s_mul_i32 %s, %s, 36864" % (s(S_K), s(S_WV)))
    p("v_add_u32 v10, %s, v5" % s(S_K))
    p("v_lshl_add_u32 v5, v2, 3, v3")
    p("v_lshlrev_b32 v5, 6, v5")
    p("v_lshl_add_u32 v5, v4, 3, v5")
    p("v_add_u32 v11, %s, v5" % s(S_K))
    p("s_mul_i32 %s, %s, %d" % (s(S_L), s(S_WV), 1024 * 1152))
    p("s_waitcnt lgkmcnt(0)")

    SL = 9216

    def issue(c):
        slot = c % 4
        if c < 8:
            for i in range(8):
                p("s_add_u32 m0, %s, %d" % (s(S_K), slot * SL + i * 1024))
                p("s_add_u32 %s, %s, %d" % (s(S_T0), s(S_L), (128 * c + 16 * i) * 1152))
                p("buffer_load_dwordx4 v8, %s, %s offen lds" % (s(SA, 4), s(S_T0)))
            return 8
        if c == 8:
            p("s_mul_i32 %s, %s, %d" % (s(S_T1), s(S_WV), 144 * 1152))
            for i in range(9):
                p("s_add_u32 m0, %s, %d" % (s(S_K), slot * SL + i * 1024))
                p("s_add_u32 %s, %s, %d" % (s(S_T0), s(S_T1), 16 * i * 1152))
                p("buffer_load_dwordx4 v8, %s, %s offen lds" % (s(SB, 4), s(S_T0)))
            return 9
        p("s_mul_i32 %s, %s, %d" % (s(S_T1), s(S_WV), 16 * 18 * 1152))
        for i in range(2):
            p("s_add_u32 m0, %s, %d" % (s(S_K), slot * SL + i * 1024))
            p("s_add_u32 %s, %s, %d" % (s(S_T0), s(S_T1), 8 * 18 * 1152 * i))
            p("buffer_load_dwordx4 v9, %s, %s offen lds" % (s(SB, 4), s(S_T0)))
        return 2

    cnt = []
    for c in range(4):
        cnt.append(issue(c))
    for c in range(10):
        slot = c % 4
        p("s_waitcnt vmcnt(%d)" % sum(cnt[c + 1:]))
        if c < 8:
            for tp in range(4):
                for nt in range(2):
                    for hf in range(2):
                        p("ds_read_b64_tr_b16 %s, v10 offset:%d" % (bfrag((4 * c + tp) * 2 + nt, 2 * hf, 2), slot * SL + (32 * tp + 16 * hf) * 64 + nt * 32))
        elif c == 8:
            for i in range(4):
                for nt in range(2):
                    for hf in range(2):
                        p("ds_read_b64_tr_b16 %s, v10 offset:%d" % (bfrag((32 + i) * 2 + nt, 2 * hf, 2), slot * SL + (36 * i + 18 * hf) * 64 + nt * 32))
        else:
            for nt in range(2):
                for hf in range(2):
                    p("ds_read_b64_tr_b16 %s, v11 offset:%d" % (bfrag(36 * 2 + nt, 2 * hf, 2), slot * SL + 4 * hf * 64 + nt * 32))
        if len(cnt) < 10:
            p("s_waitcnt lgkmcnt(0)")
            cnt.append(issue(len(cnt)))
    p("s_waitcnt lgkmcnt(0)")
    p("s_barrier")
    p("v_lshlrev_b32 v1, 3, %s" % v(V_L16))
    p("s_mov_b32 %s, 0x%x" % (s(S_T0), OFF_FLAG + F_B2))
    poll_flags(p, 1, S_T0, 32, 1, 2)
    p("v_lshlrev_b32 v203, 2, %s" % v(V_LANE))
    p("v_and_b32 v204, 60, v203")
    p("v_and_b32 v1, 15, %s" % v(V_LANE))
    p("v_mul_u32_u24 v1, 1152, v1")
    p("v_lshrrev_b32 v2, 4, %s" % v(V_LANE))
    p("v_lshl_add_u32 v205, v2, 3, v1")
    p("s_lshr_b32 %s, %s, 1" % (s(S_T0), s(S_WV)))
    p("s_mul_i32 %s, %s, %d" % (s(S_T0), s(S_T0), 16 * 1152))
    p("s_and_b32 %s, %s, 1" % (s(S_T1), s(S_WV)))
    p("s_lshl_b32 %s, %s, 5" % (s(S_T1), s(S_T1)))
    p("s_add_u32 %s, %s, %s" % (s(S_T0), s(S_T0), s(S_T1)))
    p("s_lshl_b32 %s, %s, 6" % (s(S_T1), s(S_NG)))
    p("s_add_u32 %s, %s, %s" % (s(S_T0), s(S_T0), s(S_T1)))
    p("v_add_u32 v205, %s, v205" % s(S_T0))
    p("s_lshl_b32 %s, %s, 12" % (s(S_T0), s(S_WV)))
    p("v_add_u32 v206, %s, %s" % (s(S_T0), v(V_L16)))
    p("s_lshl_b32 %s, %s, 10" % (s(S_T0), s(S_WV)))
    p("v_add_u32 v207, %s, %s" % (s(S_T0), v(V_L16)))
    RING = 40
    NR = 40
    ACA, ACB, GV = 0, 16, 32
    top = p.newlabel("FL")
    p.label(top)
    p("s_mul_i32 %s, %s, %d" % (s(S_T0), s(S_SEG), 2 * 146 * 1024))
    p("s_add_u32 %s, %s, 0x%x" % (s(S_T0), s(S_T0), OFF_OC))
    p("s_lshl_b32 %s, %s, 15" % (s(S_T1), s(S_WV)))
    p("s_add_u32 %s, %s, %s" % (s(S_AB), s(S_T0), s(S_T1)))
    p("s_lshl_b32 %s, %s, 12" % (s(S_T1), s(S_WV)))
    p("s_add_u32 %s, %s, %s" % (s(S_BB), s(S_T0), s(S_T1)))
    p("s_add_u32 %s, %s, %d" % (s(S_BB), s(S_BB), 128 * 1024))
    p("s_and_b32 %s, %s, 1" % (s(S_T1), s(S_WV)))
    p("s_lshl_b32 %s, %s, 10" % (s(S_T1), s(S_T1)))
    p("s_add_u32 %s, %s, %s" % (s(S_XB), s(S_T0), s(S_T1)))
    p("s_add_u32 %s, %s, %d" % (s(S_XB), s(S_XB), 144 * 1024))
    for rt in range(2):
        if rt:
            p("s_add_u32 %s, %s, %d" % (s(S_BB), s(S_BB), 146 * 1024))
            p("s_add_u32 %s, %s, %d" % (s(S_XB), s(S_XB), 146 * 1024))
        for i in range(4):
            p("buffer_load_dwordx4 %s, %s, %s, %s offen offset:%d sc1" % (v(RING + 4 * (5 * rt + i), 4), v(V_L16), s(SWS, 4), s(S_BB), i * 1024))
        p("buffer_load_dwordx4 %s, %s, %s, %s offen sc1" % (v(RING + 4 * (5 * rt + 4), 4), v(V_L16), s(SWS, 4), s(S_XB)))
    p("s_lshl_b32 %s, %s, 7" % (s(S_T0), s(S_SEG)))
    p("s_add_u32 %s, %s, 0x%x" % (s(S_T1), s(S_T0), OFF_G))
    p("buffer_load_dword %s, v204, %s, %s offen sc1" % (v(GV), s(SWS, 4), s(S_T1)))
    p("buffer_load_dword %s, v204, %s, %s offen offset:64 sc1" % (v(GV + 1), s(SWS, 4), s(S_T1)))
    p("s_waitcnt vmcnt(0)")
    for rt in range(2):
        for i in range(5):
            for nt in range(2):
                acc = v(ACB + 8 * rt + 4 * nt, 4)
                p("v_mfma_f32_16x16x32_bf16 %s, %s, %s, %s" % (acc, bfrag((32 + i) * 2 + nt), v(RING + 4 * (5 * rt + i), 4), "0" if i == 0 else acc))
    p("s_lshl_b32 %s, %s, 5" % (s(S_T1), s(S_WV)))
    p("s_add_u32 %s, %s, %s" % (s(S_T0), s(S_T0), s(S_T1)))
    p("s_add_u32 %s, %s, 0x%x" % (s(S_T0), s(S_T0), OFF_FLAG + F_O))
    poll_flags(p, 203, S_T0, 8, 1, 34)

    def aload(f):
        rt, ks = divmod(f, 32)
        if f % 4 == 0:
            p("s_add_u32 %s, %s, %d" % (s(S_T2), s(S_AB), rt * 146 * 1024 + ks * 1024))
        p("buffer_load_dwordx4 %s, %s, %s, %s offen offset:%d sc1" % (v(RING + 4 * (f % NR), 4), v(V_L16), s(SWS, 4), s(S_T2), (f % 4) * 1024))

    for f in range(NR):
        aload(f)
    for f in range(64):
        rt, ks = divmod(f, 32)
        p("s_waitcnt vmcnt(%d)" % (min(NR - 2, 63 - f) if f else NR - 1))
        for nt in range(2):
            acc = v(ACA + 8 * rt + 4 * nt, 4)
            p("v_mfma_f32_16x16x32_bf16 %s, %s, %s, %s" % (acc, bfrag(ks * 2 + nt), v(RING + 4 * (f % NR), 4), "0" if ks == 0 else acc))
            if nt == 0 and f >= 1 and f - 1 + NR < 64:
                aload(f - 1 + NR)
    for rt in range(2):
        for r in range(8):
            i = 8 * rt + r
            p("v_sub_f32 %s, %s, %s" % (v(ACA + i), v(ACA + i), v(ACB + i)))
            p("v_fma_f32 %s, %s, %s, %s" % (v(ACA + i), v(ACA + i), v(GV + rt), v(ACB + i)))
    for t in range(4):
        p("ds_write_b128 v206, %s offset:%d" % (v(ACA + 4 * t, 4), t * 1024))
    p("s_waitcnt lgkmcnt(0)")
    p("s_barrier")
    for ww in range(4):
        p("ds_read_b128 %s, v207 offset:%d" % (v(ACB + 4 * ww, 4), ww * 4096))
    p("v_xor_b32 v206, 16384, v206")
    p("v_xor_b32 v207, 16384, v207")
    p("s_mul_i32 %s, %s, %d" % (s(S_T0), s(S_SEG), 32 * 1152))
    p("s_waitcnt lgkmcnt(0)")
    for r in range(4):
        p("v_add_f32 %s, %s, %s" % (v(ACB + r), v(ACB + r), v(ACB + 4 + r)))
        p("v_add_f32 %s, %s, %s" % (v(ACB + 8 + r), v(ACB + 8 + r), v(ACB + 12 + r)))
        p("v_add_f32 %s, %s, %s" % (v(ACB + r), v(ACB + r), v(ACB + 8 + r)))
    p("v_cvt_pk_bf16_f32 v36, %s, %s" % (v(ACB), v(ACB + 1)))
    p("v_cvt_pk_bf16_f32 v37, %s, %s" % (v(ACB + 2), v(ACB + 3)))
    p("buffer_store_dwordx2 v[36:37], v205, %s, %s offen" % (s(SX, 4), s(S_T0)))
    p("s_add_u32 %s, %s, %d" % (s(S_SEG), s(S_SEG), NG))
    p("s_cmp_lt_u32 %s, 64" % s(S_SEG))
    p("s_cbranch_scc1 %s" % top)
    p("s_branch %s" % done_label)
```

```python
import sys
from asmlib import *
from layout import *
import rec
import worker as wk

kw = dict(a.split("=") for a in sys.argv[2:] if "=" in a)
kw = {k: (int(x) if x.isdigit() else x) for k, x in kw.items()}
NP = kw.pop("NP", 2)
NG = kw.pop("NG", 2)
NAME = "gated_mix__memory_aug_recurrent_mem_tr__linear_attn_block__prompt"

q = Prog()
NI = 64
q("s_cmp_ge_u32 s2, %d" % NI)
q("s_cbranch_scc1 I_DONE")
wk.srd(q, 4, D_WS, WS_BYTES)
q("s_lshl_b32 s3, s2, 12")
q("v_lshlrev_b32 v1, 4, v0")
q("v_add_u32 v1, s3, v1")
for r in range(4):
    q("v_mov_b32 v%d, 0x%x" % (4 + r, rec.SENT))
    q("v_mov_b32 v%d, 0" % (8 + r))
q("s_waitcnt lgkmcnt(0)")
for i in range(3):
    q("s_mov_b32 s8, 0x%x" % (OFF_PB + i * 0x40000))
    q("buffer_store_dwordx4 v[4:7], v1, s[4:7], s8 offen")
q("s_cmp_ge_u32 s2, 16")
q("s_cbranch_scc1 I_DONE")
q("s_mov_b32 s8, 0x%x" % OFF_MB)
q("buffer_store_dwordx4 v[4:7], v1, s[4:7], s8 offen")
q("s_mov_b32 s8, 0x%x" % OFF_FLAG)
q("buffer_store_dwordx4 v[8:11], v1, s[4:7], s8 offen")
q.label("I_DONE")
q("s_endpgm")

p = Prog()
p("s_cmp_ge_u32 s2, 256")
p("s_cbranch_scc1 REC_DONE")
p("s_load_dwordx2 s[12:13], s[0:1], %d" % (D_DBG * 8))
p("s_mov_b32 s14, 256")
p("s_mov_b32 s15, 0x20000")
p("s_getreg_b32 s3, hwreg(HW_REG_XCC_ID, 0, 3)")
p("v_lshrrev_b32 v1, 6, v0")
p("v_mov_b32 v2, 1")
p("v_readfirstlane_b32 s20, v1")
p("s_lshl_b32 s21, s3, 2")
p("v_mov_b32 v3, s21")
p("v_mov_b32 v4, 0")
p("s_mov_b32 s22, 2000000")
p("s_waitcnt lgkmcnt(0)")
p("s_cmp_lg_u32 s20, 0")
p("s_cbranch_scc1 ROLE_WAIT")
p("s_mov_b64 exec, 1")
p("buffer_atomic_add v2, v3, s[12:15], 0 offen sc0")
p("s_waitcnt vmcnt(0)")
p("v_readfirstlane_b32 s21, v2")
p("v_mov_b32 v2, 1")
p("buffer_atomic_add v2, v4, s[12:15], 0 offen offset:36")
p("s_cmp_lg_u32 s3, 0")
p("s_cbranch_scc1 ROLE_W")
p("s_cmp_lt_u32 s21, 32")
p("s_cbranch_scc1 ROLE_SET")
p.label("ROLE_W")
p("v_mov_b32 v5, 1")
p("buffer_atomic_add v5, v4, s[12:15], 0 offen offset:32 sc0")
p.label("ROLE_P")
p("buffer_load_dword v6, v4, s[12:15], 0 offen offset:36 sc1")
p("s_waitcnt vmcnt(0)")
p("buffer_load_dword v7, v4, s[12:15], 0 offen sc1")
p("s_waitcnt vmcnt(0)")
p("v_readfirstlane_b32 s23, v6")
p("v_readfirstlane_b32 s24, v7")
p("v_readfirstlane_b32 s25, v5")
p("s_sub_u32 s22, s22, 1")
p("s_cbranch_scc1 ROLE_GIVEUP")
p("s_cmp_lt_u32 s23, 256")
p("s_cbranch_scc1 ROLE_P")
p("s_min_u32 s24, s24, 32")
p("s_add_u32 s21, s24, s25")
p("s_branch ROLE_SET")
p.label("ROLE_GIVEUP")
p("s_mov_b32 s21, 1000")
p.label("ROLE_SET")
p("v_mov_b32 v2, s21")
p("ds_write_b32 v4, v2")
p("s_mov_b64 exec, -1")
p("s_waitcnt lgkmcnt(0)")
p.label("ROLE_WAIT")
p("s_barrier")
p("ds_read_b32 v2, v4")
p("s_waitcnt lgkmcnt(0)")
p("v_readfirstlane_b32 s21, v2")
p("s_barrier")
p("s_cmp_ge_u32 s21, 256")
p("s_cbranch_scc1 REC_DONE")
p("s_cmp_ge_u32 s21, 32")
p("s_cbranch_scc1 WORKER")
p("s_mov_b32 %s, s21" % s(rec.S_H))
rec.gen_rec(p, census=1, **kw)
p.label("WORKER")
p("s_sub_u32 %s, s21, 32" % s(wk.S_RANK))
wk.worker_setup(p)
p("s_cmp_ge_u32 %s, 192" % s(wk.S_RANK))
p("s_cbranch_scc1 W_BB")
wk.gen_gemm1(p, "W_NEXT")
p.label("W_BB")
wk.gen_bbranch(p, "REC_DONE")
p.label("W_NEXT")
p("s_cmp_lt_u32 %s, %d" % (s(wk.S_RANK), 18 * NG))
p("s_cbranch_scc1 W_FIN")
p("s_sub_u32 %s, %s, 128" % (s(wk.S_A), s(wk.S_RANK)))
p("s_cmp_lt_u32 %s, %d" % (s(wk.S_A), 8 * NP))
p("s_cbranch_scc0 REC_DONE")
wk.gen_attn(p, "REC_DONE", NP)
p.label("W_FIN")
p("s_mov_b32 %s, %s" % (s(wk.S_A), s(wk.S_RANK)))
wk.gen_final(p, "REC_DONE", NG)
p.label("REC_FAIL")
p.label("W_FAIL")
p("s_load_dwordx2 s[12:13], s[0:1], %d" % (D_DBG * 8))
p("s_mov_b32 s14, 256")
p("s_mov_b32 s15, 0x20000")
p("v_mov_b32 v0, 0")
p("v_mov_b32 v1, s2")
p("v_add_u32 v1, 0x1000, v1")
p("s_waitcnt lgkmcnt(0)")
p("buffer_store_dword v1, v0, s[12:15], 0 offen offset:64")
p.label("REC_DONE")
p("s_endpgm")
l0 = fix_hazards(q.lines)
l1 = fix_hazards(p.lines, verbose=True)
txt = build_file([("init_kernel", NI, 256, 0), ("main_kernel", 256, 256, 163840)],
                 [("init_kernel", l0, 16, 16, 16), ("main_kernel", l1, 512, 102, 256)])
open(sys.argv[1], "w").write(txt)
print(len(l1), "lines", len(txt), "bytes")
```

```python
S = 2048
DM = 576
H = 32
DH = 128
NSEG = 64

OFF_PB = 0x0
PB_PAR = 32 * 9216
OFF_MB = 0x100000
OFF_HIST = 0x110000
OFF_FLAG = 0x200000
OFF_STAMP = 0x300000
OFF_KX = 0x1000000
OFF_VX = 0x2000000
OFF_QX = 0x3000000
OFF_KM = 0x4000000
OFF_VM = 0x4800000
OFF_OC = 0x5000000
OFF_WT = 0x6400000
OFF_PQ = 0x6A00000
OFF_KV = 0x7000000
WS_BYTES = 268435456

A_X, A_MEM0, A_WQ, A_WK, A_WV, A_WO, A_SEG, B_X, B_WQKV, B_WO, GATE, D_OUT, D_DBG, D_WS = range(14)

F_G1 = 0x0
F_TEAM = 0x8000
F_O = 0xA000
F_KV = 0x8000
F_B2 = 0xC000
FLAG_BYTES = 0x10000
OFF_G = 0x280000
OFF_PB2 = 0x800000
PB_STR = 0x80000
F_ROLE = 0xE000
```

```python
import math
import struct
from asmlib import *
from layout import *

L_MEM = 0
L_Q = 9216
L_O = L_Q
L_K = 11264
L_PX = L_K
L_PM = L_K + 512
L_RI = L_K + 1024
L_SX = 13312
L_WL = 16384
LDS_BYTES = 163840

MA = 0
AQ = 36
AK = 44
KXF = 52
QF = 60
VXF = 52
STG0 = 64
IDX = 72
L16 = 73
TRA = 74
QWA = 75
SXR = 76
T0, T1, T2 = 77, 78, 79

SWS = 4
SW = 8
S_H, S_W, S_STEP, S_BUD = 16, 17, 18, 19
S_MB, S_M0, S_KX0, S_KX1, S_VX, S_KM, S_VM, S_PB = 20, 21, 22, 23, 24, 25, 26, 27
S_U, S_RL, S_PUB = 28, 29, 30
S_T0 = 31
S_PUBM = 32
S_PART = 34
S_C = 36
S_W512 = 37
S_T1, S_T2, S_T3 = 38, 39, 40
S_STAMP = 42
S_STO = 44
S_SAFE = 45
S_PAR = 46
SENT = 0xFFBFFFBF
S_SENT = 47
S_HIST = 41
S_TF, S_KVF, S_KVC = 42, 43, 45
S_C2, S_Q2, S_NC = 92, 94, 91
S_PH, S_PMB, S_H288 = 90, 100, 101


def f2u(x):
    return struct.unpack("<I", struct.pack("<f", x))[0]


def wt_reg(mat, j, tt, r, n):
    i = (mat * 9 + j) * 2 + tt
    if i < 32:
        return a(8 * i + r, n)
    return v(80 + 8 * (i - 32) + r, n)


def wt(mat, j, tt):
    return wt_reg(mat, j, tt, 0, 8)


def slot_addr(t, w):
    if t < 16:
        return L_WL + t * 8192 + w * 2048
    return L_WL + 131072 + (t - 16) * 4096 + (w - 2) * 2048


def lref(addr):
    b, off = divmod(addr, 65536)
    if off > 65536 - 2048:
        raise ValueError("tile straddles base")
    return v([L16, T1, T2][b]), off


def smf(acc, A, B):
    return "v_smfmac_f32_16x16x64_bf16 %s, %s, %s, %s" % (v(acc, 4), v(A, 4), B, v(IDX))


def gen_rec(p, nsteps=63, stamps=False, st_flags="", EXP="sc1", NQKL=4, DEP=1, FD0=0, FD1=0, C1=6, RDEP=1,
            R0=0, R1=0, R2=0, Q0=0, Q1=0, Q2=0, hist=1, RT=0, flags=1, census=0, TS=0, KVS=0x40000, EXS=0x20000, PFW=2, NOEXP=0, B3=1, V0=1, V1=0, V2=0, F2E=1):
    VW = [x if x < 9 else -1 for x in (V0, V1, V2)]
    RD0 = [R0, R1, R2]
    RD1 = [Q0, Q1, Q2]
    ST = st_flags

    NSTAMP = 15

    def stamp(k):
        if not stamps or k >= 15:
            return
        p("%s %s" % ("s_memrealtime" if RT else "s_memtime", s(60 + 2 * k, 2)))

    def flush_stamps():
        if not stamps:
            return
        p("s_waitcnt lgkmcnt(0)")
        for k in range(NSTAMP):
            p("v_writelane_b32 %s, %s, %d" % (v(T2), s(60 + 2 * k), k))
        p("v_lshrrev_b32 %s, 2, %s" % (v(T1), v(L16)))
        p("s_mov_b64 exec, 0xfffff")
        p("buffer_store_dword %s, %s, %s, %s offen" % (v(T2), v(T1), s(SWS, 4), s(S_STO)))
        p("s_mov_b64 exec, -1")

    p.c("---- recurrence setup")
    p("s_load_dwordx2 %s, s[0:1], %d" % (s(SWS, 2), D_WS * 8))
    p("s_load_dwordx2 s[48:49], s[0:1], %d" % (A_WQ * 8))
    p("s_load_dwordx2 s[50:51], s[0:1], %d" % (A_WK * 8))
    p("s_load_dwordx2 s[52:53], s[0:1], %d" % (A_WV * 8))
    p("s_load_dwordx2 s[54:55], s[0:1], %d" % (A_WO * 8))
    p("s_load_dwordx2 s[56:57], s[0:1], %d" % (A_MEM0 * 8))
    p("v_lshrrev_b32 v1, 6, v0")
    p("v_and_b32 v0, 63, v0")
    p("v_readfirstlane_b32 %s, v1" % s(S_W))
    p("s_mov_b32 %s, %d" % (s(SWS + 2), WS_BYTES))
    p("s_mov_b32 %s, 0x20000" % s(SWS + 3))
    p("s_mov_b32 %s, %d" % (s(SW + 2), DM * H * DH * 2))
    p("s_mov_b32 %s, 0x20000" % s(SW + 3))
    p("s_mov_b32 %s, 0x00ff00ff" % s(S_PUBM))
    p("s_mov_b32 %s, 0x00ff00ff" % s(S_PUBM + 1))
    p("s_mov_b32 %s, 0xff00ff00" % s(S_PART))
    p("s_mov_b32 %s, 0xff00ff00" % s(S_PART + 1))
    p("s_mov_b32 %s, 0x%x" % (s(S_C), f2u(DH ** -0.5 * math.log2(math.e))))
    p("s_mov_b32 %s, 1000000" % s(S_BUD))
    p("s_mov_b32 %s, %s" % (s(S_C2), s(S_C)))
    p("s_mov_b32 %s, %s" % (s(S_C2 + 1), s(S_C)))
    p("s_mov_b32 %s, 0x3e800000" % s(S_Q2))
    p("s_mov_b32 %s, 0x3e800000" % s(S_Q2 + 1))
    p("s_xor_b32 %s, %s, 0x80000000" % (s(S_NC), s(S_C)))
    p("s_mov_b32 %s, 0x%x" % (s(S_SENT), SENT))
    p("s_lshl_b32 %s, %s, 9" % (s(S_W512), s(S_W)))
    p("v_and_b32 v1, 15, v0")
    p("v_lshrrev_b32 v2, 4, v0")
    p("v_bfe_u32 v3, v0, 2, 2")
    p("v_and_b32 v4, 3, v0")
    p("v_lshlrev_b32 %s, 4, v0" % v(L16))
    p("v_mov_b32 %s, 0x4444" % v(IDX))
    p("v_mov_b32 v5, 0xeeee")
    p("v_cndmask_b32 %s, %s, v5, %s" % (v(IDX), v(IDX), s(S_PART, 2)))
    p("v_lshl_add_u32 v5, v2, 2, v3")
    p("v_lshlrev_b32 v5, 4, v5")
    p("v_and_b32 v6, 1, v4")
    p("v_lshl_add_u32 %s, v6, 3, v5" % v(TRA))
    p("v_lshrrev_b32 v5, 5, v0")
    p("v_lshl_add_u32 v5, v5, 4, v1")
    p("v_lshlrev_b32 v5, 4, v5")
    p("v_and_b32 v6, 1, v2")
    p("v_lshl_add_u32 %s, v6, 3, v5" % v(QWA))
    p("v_and_b32 v5, 7, v0")
    p("v_lshl_add_u32 v5, v2, 3, v5")
    p("v_lshlrev_b32 %s, 4, v5" % v(SXR))
    p("s_waitcnt lgkmcnt(0)")

    p("s_lshl_b32 %s, %s, 2" % (s(S_T0), s(S_H)))
    p("s_add_u32 %s, %s, %s" % (s(S_T0), s(S_T0), s(S_W)))
    p("s_lshl_b32 %s, %s, 13" % (s(S_T0), s(S_T0)))
    p("s_add_u32 %s, %s, 0x%x" % (s(S_STO), s(S_T0), OFF_STAMP))

    p("s_lshl_b32 %s, %s, 5" % (s(S_U), s(S_W)))
    p("s_add_u32 %s, %s, %s" % (s(S_U), s(S_U), s(S_H)))

    lab = p.newlabel("NOPUB0")
    p("s_cmp_ge_u32 %s, 72" % s(S_U))
    p("s_cbranch_scc1 %s" % lab)
    p("s_mov_b32 %s, s56" % s(12))
    p("s_mov_b32 %s, s57" % s(13))
    p("s_mov_b32 %s, 9216" % s(14))
    p("s_mov_b32 %s, 0x20000" % s(15))
    p("v_and_b32 v5, 1, v2")
    p("v_lshlrev_b32 v5, 3, v5")
    p("v_lshrrev_b32 v6, 1, v2")
    p("v_lshl_add_u32 v7, v6, 2, v5")
    p("v_and_b32 v5, 7, v0")
    p("v_mul_u32_u24 v6, 1152, v5")
    p("v_add_u32 v6, v6, v7")
    p("v_lshl_add_u32 v7, v5, 4, v7")
    p("s_lshl_b32 %s, %s, 4" % (s(S_T0), s(S_U)))
    p("s_lshl_b32 %s, %s, 7" % (s(S_T1), s(S_U)))
    p("s_add_u32 %s, %s, 0x%x" % (s(S_T1), s(S_T1), OFF_MB))
    p("s_mov_b64 exec, %s" % s(S_PUBM, 2))
    p("buffer_load_dword v8, v6, s[12:15], %s offen" % s(S_T0))
    p("s_waitcnt vmcnt(0)")
    p("v_cmp_eq_u32 vcc, 0x%x, v8" % SENT)
    p("v_mov_b32 v9, 0xffffffff")
    p("v_cndmask_b32 v8, v8, v9, vcc")
    p("buffer_store_dword v8, v7, %s, %s offen sc1" % (s(SWS, 4), s(S_T1)))
    p("s_mov_b64 exec, -1")
    p("s_waitcnt vmcnt(0)")
    p.label(lab)
    p("s_load_dwordx2 s[12:13], s[0:1], %d" % (D_DBG * 8))
    p("s_mov_b32 s14, 256")
    p("s_mov_b32 s15, 0x20000")
    p("s_waitcnt lgkmcnt(0)")

    p.c("---- weight load through LDS with transposing reads")
    p("v_and_b32 v5, 1, v2")
    p("s_lshl_b32 %s, %s, 1" % (s(S_T0), s(S_W)))
    p("v_or_b32 v5, %s, v5" % s(S_T0))
    p("v_lshlrev_b32 v5, 1, v5")
    p("v_xor_b32 v5, v5, v1")
    p("v_lshlrev_b32 v5, 4, v5")
    p("v_lshl_add_u32 v8, v2, 13, v5")
    p("s_lshl_b32 %s, %s, 15" % (s(S_T0), s(S_W)))
    p("s_lshl_b32 %s, %s, 8" % (s(S_T1), s(S_H)))
    p("s_add_u32 %s, %s, %s" % (s(S_T0), s(S_T0), s(S_T1)))
    p("v_add_u32 v8, %s, v8" % s(S_T0))
    p("v_and_b32 v5, 1, v2")
    p("s_and_b32 %s, %s, 1" % (s(S_T0), s(S_W)))
    p("s_lshl_b32 %s, %s, 1" % (s(S_T0), s(S_T0)))
    p("v_or_b32 v5, %s, v5" % s(S_T0))
    p("v_lshlrev_b32 v5, 2, v5")
    p("v_xor_b32 v5, v5, v1")
    p("v_lshlrev_b32 v5, 4, v5")
    p("v_mul_u32_u24 v6, 1152, v2")
    p("v_add_u32 v9, v5, v6")
    p("s_mul_i32 %s, %s, %d" % (s(S_T0), s(S_W), 16 * 1152))
    p("s_mul_i32 %s, %s, 147456" % (s(S_T1), s(S_H)))
    p("s_add_u32 %s, %s, %s" % (s(S_T0), s(S_T0), s(S_T1)))
    p("v_add_u32 v9, %s, v9" % s(S_T0))
    p("v_and_b32 v5, 7, v0")
    p("v_lshlrev_b32 v5, 4, v5")
    p("v_lshrrev_b32 v6, 3, v0")
    p("v_mul_u32_u24 v6, 1152, v6")
    p("s_mul_i32 %s, %s, %d" % (s(S_T0), s(S_W), 32 * 1152))
    p("s_add_u32 %s, %s, %s" % (s(S_T0), s(S_T0), s(S_T1)))
    p("s_add_u32 %s, %s, 1024" % (s(S_T0), s(S_T0)))
    p("v_add_u32 v6, %s, v6" % s(S_T0))
    p("v_add_u32 v60, v5, v6")
    p("v_xor_b32 v5, 64, v5")
    p("v_add_u32 v61, v5, v6")
    p("v_lshrrev_b32 v5, 1, v2")
    p("v_lshlrev_b32 v5, 4, v5")
    p("v_and_b32 v6, 1, v2")
    p("v_lshl_add_u32 v5, v6, 2, v5")
    p("v_and_b32 v7, 1, v3")
    p("v_add_u32 v5, v5, v7")
    p("v_lshrrev_b32 v10, 1, v3")
    p("v_lshl_add_u32 v5, v10, 3, v5")
    p("v_lshl_or_b32 v11, v6, 1, v7")
    p("v_lshl_or_b32 v11, v10, 2, v11")
    p("s_lshl_b32 %s, %s, 1" % (s(S_T0), s(S_W)))
    p("v_xor_b32 v12, %s, v11" % s(S_T0))
    p("v_lshlrev_b32 v12, 5, v12")
    p("v_lshl_add_u32 v12, v4, 3, v12")
    p("v_lshl_add_u32 v12, v5, 8, v12")
    p("v_add_u32 v12, %d, v12" % L_WL)
    p("v_xor_b32 v13, 32, v12")
    p("v_lshrrev_b32 v5, 1, v2")
    p("v_lshl_add_u32 v5, v5, 2, v7")
    p("v_lshl_add_u32 v5, v6, 4, v5")
    p("v_lshl_or_b32 v14, v6, 1, v7")
    p("v_lshl_or_b32 v14, v14, 1, v10")
    p("s_lshl_b32 %s, %s, 1" % (s(S_T0), s(S_W)))
    p("v_xor_b32 v14, %s, v14" % s(S_T0))
    p("v_lshlrev_b32 v14, 5, v14")
    p("v_lshl_add_u32 v14, v4, 3, v14")
    p("v_lshl_add_u32 v14, v5, 8, v14")
    p("v_add_u32 v14, %d, v14" % L_WL)
    p("v_lshl_or_b32 v62, v6, 1, v10")
    p("v_lshlrev_b32 v62, 5, v62")
    p("v_lshl_add_u32 v62, v4, 3, v62")
    p("v_lshl_add_u32 v62, v5, 7, v62")
    p("s_lshl_b32 %s, %s, 12" % (s(S_T0), s(S_W)))
    p("s_add_u32 %s, %s, %d" % (s(S_T0), s(S_T0), L_WL + 8 * 16384))
    p("v_add_u32 v62, %s, v62" % s(S_T0))
    p("v_xor_b32 v63, 64, v62")
    p("v_add_u32 v64, %s, %s" % (s(S_T0), v(L16)))
    p("s_lshl_b32 %s, %s, 12" % (s(S_T3), s(S_W)))
    p("s_lshl_b32 %s, %s, 11" % (s(S_T0), s(S_W)))
    p("v_add_u32 v15, %s, %s" % (s(S_T0), v(L16)))
    p("v_add_u32 v15, %d, v15" % L_WL)
    p("s_lshl_b32 %s, %s, 10" % (s(S_T2), s(S_W)))

    cur_mat = [None]

    def set_mat(mi):
        if cur_mat[0] != mi:
            p("s_mov_b32 %s, s%d" % (s(SW), 48 + 2 * mi))
            p("s_mov_b32 %s, s%d" % (s(SW + 1), 49 + 2 * mi))
            cur_mat[0] = mi

    def issue_group(G):
        slot = G % 9
        if G < 27:
            mi, j = divmod(G, 9)
            set_mat(mi)
            for qq in range(4):
                p("s_add_u32 m0, %s, %d" % (s(S_T2), L_WL + slot * 16384 + qq * 4096))
                p("s_mov_b32 %s, %d" % (s(S_T0), (64 * j + 16 * qq) * 8192))
                p("buffer_load_dwordx4 v8, %s, %s offen lds" % (s(SW, 4), s(S_T0)))
        else:
            set_mat(3)
            tau, kp = divmod(slot, 2)
            for qq in range(4):
                p("s_add_u32 m0, %s, %d" % (s(S_T3), L_WL + slot * 16384 + qq * 1024))
                if slot < 8:
                    p("s_mov_b32 %s, %d" % (s(S_T0), (64 * kp + 4 * qq) * 1152 + tau * 256))
                    p("buffer_load_dwordx4 v9, %s, %s offen lds" % (s(SW, 4), s(S_T0)))
                else:
                    p("s_mov_b32 %s, %d" % (s(S_T0), 8 * qq * 1152))
                    p("buffer_load_dwordx4 v%d, %s, %s offen lds" % (60 + (qq >> 1), s(SW, 4), s(S_T0)))

    NG = 36
    for G in range(9):
        issue_group(G)
    issued = 9
    for G in range(NG):
        slot = G % 9
        p("s_waitcnt vmcnt(%d) lgkmcnt(0)" % (4 * (issued - G - 1)))
        p("s_barrier")
        if G >= 1 and issued < NG:
            issue_group(issued)
            issued += 1
        if G >= 28:
            pb = 20 + 16 * ((G - 1) & 1)
            ps = (G - 1) % 9
            p("v_add_u32 v18, %d, v15" % (ps * 16384))
            for j2 in range(2):
                for hf in range(2):
                    p("ds_write_b128 v18, %s offset:%d" % (v(pb + 8 * j2 + 4 * hf, 4), j2 * 8192 + hf * 1024))
        if G < 27:
            mi, j = divmod(G, 9)
            p("v_add_u32 v16, %d, v12" % (slot * 16384))
            p("v_add_u32 v17, %d, v13" % (slot * 16384))
            for tt in range(2):
                for rd in range(4):
                    off = (rd & 1) * 512 + (rd >> 1) * 8192
                    p("ds_read_b64_tr_b16 %s, v%d offset:%d" % (wt_reg(mi, j, tt, 2 * rd, 2), 16 + tt, off))
        else:
            b = 20 + 16 * (G & 1)
            if slot < 8:
                p("v_add_u32 v16, %d, v14" % (slot * 16384))
                for j2 in range(2):
                    for rd in range(4):
                        off = j2 * 8192 + (rd & 1) * 512 + (rd >> 1) * 2048
                        p("ds_read_b64_tr_b16 %s, v16 offset:%d" % (v(b + 8 * j2 + 2 * rd, 2), off))
            else:
                for pp in range(2):
                    for rd in range(4):
                        off = (rd & 1) * 256 + (rd >> 1) * 1024
                        p("ds_read_b64_tr_b16 %s, v%d offset:%d" % (v(b + 8 * pp + 2 * rd, 2), 62 + pp, off))
    p("s_waitcnt lgkmcnt(0)")
    p("s_barrier")
    pb = 20 + 16 * ((NG - 1) & 1)
    for pp in range(2):
        for hf in range(2):
            p("ds_write_b128 v64, %s offset:%d" % (v(pb + 8 * pp + 4 * hf, 4), pp * 2048 + hf * 1024))

    p("s_mov_b32 %s, 0" % s(S_STEP))
    p("s_mov_b32 %s, 0x%x" % (s(S_PAR), OFF_PB2))
    p("s_mov_b32 %s, 1" % s(S_PH))
    p("s_mov_b32 %s, 0x%x" % (s(S_MB), OFF_MB))
    p("s_lshl_b32 %s, %s, 13" % (s(S_T0), s(S_H)))
    p("s_add_u32 %s, %s, 0x%x" % (s(S_VX), s(S_T0), OFF_VX))
    p("s_add_u32 %s, %s, 0x%x" % (s(S_M0), s(S_T0), OFF_KX + KVS))
    p("s_add_u32 %s, %s, 0x%x" % (s(S_KX0), s(S_T0), OFF_KX))
    p("s_add_u32 %s, %s, 4096" % (s(S_KX1), s(S_KX0)))
    p("s_lshl_b32 %s, %s, 12" % (s(S_T0), s(S_H)))
    p("s_add_u32 %s, %s, 0x%x" % (s(S_KM), s(S_T0), OFF_KM))
    p("s_add_u32 %s, %s, 0x%x" % (s(S_VM), s(S_T0), OFF_VM))
    p("s_lshl_b32 %s, %s, 7" % (s(S_PUB), s(S_U)))
    p("s_mul_i32 %s, %s, 288" % (s(S_H288), s(S_H)))
    p("s_mov_b32 %s, 0x%x" % (s(S_HIST), OFF_HIST))
    p("s_lshl_b32 %s, %s, 7" % (s(S_TF), s(S_H)))
    p("s_add_u32 %s, %s, 0x%x" % (s(S_TF), s(S_TF), OFF_FLAG + F_TEAM))
    p("s_lshl_b32 %s, %s, 9" % (s(S_KVF), s(S_H)))
    p("s_add_u32 %s, %s, 0x%x" % (s(S_KVF), s(S_KVF), OFF_FLAG + F_G1))
    p("s_mov_b32 %s, 0" % s(S_KVC))
    p("v_add_u32 %s, 65536, %s" % (v(T1), v(L16)))
    p("v_add_u32 %s, 131072, %s" % (v(T2), v(L16)))
    p("s_waitcnt lgkmcnt(0)")
    p("s_barrier")
    for w in range(1, 4):
        p("s_cmp_eq_u32 %s, %d" % (s(S_W), w))
        p("s_cbranch_scc1 REC_W%d" % w)
    MODES = ["", "sc1"] if census else [st_flags]

    def budget():
        p("s_sub_u32 %s, %s, 1" % (s(S_BUD), s(S_BUD)))
        p("s_cbranch_scc1 REC_FAIL")

    def bg(q, n=1):
        for _ in range(n):
            if q:
                x = q.pop(0)
                if callable(x):
                    x()
                else:
                    p(x)

    def combine(acc):
        return ([("v_permlane32_swap_b32 %s, %s" % (v(acc + r), v(acc + 4 + r))) for r in range(4)]
                + [("v_add_f32 %s, %s, %s" % (v(acc + r), v(acc + r), v(acc + 4 + r))) for r in range(4)]
                + ["v_cvt_pk_bf16_f32 %s, %s, %s" % (v(acc), v(acc), v(acc + 1)),
                   "v_cvt_pk_bf16_f32 %s, %s, %s" % (v(acc + 1), v(acc + 2), v(acc + 3))])

    def zero(r, n):
        return ["v_mov_b64 %s, 0" % v(r + i, 2) for i in range(0, n, 2)]

    class LG:
        def __init__(self):
            self.log = []

        def op(self, text, tag):
            p(text)
            self.log.append(tag)

        def wait(self, *tags):
            hit = [i for i, x in enumerate(self.log) if x in tags]
            if hit:
                k = max(hit)
                n = len(self.log) - 1 - k
                assert n <= 15
                p("s_waitcnt lgkmcnt(%d)" % n)
                self.log = self.log[k + 1:]

        def all(self):
            if self.log:
                p("s_waitcnt lgkmcnt(0)")
            self.log = []

    def bases():
        p("v_add_u32 %s, 65536, %s" % (v(T1), v(L16)))
        p("v_add_u32 %s, 131072, %s" % (v(T2), v(L16)))

    MSK = [48, 50, 52, 54]

    def masks(bases_, tmps, half=False):
        for i, b in enumerate(bases_):
            if half:
                p("v_max_u32 %s, %s, %s" % (v(tmps[i]), v(b), v(b + 2)))
            else:
                p("v_max3_u32 %s, %s, %s, %s" % (v(tmps[i]), v(b), v(b + 1), v(b + 2)))
                p("v_max_u32 %s, %s, %s" % (v(tmps[i]), v(tmps[i]), v(b + 3)))
        for i, b in enumerate(bases_):
            p("v_cmp_eq_u32 %s, %s, %s" % (s(MSK[i], 2), s(S_SENT), v(tmps[i])))
        if len(bases_) == 1:
            p("s_or_b64 s[56:57], %s, %s" % (s(MSK[0], 2), s(MSK[0], 2)))
        else:
            p("s_or_b64 s[56:57], %s, %s" % (s(MSK[0], 2), s(MSK[1], 2)))
        for i in range(2, len(bases_)):
            p("s_or_b64 s[56:57], s[56:57], %s" % s(MSK[i], 2))

    def kexport():
        if NOEXP:
            return
        p("s_mov_b64 exec, %s" % s(S_PUBM, 2))
        for ks in range(4):
            p("buffer_store_dwordx4 %s, %s, %s, %s offen offset:%d %s" % (v(52 + 4 * ks, 4), v(SXR), s(SWS, 4), s(S_KM), ks * 512, EXP))
        p("s_mov_b64 exec, -1")
        p("s_add_u32 %s, %s, %d" % (s(S_KM), s(S_KM), EXS))

    def teamflag(sval):
        p("v_mov_b32 %s, %s" % (v(T0), s(sval)))
        p("s_mov_b64 exec, 1")
        p("buffer_store_dword %s, %s, %s, %s offen sc1" % (v(T0), v(L16), s(SWS, 4), s(S_TF)))
        p("s_mov_b64 exec, -1")

    def kv_wait(sseg):
        if not flags:
            return
        ok = p.newlabel("KVOK")
        top = p.newlabel("KVP")
        p("s_cmp_ge_u32 %s, 64" % s(sseg))
        p("s_cbranch_scc1 %s" % ok)
        p.label(top)
        p("s_cmp_gt_u32 %s, %s" % (s(S_KVC), s(sseg)))
        p("s_cbranch_scc1 %s" % ok)
        p("s_lshr_b32 s56, %s, 4" % s(sseg))
        p("s_lshl_b32 s57, s56, 7")
        p("s_add_u32 s57, s57, %s" % s(S_KVF))
        p("s_mov_b64 exec, 1")
        p("buffer_load_dword %s, %s, %s, s57 offen sc1" % (v(T0), v(L16), s(SWS, 4)))
        p("s_mov_b64 exec, -1")
        p("s_waitcnt vmcnt(0)")
        p("v_readfirstlane_b32 s57, %s" % v(T0))
        p("s_lshl_b32 s56, s56, 4")
        p("s_add_u32 %s, s56, s57" % s(S_KVC))
        budget()
        p("s_branch %s" % top)
        p.label(ok)

    H1 = [0, 1, 2, 3]
    H2 = [4, 5, 6, 7, 8]

    def plan(w):
        own1 = {0: [], 1: [], 2: [0, 1], 3: [2, 3]}[w]
        own2 = {0: [4], 1: [5, 8], 2: [6], 3: [7]}[w]
        h1ord = own1 + [j for j in H1 if j not in own1]
        h2ord = own2 + [j for j in H2 if j not in own2]
        seqA = [(m, j, tt) for j in h1ord for m in range(2) for tt in range(2)]
        seqQ = [(0, j, tt) for j in h2ord for tt in range(2)]
        seqK = [(1, j, tt) for j in h2ord for tt in range(2)]
        seq = seqA + seqQ + seqK
        if w < 3:
            lds_qk = [seq[i] for i in (0, 8, 16, 24)][:NQKL]
            reg_wo = [4, 5, 10, 11][:NQKL]
            swaps = list(zip(lds_qk, reg_wo))
        else:
            lds_qk = []
            reg_wo = list(range(18))
            swaps = [((2, k // 2, k % 2), k) for k in range(18)]
        return own1, own2, h1ord, h2ord, seqA, seqQ, seqK, lds_qk, reg_wo, swaps

    def gen_wave(w):
        own1, own2, h1ord, h2ord, seqA, seqQ, seqK, lds_qk, reg_wo, swaps = plan(w)
        p.label("REC_W%d" % w)
        for base in range(0, len(swaps), 4):
            grp = swaps[base:base + 4]
            for i, (tile, t) in enumerate(grp):
                b, off = lref(slot_addr(t, w))
                p("ds_read_b128 %s, %s offset:%d" % (v(8 * i, 4), b, off))
                p("ds_read_b128 %s, %s offset:%d" % (v(8 * i + 4, 4), b, off + 1024))
            p("s_waitcnt lgkmcnt(0)")
            for i, (tile, t) in enumerate(grp):
                b, off = lref(slot_addr(t, w))
                p("ds_write_b128 %s, %s offset:%d" % (b, wt_reg(*tile, 0, 4), off))
                p("ds_write_b128 %s, %s offset:%d" % (b, wt_reg(*tile, 4, 4), off + 1024))
            p("s_waitcnt lgkmcnt(0)")
            for i, (tile, t) in enumerate(grp):
                for r in range(8):
                    d = wt_reg(*tile, r, 1)
                    p("%s %s, %s" % ("v_accvgpr_write_b32" if d[0] == "a" else "v_mov_b32", d, v(8 * i + r)))
        if w == PFW:
            kv_wait(S_STEP)
        p("s_barrier")
        if TS:
            p("s_memrealtime s[98:99]")
            p("s_lshl_b32 s97, s96, 8")
            p("s_add_u32 s97, s97, 0x%x" % (OFF_STAMP + 0x200000 + 8))
            p("s_waitcnt lgkmcnt(0)")
            p("v_mov_b32 %s, s98" % v(T0))
            p("s_mov_b64 exec, 1")
            p("buffer_store_dword %s, %s, %s, s97 offen" % (v(T0), v(L16), s(SWS, 4)))
            p("s_mov_b64 exec, -1")
        if census:
            top = p.newlabel("CEN")
            fast = p.newlabel("CENF")
            p("s_mov_b32 s58, 0x%x" % (OFF_FLAG + F_ROLE))
            p.label(top)
            p("s_mov_b64 exec, 1")
            p("buffer_load_dword %s, %s, %s, s58 offen offset:1024 sc1" % (v(T0), v(L16), s(SWS, 4)))
            p("s_waitcnt vmcnt(0)")
            p("buffer_load_dword %s, %s, %s, s58 offen sc1" % (v(QF), v(L16), s(SWS, 4)))
            p("s_mov_b64 exec, -1")
            p("s_waitcnt vmcnt(0)")
            p("v_readfirstlane_b32 s56, %s" % v(T0))
            p("v_readfirstlane_b32 s57, %s" % v(QF))
            p("s_min_u32 s57, s57, %d" % census)
            p("s_cmp_ge_u32 s57, 32")
            p("s_cbranch_scc1 %s" % fast)
            budget()
            p("s_cmp_lt_u32 s56, 256")
            p("s_cbranch_scc1 %s" % top)
            p("s_branch W%dsc1_PRE" % w)
            p.label(fast)
        for ST in MODES:
            gen_loop(w, ST, "W%d%s_" % (w, ST))

    def gen_loop(w, ST, W):
        own1, own2, h1ord, h2ord, seqA, seqQ, seqK, lds_qk, reg_wo, swaps = plan(w)
        wo_reg = {t: tile for tile, t in swaps}
        qk_addr = {tile: slot_addr(t, w) for tile, t in swaps}
        nt = 16 if w < 2 else 20
        lg = LG()

        def rdtile(dst, addr, tag):
            b, off = lref(addr)
            lg.op("ds_read_b128 %s, %s offset:%d" % (v(dst, 4), b, off), tag)
            lg.op("ds_read_b128 %s, %s offset:%d" % (v(dst + 4, 4), b, off + 1024), tag)

        def fetch(own, masked=False):
            for i, j in enumerate(own):
                if masked:
                    p("s_mov_b64 exec, %s" % s(MSK[i], 2))
                so, off = (S_MB, j * 1024) if j < 4 else ((S_T1, (j - 4) * 1024) if j < 8 else (S_T2, 0))
                p("buffer_load_dwordx4 %s, %s, %s, %s offen offset:%d sc1" % (v(MA + 4 * j, 4), v(L16), s(SWS, 4), s(so), off))
            if masked:
                p("s_mov_b64 exec, -1")

        pend = []

        def issue_qk(tile):
            m, j, tt = tile
            lg.wait(("m", j), ("s", tile))
            p(smf((AQ, AK)[m] + 4 * tt, MA + 4 * j, v(STG0, 8) if tile in lds_qk else wt(*tile)))
            if pend:
                t2 = pend.pop()
                rdtile(STG0, qk_addr[t2], ("s", t2))
            if tile in lds_qk:
                i = lds_qk.index(tile)
                if i + 1 < len(lds_qk):
                    pend.append(lds_qk[i + 1])

        vt = {0: [0, 1, 6], 1: [2, 3, 7], 2: [4, 5], 3: []}[w]
        KX = [[52, 56, 60, 64], [68, 0, 4, 8]]

        def ldkx(kt, ks):
            p("buffer_load_dwordx4 %s, %s, %s, %s offen offset:%d sc1" % (v(KX[kt][ks], 4), v(L16), s(SWS, 4), s((S_KX0, S_KX1)[kt]), ks * 1024))

        def ldvx(i):
            et = vt[i]
            so, off = (S_VX, et * 1024) if et < 4 else (S_T0, (et - 4) * 1024)
            p("buffer_load_dwordx4 %s, %s, %s, %s offen offset:%d sc1" % (v(VXF + 4 * i, 4), v(L16), s(SWS, 4), s(so), off))

        def wrmem(j):
            lg.op("ds_write_b128 %s, %s offset:%d" % (v(L16), v(MA + 4 * j, 4), L_MEM + j * 1024), "wm")

        def rdmem(j):
            lg.op("ds_read_b128 %s, %s offset:%d" % (v(MA + 4 * j, 4), v(L16), L_MEM + j * 1024), ("m", j))

        def prefetch():
            p("s_add_u32 %s, %s, 1" % (s(S_T0), s(S_STEP)))
            kv_wait(S_T0)
            p("v_lshlrev_b32 %s, 3, %s" % (v(T0), v(L16)))
            p("s_mov_b32 m0, %d" % L_SX)
            p("s_add_u32 %s, %s, 0x%x" % (s(S_T0), s(S_M0), OFF_VX - OFF_KX))
            p("buffer_load_dword %s, %s, %s offen lds" % (v(T0), s(SWS, 4), s(S_M0)))
            p("buffer_load_dword %s, %s, %s offen lds" % (v(T0), s(SWS, 4), s(S_T0)))
            p("s_add_u32 %s, %s, %d" % (s(S_M0), s(S_M0), KVS))

        p.label(W + "PRE")
        bases()
        p("s_add_u32 %s, %s, 4096" % (s(S_T0), s(S_VX)))
        p("s_add_u32 %s, %s, 4096" % (s(S_T1), s(S_MB)))
        p("s_add_u32 %s, %s, 8192" % (s(S_T2), s(S_MB)))
        stamp(0)
        if w < 3:
            rdtile(STG0, qk_addr[lds_qk[0]], ("s", lds_qk[0]))
        for x in zero(AQ, 16):
            p(x)
        tm = MA + 4 * h2ord[-1]
        A = list(seqA)
        if B3:
            p("s_barrier")
        if own1:
            if w == 2:
                p("s_cmp_lt_u32 %s, 72" % s(S_U))
                p("s_cbranch_scc1 %sNOD" % W)
            for _ in range(FD0):
                p("s_nop 15")
            p.label(W + "NOD")
            for d in range(DEP):
                fetch(own1)
                if d + 1 < DEP:
                    for _ in range(FD1):
                        p("s_nop 7")
            p.label(W + "CHK1")
            p("s_waitcnt vmcnt(%d)" % (2 * (DEP - 1)))
            masks([MA + 4 * j for j in own1], [tm, tm + 1])
            p("s_cbranch_scc1 %sRETRY1" % W)
            stamp(1)
            for j in own1:
                wrmem(j)
            fetch(own2)
            for _ in range(3):
                issue_qk(A.pop(0))
            lg.wait("wm")
        else:
            if F2E:
                fetch(own2)
            stamp(1)
        p("s_barrier")
        stamp(2)
        for j in h1ord:
            if j not in own1:
                rdmem(j)
        fetch(own2)
        n = 0
        while len(A) > C1:
            issue_qk(A.pop(0))
            n += 1
            if n == 4 or (n == 2 and not own1 and not F2E):
                fetch(own2)
        no = len(own2)
        p.label(W + "CHK2")
        p("s_waitcnt vmcnt(%d)" % (2 * no))
        masks([MA + 4 * j for j in own2], [tm, tm + 1])
        p("s_cbranch_scc1 %sRETRY2" % W)
        stamp(3)
        for j in own2:
            wrmem(j)
        if w == 3:
            for ks in range(4):
                ldkx(0, ks)
            ldkx(1, 0)
        while len(A) > 2:
            issue_qk(A.pop(0))
        lg.wait("wm")
        p("s_barrier")
        for j in h2ord:
            if j not in own2:
                rdmem(j)
        while A:
            issue_qk(A.pop(0))
        stamp(4)
        for i, tile in enumerate(seqQ):
            issue_qk(tile)
            if w == 3 and i < 3:
                ldkx(1, i + 1)
            if w < 3 and 2 <= i < 2 + len(vt):
                ldvx(i - 2)
        if w < 3:
            p("s_add_u32 %s, %s, %d" % (s(S_VX), s(S_VX), KVS))
        if w == 3:
            for r in (S_KX0, S_KX1):
                p("s_add_u32 %s, %s, %d" % (s(r), s(r), KVS))
        stamp(5)
        Kq = [(lambda t=t: issue_qk(t)) for t in seqK]
        bg(Kq, 2)
        cq = combine(AQ)
        for i, x in enumerate(cq):
            p(x)
            if i % 3 == 2:
                bg(Kq)
        lg.op("ds_write_b64 %s, %s offset:%d" % (v(QWA), v(AQ, 2), L_Q + 512 * w), "wq")
        if w < 2:
            rdtile(STG0, slot_addr(w, 3), ("v", 0))
        STG = [8, 16, 24, STG0, VXF]
        NST = len(STG)
        OA = AQ
        ACC = [0, 4, 32, QF, 0] if w < 3 else [0, 4, 32, QF, 24]
        lt = [t for t in range(nt) if t not in reg_wo]

        if w < 3:
            Z = zero(AQ + 2, 6)
            for i in range(3):
                bg(Kq)
                bg(Z, 1)
            lg.wait("wq")
            p("s_barrier")
            bg(Kq)
            p(zero(AQ, 2)[0])
            bg(Kq, 99)
            stamp(6)
            AVs = [AQ, AQ + 4, AK + 4]
            nv = len(vt)

            def vr(j, tt):
                p(smf(AVs[tt], MA + 4 * j, wt(2, j, tt)))

            vr(0, 0)
            vr(0, 1)
            for x in combine(AK):
                p(x)
            lg.op("ds_write_b64 %s, %s offset:%d" % (v(QWA), v(AK, 2), L_K + 512 * w), "wk")
            if nv == 3:
                for x in zero(AVs[2], 4):
                    p(x)
                slots = {0: STG0, 1: STG0, 2: STG0, 3: 0, 4: STG0, 5: 0, 6: 8, 7: STG0, 8: 0}

                def vl(j):
                    lg.wait(("v", j))
                    p(smf(AVs[2], MA + 4 * j, v(slots[j], 8)))

                def req(j):
                    rdtile(slots[j], slot_addr(2 * j + w, 3), ("v", j))
                vr(1, 0); vl(0); vr(1, 1)
                lg.wait("wk")
                p("s_barrier")
                stamp(7)
                req(1); vr(2, 0)
                vr(2, 1); vr(3, 0); vl(1); vr(3, 1); req(2); req(3); vr(4, 0); vr(4, 1); vr(5, 0)
                vl(2); vl(3); vr(5, 1); req(4); req(5); req(6); vr(6, 0); vr(6, 1); vr(7, 0)
                vl(4); vl(5); req(7); vl(6); req(8); vr(7, 1); vr(8, 0); vr(8, 1)
                vl(7); vl(8)
            else:
                vr(1, 0); vr(1, 1); vr(2, 0)
                lg.wait("wk")
                p("s_barrier")
                stamp(7)
                if PFW == 2:
                    prefetch()
                p("v_add_u32 %s, %s, %s" % (v(T0), s(S_H288), v(L16)))
                lg.op("ds_read_b128 %s, %s offset:%d" % (v(STG0, 4), v(T0), L_MEM), "hx")
                vr(2, 1)
                for j in range(3, 9):
                    vr(j, 0)
                    vr(j, 1)
                    if j == 4:
                        lg.wait("hx")
                        p("s_mov_b64 exec, 0x3ffff")
                        p("buffer_store_dwordx4 %s, %s, %s, %s offen sc1" % (v(STG0, 4), v(T0), s(SWS, 4), s(S_HIST)))
                        p("s_mov_b64 exec, -1")
                        p("s_add_u32 %s, %s, 9216" % (s(S_HIST), s(S_HIST)))
            for i in range(2):
                rdtile(STG[i], slot_addr(lt[i], w), ("w", lt[i]))
            for i in range(nv):
                p("v_cvt_pk_bf16_f32 %s, %s, %s" % (v(AVs[i]), v(AVs[i]), v(AVs[i] + 1)))
                p("v_cvt_pk_bf16_f32 %s, %s, %s" % (v(AVs[i] + 1), v(AVs[i] + 2), v(AVs[i] + 3)))
            rdtile(STG[2], slot_addr(lt[2], w), ("w", lt[2]))
            rdtile(STG[3], slot_addr(lt[3], w), ("w", lt[3]))

            def vexport():
                if NOEXP:
                    return
                p("v_lshrrev_b32 %s, 1, %s" % (v(T0), v(L16)))
                for i, et in enumerate(vt):
                    p("buffer_store_dwordx2 %s, %s, %s, %s offen offset:%d %s" % (v(AVs[i], 2), v(T0), s(SWS, 4), s(S_VM), et * 512, EXP))
                p("s_add_u32 %s, %s, %d" % (s(S_VM), s(S_VM), EXS))
            p("v_lshrrev_b32 %s, 1, %s" % (v(T0), v(SXR)))
            p("s_waitcnt vmcnt(%d)" % (3 if w == 2 else 0))
            stamp(8)
            p("s_barrier")
            stamp(9)
            PX, PM = AK, AQ + 2
            lg.op("ds_read_b128 %s, %s offset:%d" % (v(PX, 4), v(SXR), L_PX), "px")
            lg.op("ds_read_b64 %s, %s offset:%d" % (v(PM, 2), v(T0), L_PM), "pm")
            OX = [0, 4, 32]
            lg.wait("px")
            for i in range(nv):
                p("v_mfma_f32_16x16x32_bf16 %s, %s, %s, 0" % (v(OX[i], 4), v(VXF + 4 * i, 4), v(PX, 4)))
            lg.wait("pm")
            for i in range(nv):
                p("v_mfma_f32_16x16x16_bf16 %s, %s, %s, %s" % (v(OX[i], 4), v(AVs[i], 2), v(PM, 2), v(OX[i], 4)))
            p("v_cvt_pk_bf16_f32 %s, %s, %s" % (v(0), v(0), v(1)))
            p("v_cvt_pk_bf16_f32 %s, %s, %s" % (v(1), v(2), v(3)))
            p("v_cvt_pk_bf16_f32 %s, %s, %s" % (v(2), v(4), v(5)))
            p("v_cvt_pk_bf16_f32 %s, %s, %s" % (v(3), v(6), v(7)))
            lg.op("ds_write_b128 %s, %s offset:%d" % (v(SXR), v(0, 4), L_O + 512 * w), "wo")
            if nv == 3:
                p("v_cvt_pk_bf16_f32 %s, %s, %s" % (v(32), v(32), v(33)))
                p("v_cvt_pk_bf16_f32 %s, %s, %s" % (v(33), v(34), v(35)))
                lg.op("ds_write_b64 %s, %s offset:%d" % (v(SXR), v(32, 2), L_O + 512 * 3 + 8 * w), "wo")
            stamp(10)
            for x in zero(ACC[1], 4) + zero(ACC[3], 4):
                p(x)
            npre = 4
        else:
            bg(Kq, 3)
            lg.wait("wq")
            p("s_barrier")
            QFR = [MA + 4 * j for j in h2ord[:4]]
            bg(Kq, 1)
            for ks in range(4):
                if ks == 3:
                    bg(Kq, 1)
                for b in range(2):
                    lg.op("ds_read_b64_tr_b16 %s, %s offset:%d" % (v(QFR[ks] + 2 * b, 2), v(TRA), L_Q + (32 * ks + 16 * b) * 16), ("q", ks))
            assert not Kq
            stamp(6)
            KFR = [52, 56, 60, 64]
            SX = AQ
            SM = AK
            MX, LX, FX, TM = AK + 4, AK + 5, AK + 6, AK + 7
            XS = []
            for ks in range(4):
                for kt in range(2):
                    def xs(ks=ks, kt=kt):
                        lg.wait(("q", ks))
                        p("v_mfma_f32_16x16x32_bf16 %s, %s, %s, %s" % (v(SX + 4 * kt, 4), v(KX[kt][ks], 4), v(QFR[ks], 4), "0" if ks == 0 else v(SX + 4 * kt, 4)))
                    XS.append(xs)
            p("s_waitcnt vmcnt(0)")
            bg(XS, 2)
            CK = combine(AK)
            for i, x in enumerate(CK):
                p(x)
                if i in (3, 7):
                    bg(XS)
            lg.op("ds_write_b64 %s, %s offset:%d" % (v(QWA), v(AK, 2), L_K + 512 * w), "wk")
            bg(XS, 99)
            X = []
            X.append("v_bfe_u32 %s, %s, 7, 1" % (v(T1), v(L16)))
            X.append("v_lshl_add_u32 %s, %s, 3, %s" % (v(T1), v(T1), v(SXR)))
            X.append("v_lshrrev_b32 %s, 1, %s" % (v(T2), v(SXR)))
            for r in range(4):
                X.append("v_cndmask_b32 %s, %s, %s, %s" % (v(SX + r), v(SX + r), v(SX + 4 + r), s(S_PART, 2)))
            X.append("v_max3_f32 %s, %s, %s, %s" % (v(MX), v(SX), v(SX + 1), v(SX + 2)))
            X.append("v_max_f32 %s, %s, %s" % (v(MX), v(MX), v(SX + 3)))
            X.append("v_max_f32_dpp %s, %s, %s row_ror:8 row_mask:0xf bank_mask:0xf" % (v(MX), v(MX), v(MX)))
            X.append("v_mov_b32 %s, %s" % (v(T0), v(MX)))
            X.append("v_permlane32_swap_b32 %s, %s" % (v(MX), v(T0)))
            X.append("v_max_f32 %s, %s, %s" % (v(MX), v(MX), v(T0)))
            lg.wait("wk")
            p("s_barrier")
            stamp(7)
            for ks in range(4):
                for b in range(2):
                    lg.op("ds_read_b64_tr_b16 %s, %s offset:%d" % (v(KFR[ks] + 2 * b, 2), v(TRA), L_K + (32 * ks + 16 * b) * 16), ("k", ks))
            bg(X, 7)
            for ks in range(4):
                lg.wait(("k", ks))
                p("v_mfma_f32_16x16x32_bf16 %s, %s, %s, %s" % (v(SM, 4), v(KFR[ks], 4), v(QFR[ks], 4), "0" if ks == 0 else v(SM, 4)))
                bg(X, 2)
            bg(X, 99)
            p("v_max3_f32 %s, %s, %s, %s" % (v(TM), v(SM), v(SM + 1), v(SM + 2)))
            p("v_max3_f32 %s, %s, %s, %s" % (v(TM), v(TM), v(SM + 3), v(MX)))
            p("v_mov_b32 %s, %s" % (v(MX), v(TM)))
            p("v_permlane16_swap_b32 %s, %s" % (v(TM), v(MX)))
            p("v_max_f32 %s, %s, %s" % (v(TM), v(TM), v(MX)))
            p("v_mul_f32 %s, %s, %s" % (v(FX), s(S_NC), v(TM)))
            p("v_mul_f32 %s, %s, %s" % (v(TM), s(S_NC), v(TM)))
            for b in (SM, SM + 2, SX, SX + 2):
                p("v_pk_fma_f32 %s, %s, %s, %s" % (v(b, 2), v(b, 2), s(S_C2, 2), v(FX, 2)))
            for b in (SM, SX):
                for r in range(4):
                    p("v_exp_f32 %s, %s" % (v(b + r), v(b + r)))
            p("v_pk_add_f32 %s, %s, %s" % (v(MX, 2), v(SM, 2), v(SM + 2, 2)))
            p("v_pk_add_f32 %s, %s, %s" % (v(FX, 2), v(SX, 2), v(SX + 2, 2)))
            p("v_pk_fma_f32 %s, %s, %s, %s" % (v(MX, 2), v(MX, 2), s(S_Q2, 2), v(FX, 2)))
            p("v_add_f32 %s, %s, %s" % (v(LX), v(MX), v(LX)))
            p("v_add_f32_dpp %s, %s, %s row_ror:8 row_mask:0xf bank_mask:0xf" % (v(LX), v(LX), v(LX)))
            p("v_mov_b32 %s, %s" % (v(T0), v(LX)))
            p("v_permlane16_swap_b32 %s, %s" % (v(LX), v(T0)))
            p("v_add_f32 %s, %s, %s" % (v(LX), v(LX), v(T0)))
            p("v_mov_b32 %s, %s" % (v(T0), v(LX)))
            p("v_permlane32_swap_b32 %s, %s" % (v(LX), v(T0)))
            p("v_add_f32 %s, %s, %s" % (v(LX), v(LX), v(T0)))
            p("v_rcp_f32 %s, %s" % (v(MX), v(LX)))
            p("v_rcp_f32 %s, %s" % (v(LX), v(LX)))
            for b in (SM, SM + 2, SX, SX + 2):
                p("v_pk_mul_f32 %s, %s, %s" % (v(b, 2), v(b, 2), v(MX, 2)))
            p("v_cvt_pk_bf16_f32 %s, %s, %s" % (v(SM), v(SM), v(SM + 1)))
            p("v_cvt_pk_bf16_f32 %s, %s, %s" % (v(SM + 1), v(SM + 2), v(SM + 3)))
            lg.op("ds_write_b64 %s, %s offset:%d" % (v(T2), v(SM, 2), L_PM), "wp")
            p("v_cvt_pk_bf16_f32 %s, %s, %s" % (v(SX), v(SX), v(SX + 1)))
            p("v_cvt_pk_bf16_f32 %s, %s, %s" % (v(SX + 1), v(SX + 2), v(SX + 3)))
            lg.op("ds_write_b64 %s, %s offset:%d" % (v(T1), v(SX, 2), L_PX), "wp")
            lg.all()
            stamp(8)
            p("s_barrier")
            stamp(9)
            if PFW == 3:
                prefetch()
            bases()
            for i in range(len(lt)):
                rdtile(STG[i], slot_addr(lt[i], w), ("w", lt[i]))
            stamp(10)
            for t in range(5):
                for x in zero(ACC[t], 4):
                    p(x)
            npre = len(lt)
        p("s_mul_i32 %s, %s, 9216" % (s(S_PB), s(S_H)))
        p("s_add_u32 %s, %s, %s" % (s(S_PB), s(S_PB), s(S_PAR)))
        p("s_add_u32 %s, %s, 4096" % (s(S_T0), s(S_PB)))
        p("s_add_u32 %s, %s, 7168" % (s(S_T1), s(S_PB)))
        lg.wait("wo")
        stamp(11)
        p("s_barrier")
        stamp(12)
        for ks in range(4):
            lg.op("ds_read_b128 %s, %s offset:%d" % (v(OA + 4 * ks, 4), v(SXR), L_O + 512 * ks), ("o", ks))
        slot_of = {t: i for i, t in enumerate(lt[:npre])}
        if w < 3:
            rdtile(STG[4], slot_addr(lt[4], w), ("w", lt[4]))
            slot_of[lt[4]] = 4
            npre = 5
            for x in zero(ACC[0], 4) + zero(ACC[2], 4):
                p(x)
        nxt = npre
        freed = []

        def post(tau):
            A0 = ACC[tau]
            so, off = [(S_PB, 0), (S_PB, 2048), (S_T0, 0), (S_T0, 2048), (S_T1, 0)][tau]
            L = []
            L.append("v_cvt_pk_bf16_f32 %s, %s, %s" % (v(A0), v(A0), v(A0 + 1)))
            L.append("v_cvt_pk_bf16_f32 %s, %s, %s" % (v(A0 + 1), v(A0 + 2), v(A0 + 3)))
            L.append("v_and_or_b32 %s, %s, -2, %s" % (v(A0), v(A0), s(S_PH)))
            L.append("buffer_store_dwordx2 %s, %s, %s, %s offen offset:%d %s" % (v(A0, 2), v(QWA), s(SWS, 4), s(so), off + 512 * w, ST))
            if tau == 0 and w == 2:
                L += zero(A0, 4)
            return L

        PQ = []
        for t in range(nt):
            tau, ks = divmod(t, 4)
            lg.wait(("o", ks), ("w", t))
            if ks == 0 and tau == 4:
                bg(PQ, 99)
            if t in lt:
                p(smf(ACC[tau], OA + 4 * ks, v(STG[slot_of[t]], 8)))
            else:
                p(smf(ACC[tau], OA + 4 * ks, wt(*wo_reg[t])))
            if freed:
                sl = freed.pop()
                if nxt < len(lt):
                    rdtile(STG[sl], slot_addr(lt[nxt], w), ("w", lt[nxt]))
                    slot_of[lt[nxt]] = sl
                    nxt += 1
            if t in lt:
                freed.append(slot_of[t])
            if ks == 2 and tau >= 1:
                bg(PQ, 99)
                PQ = post(tau - 1)
            bg(PQ, 2)
        bg(PQ, 99)
        for x in post(nt // 4 - 1):
            p(x)
        assert not lg.log
        stamp(13)
        p("s_add_u32 %s, %s, 16384" % (s(S_T3), s(S_MB)))
        p("s_and_b32 %s, %s, 0x%x" % (s(S_T3), s(S_T3), OFF_MB | 0xffff))
        if w < 3:
            labn = W + "NORED"
            if w == 2:
                p("s_cmp_ge_u32 %s, 72" % s(S_U))
                p("s_cbranch_scc1 %s" % labn)
            RD = 16
            SEL = 32
            RA = 36
            RP = 37
            RACC = 40
            p("v_lshrrev_b32 %s, 7, %s" % (v(T0), v(L16)))
            p("v_mul_u32_u24 %s, 9216, %s" % (v(T0), v(T0)))
            p("v_and_b32 %s, 0x70, %s" % (v(RP), v(L16)))
            p("v_add_u32 %s, %s, %s" % (v(RA), v(T0), v(RP)))
            p("s_add_u32 %s, %s, %s" % (s(S_RL), s(S_PUB), s(S_PAR)))
            p("s_add_u32 %s, %s, %d" % (s(S_T0), s(S_RL), 73728))
            p("s_add_u32 %s, %s, %d" % (s(S_T1), s(S_RL), 2 * 73728))
            p("s_add_u32 %s, %s, %d" % (s(S_T2), s(S_RL), 3 * 73728))
            soffs = [S_RL, S_T0, S_T1, S_T2]

            def rload(masked=False):
                for ld in range(4):
                    if masked:
                        p("s_mov_b64 exec, %s" % s(MSK[ld], 2))
                    p("buffer_load_dwordx4 %s, %s, %s, %s offen sc1" % (v(RD + 4 * ld, 4), v(RA), s(SWS, 4), s(soffs[ld])))
                if masked:
                    p("s_mov_b64 exec, -1")

            SET = []
            SET.append("v_bfe_u32 %s, %s, 4, 4" % (v(T0), v(L16)))
            SET.append("v_and_b32 %s, 1, %s" % (v(T1), v(T0)))
            SET.append("v_lshlrev_b32 %s, 4, %s" % (v(T1), v(T1)))
            SET.append("v_mov_b32 %s, 0x3f80" % v(T2))
            SET.append("v_lshlrev_b32 %s, %s, %s" % (v(T1), v(T1), v(T2)))
            SET.append("v_lshrrev_b32 %s, 1, %s" % (v(T0), v(T0)))
            for r in range(4):
                SET.append("v_cmp_eq_u32 vcc, %d, %s" % (r, v(T0)))
                SET.append("v_cndmask_b32 %s, 0, %s, vcc" % (v(SEL + r), v(T1)))
            SET.append("v_bfe_u32 %s, %s, 8, 1" % (v(T2), v(L16)))
            SET.append("v_lshl_add_u32 %s, %s, 3, %s" % (v(RP), v(T2), v(RP)))
            SET.append("v_bfe_u32 %s, %s, 9, 1" % (v(T2), v(L16)))
            SET.append("v_lshl_add_u32 %s, %s, 2, %s" % (v(RP), v(T2), v(RP)))
            SET.append("s_add_u32 s58, %s, %s" % (s(S_T3), s(S_PUB)))
            SET.append("s_add_u32 %s, %s, %s" % (s(S_PMB), s(S_MB), s(S_PUB)))
            SET.append("v_mov_b32 v8, 0x%x" % SENT)

            def unit(tag, d0, d1, first):
                if first and w > 0:
                    bg(SET, 99)
                for _ in range(d0):
                    p("s_nop 15")
                if VW[w] >= 0:
                    p("s_waitcnt vmcnt(%d)" % VW[w])
                rload()
                bg(SET, 99)
                for d in range(1, RDEP):
                    for _ in range(d1):
                        p("s_nop 7")
                    rload()
                p("s_branch %sRED1%s" % (W, tag))
                p.label(W + "RED" + tag)
                for ld in range(4):
                    p("v_and_b32 %s, 1, %s" % (v(44 + ld), v(44 + ld)))
                    p("v_cmp_ne_u32 %s, 0, %s" % (s(MSK[ld], 2), v(44 + ld)))
                rload(True)
                budget()
                p.label(W + "RED1" + tag)
                p("s_waitcnt vmcnt(%d)" % (4 * (RDEP - 1)))
                for ld in range(4):
                    b = RD + 4 * ld
                    p("v_bitop3_b32 %s, %s, %s, %s bitop3:0x7e" % (v(44 + ld), v(b), v(b + 2), s(S_PH)))
                p("v_or3_b32 v48, v44, v45, v46")
                p("v_or_b32 v48, v48, v47")
                p("v_and_b32 v48, 1, v48")
                p("v_cmp_ne_u32 vcc, 0, v48")
                for ld in range(4):
                    b = RD + 4 * ld
                    p("v_mfma_f32_16x16x32_bf16 %s, %s, %s, %s" % (v(RACC, 4), v(b, 4), v(SEL, 4), "0" if ld == 0 else v(RACC, 4)))
                    if ld == 0:
                        p("s_cbranch_vccnz %sRED%s" % (W, tag))
                if first:
                    stamp(14)
                p("v_permlane32_swap_b32 %s, %s" % (v(RACC), v(RACC + 2)))
                p("v_permlane32_swap_b32 %s, %s" % (v(RACC + 1), v(RACC + 3)))
                p("v_pk_add_f32 %s, %s, %s" % (v(RACC, 2), v(RACC, 2), v(RACC + 2, 2)))
                p("v_cvt_pk_bf16_f32 %s, %s, %s" % (v(RACC), v(RACC), v(RACC + 1)))
                p("s_mov_b64 exec, %s" % s(S_PUBM, 2))
                p("buffer_store_dword %s, %s, %s, s58 offen %s" % (v(RACC), v(RP), s(SWS, 4), ST))
                p("buffer_store_dword v8, %s, %s, %s offen %s" % (v(RP), s(SWS, 4), s(S_PMB), ST))
                lh = p.newlabel("NOH")
                p("s_cmp_lt_u32 %s, %d" % (s(S_STEP), nsteps - 1))
                p("s_cbranch_scc1 %s" % lh)
                p("s_add_u32 s59, %s, 0x%x" % (s(S_PUB), OFF_HIST + nsteps * 9216))
                p("buffer_store_dword %s, %s, %s, s59 offen sc1" % (v(RACC), v(RP), s(SWS, 4)))
                p.label(lh)
                p("s_mov_b64 exec, -1")

            unit("A", RD0[w], RD1[w], True)
            p.label(labn)
        stamp(15)
        p("s_mov_b32 %s, %s" % (s(S_MB), s(S_T3)))
        p("s_xor_b32 %s, %s, 0x%x" % (s(S_PAR), s(S_PAR), PB_STR))
        p("s_and_b32 %s, %s, 1" % (s(S_T0), s(S_STEP)))
        p("s_xor_b32 %s, %s, %s" % (s(S_PH), s(S_PH), s(S_T0)))
        p("s_add_u32 %s, %s, 1" % (s(S_STEP), s(S_STEP)))
        if stamps and w == 3 or stamps == 2:
            flush_stamps()
        if stamps:
            p("s_add_u32 %s, %s, 128" % (s(S_STO), s(S_STO)))
        p("s_cmp_lt_u32 %s, %d" % (s(S_STEP), nsteps))
        p("s_cbranch_scc1 %sPRE" % W)
        p("s_branch REC_DONE")
        if own1:
            p.label(W + "RETRY1")
            fetch(own1, True)
            budget()
            p("s_branch %sCHK1" % W)
        p.label(W + "RETRY2")
        fetch(own2, True)
        budget()
        p("s_branch %sCHK2" % W)

    for w in range(4):
        gen_wave(w)
```

```python
import math
import struct
from asmlib import *
from layout import *

SWS = 4
SA = 8
SB = 12
SX = 16
S_WV = 20
S_RANK = 21
S_BUDW = 22
S_A, S_B, S_C_, S_D, S_E, S_F, S_G, S_H_ = 24, 25, 26, 27, 28, 29, 30, 31
S_I, S_J, S_K, S_L = 32, 33, 34, 35

V_L16 = 200
V_LANE = 201


def f2u(x):
    return struct.unpack("<I", struct.pack("<f", x))[0]


def srd(p, sreg, slot, nbytes):
    p("s_load_dwordx2 %s, s[0:1], %d" % (s(sreg, 2), slot * 8))
    p("s_mov_b32 %s, %d" % (s(sreg + 2), nbytes))
    p("s_mov_b32 %s, 0x20000" % s(sreg + 3))


def worker_setup(p):
    srd(p, SWS, D_WS, WS_BYTES)
    srd(p, SX, A_X, S * DM * 2)
    p("v_lshrrev_b32 v1, 6, v0")
    p("v_and_b32 %s, 63, v0" % v(V_LANE))
    p("v_readfirstlane_b32 %s, v1" % s(S_WV))
    p("v_lshlrev_b32 %s, 4, %s" % (v(V_L16), v(V_LANE)))
    p("s_mov_b32 %s, 300000" % s(S_BUDW))
    p("s_waitcnt lgkmcnt(0)")


TSTAMP = [False]


def wstamp(p, k, role="s21", sws=SWS):
    if not TSTAMP[0]:
        return
    p("s_memrealtime s[98:99]")
    p("s_lshl_b32 s97, %s, 8" % role)
    p("s_add_u32 s97, s97, 0x%x" % (OFF_STAMP + 0x200000 + 4 * k))
    p("s_waitcnt lgkmcnt(0)")
    p("v_mov_b32 v254, s98")
    p("v_mov_b32 v255, 0")
    p("s_mov_b64 exec, 1")
    p("buffer_store_dword v254, v255, %s, s97 offen" % s(sws, 4))
    p("s_mov_b64 exec, -1")


def lane_fields(p, r16, g, r, c):
    p("v_and_b32 %s, 15, %s" % (v(r16), v(V_LANE)))
    p("v_lshrrev_b32 %s, 4, %s" % (v(g), v(V_LANE)))
    p("v_bfe_u32 %s, %s, 2, 2" % (v(r), v(V_LANE)))
    p("v_and_b32 %s, 3, %s" % (v(c), v(V_LANE)))


def bfrag(i, r=0, n=4):
    if i < 64:
        return a(4 * i + r, n)
    return v(208 + 4 * (i - 64) + r, n)


XB0 = 98304
XB1 = 0
V_XA = 202


def x_dma_setup(p):
    p("v_and_b32 v1, 15, %s" % v(V_LANE))
    p("v_mul_u32_u24 v1, 1152, v1")
    p("v_lshrrev_b32 v2, 4, %s" % v(V_LANE))
    p("v_lshl_add_u32 %s, v2, 4, v1" % v(V_XA))


def x_dma(p, srow, sbuf, st0, st1):
    p("s_add_u32 %s, %s, %s" % (s(st0), s(srow), s(S_K)))
    p("s_add_u32 %s, %s, %s" % (s(st1), s(sbuf), s(S_L)))
    for i in range(9):
        p("s_add_u32 m0, %s, %d" % (s(st1), i * 1024))
        if i:
            p("s_add_u32 %s, %s, 64" % (s(st0), s(st0)))
        else:
            p("s_nop 0")
        p("buffer_load_dwordx4 %s, %s, %s offen lds" % (v(V_XA), s(SX, 4), s(st0)))


def x_dma_consts(p):
    p("s_lshr_b32 %s, %s, 1" % (s(S_K), s(S_WV)))
    p("s_mul_i32 %s, %s, %d" % (s(S_K), s(S_K), 16 * 1152))
    p("s_and_b32 %s, %s, 1" % (s(S_L), s(S_WV)))
    p("s_mul_i32 %s, %s, 576" % (s(S_L), s(S_L)))
    p("s_add_u32 %s, %s, %s" % (s(S_K), s(S_K), s(S_L)))
    p("s_mul_i32 %s, %s, 9216" % (s(S_L), s(S_WV)))


def gen_gemm1(p, done_label):
    S_Q, S_ROW, S_OUT, S_FLAG, S_IT, S_BUF, S_VT = S_A, S_B, S_C_, S_D, S_E, S_F, S_G
    S_T0, S_T1 = S_H_, S_I
    NB = DM * H * DH * 2
    p.c("---- projection GEMM role")
    p("s_load_dwordx2 s[40:41], s[0:1], %d" % (A_WQ * 8))
    p("s_load_dwordx2 s[42:43], s[0:1], %d" % (A_WK * 8))
    p("s_load_dwordx2 s[44:45], s[0:1], %d" % (A_WV * 8))
    p("s_mov_b32 %s, %d" % (s(SA + 2), NB))
    p("s_mov_b32 %s, 0x20000" % s(SA + 3))
    p("s_mov_b32 %s, %d" % (s(SB + 2), NB))
    p("s_mov_b32 %s, 0x20000" % s(SB + 3))
    p("s_and_b32 %s, %s, 3" % (s(S_Q), s(S_RANK)))
    p("s_mov_b32 s48, 16")
    p("s_lshr_b32 %s, %s, 2" % (s(S_T0), s(S_RANK)))
    p("s_lshr_b32 %s, %s, 1" % (s(S_T1), s(S_WV)))
    p("s_waitcnt lgkmcnt(0)")
    lq = p.newlabel("G1Q")
    le = p.newlabel("G1E")
    p("s_cmp_ge_u32 %s, 32" % s(S_T0))
    p("s_cbranch_scc1 %s" % lq)
    p("s_mov_b32 %s, s42" % s(SA))
    p("s_mov_b32 %s, s43" % s(SA + 1))
    p("s_mov_b32 %s, s44" % s(SB))
    p("s_mov_b32 %s, s45" % s(SB + 1))
    p("s_lshl_b32 s46, %s, 8" % s(S_T0))
    p("s_mov_b32 s47, s46")
    p("s_mov_b32 %s, %s" % (s(S_VT), s(S_T1)))
    p("s_lshl_b32 %s, %s, 13" % (s(S_OUT), s(S_T0)))
    p("s_mul_i32 %s, %s, 0x%x" % (s(S_T1), s(S_T1), OFF_VX - OFF_KX))
    p("s_add_u32 %s, %s, %s" % (s(S_OUT), s(S_OUT), s(S_T1)))
    p("s_add_u32 %s, %s, 0x%x" % (s(S_OUT), s(S_OUT), OFF_KX))
    p("s_branch %s" % le)
    p.label(lq)
    p("s_mov_b32 %s, s40" % s(SA))
    p("s_mov_b32 %s, s41" % s(SA + 1))
    p("s_mov_b32 %s, s40" % s(SB))
    p("s_mov_b32 %s, s41" % s(SB + 1))
    p("s_sub_u32 %s, %s, 128" % (s(S_T0), s(S_RANK)))
    p("s_and_b32 %s, %s, 1" % (s(S_Q), s(S_T0)))
    p("s_lshl_b32 %s, %s, 1" % (s(S_Q), s(S_Q)))
    p("s_lshr_b32 %s, %s, 1" % (s(S_T0), s(S_T0)))
    p("s_mov_b32 s48, 32")
    p("s_lshl_b32 s46, %s, 9" % s(S_T0))
    p("s_add_u32 s47, s46, 256")
    p("s_mov_b32 %s, 0" % s(S_VT))
    p("s_lshl_b32 %s, %s, 1" % (s(S_T0), s(S_T0)))
    p("s_add_u32 %s, %s, %s" % (s(S_T0), s(S_T0), s(S_T1)))
    p("s_lshl_b32 %s, %s, 13" % (s(S_OUT), s(S_T0)))
    p("s_add_u32 %s, %s, 0x%x" % (s(S_OUT), s(S_OUT), OFF_QX))
    p.label(le)
    p("s_lshl_b32 %s, %s, 22" % (s(S_T0), s(S_Q)))
    p("s_add_u32 %s, %s, %s" % (s(S_OUT), s(S_OUT), s(S_T0)))
    p("s_and_b32 %s, %s, 1" % (s(S_T0), s(S_WV)))
    p("s_add_u32 %s, %s, 11" % (s(S_T1), s(S_VT)))
    p("s_lshl_b32 %s, %s, %s" % (s(S_T0), s(S_T0), s(S_T1)))
    p("s_add_u32 %s, %s, %s" % (s(S_OUT), s(S_OUT), s(S_T0)))
    p("s_lshl_b32 %s, %s, 7" % (s(S_FLAG), s(S_RANK)))
    p("s_add_u32 %s, %s, 0x%x" % (s(S_FLAG), s(S_FLAG), OFF_FLAG + F_G1))
    p("s_mul_i32 %s, %s, %d" % (s(S_ROW), s(S_Q), 512 * 1152))
    x_dma_setup(p)
    x_dma_consts(p)
    p("s_mov_b32 %s, %d" % (s(S_BUF), XB0))
    x_dma(p, S_ROW, S_BUF, S_T0, S_T1)
    lane_fields(p, 1, 2, 3, 4)
    p("s_lshr_b32 %s, %s, 1" % (s(S_T0), s(S_WV)))
    p("s_lshl_b32 %s, %s, 2" % (s(S_T0), s(S_T0)))
    p("v_or_b32 v5, %s, v2" % s(S_T0))
    p("v_lshlrev_b32 v5, 1, v5")
    p("v_xor_b32 v5, v5, v1")
    p("v_lshlrev_b32 v5, 4, v5")
    p("v_lshl_add_u32 v5, v2, 13, v5")
    p("s_lshl_b32 %s, %s, 15" % (s(S_T0), s(S_WV)))
    p("v_add_u32 v5, %s, v5" % s(S_T0))
    p("v_add_u32 v8, s46, v5")
    p("v_add_u32 v9, s47, v5")
    p("v_and_b32 v6, 1, v2")
    p("v_lshl_or_b32 v6, v6, 2, v3")
    p("s_and_b32 %s, %s, 1" % (s(S_T0), s(S_WV)))
    p("s_lshl_b32 %s, %s, 2" % (s(S_T0), s(S_T0)))
    p("v_xor_b32 v6, %s, v6" % s(S_T0))
    p("v_lshl_add_u32 v7, v2, 3, v3")
    p("v_lshlrev_b32 v7, 8, v7")
    p("v_lshl_add_u32 v7, v4, 3, v7")
    p("s_lshr_b32 %s, %s, 1" % (s(S_T0), s(S_WV)))
    p("s_lshl_b32 %s, %s, 14" % (s(S_T0), s(S_T0)))
    p("v_add_u32 v7, %s, v7" % s(S_T0))
    for t in range(4):
        p("v_xor_b32 v10, %d, v6" % t)
        p("v_lshl_add_u32 v%d, v10, 5, v7" % (12 + t))
    p("s_lshl_b32 %s, %s, 10" % (s(S_J), s(S_WV)))

    def issue(kb):
        slot = kb % 3
        for grp in range(2):
            for qq in range(4):
                p("s_add_u32 m0, %s, %d" % (s(S_J), slot * 32768 + grp * 16384 + qq * 4096))
                p("s_mov_b32 %s, %d" % (s(S_T0), (64 * kb + 16 * qq) * 8192))
                p("buffer_load_dwordx4 v%d, %s, %s offen lds" % (8 + grp, s((SA, SB)[grp], 4), s(S_T0)))

    for kb in range(3):
        issue(kb)
    issued = 3
    for kb in range(9):
        slot = kb % 3
        p("s_waitcnt vmcnt(%d) lgkmcnt(0)" % (8 * (issued - kb - 1)))
        p("s_barrier")
        if kb >= 1 and issued < 9:
            issue(issued)
            issued += 1
        for t in range(4):
            p("v_add_u32 v%d, %d, v%d" % (16 + t, slot * 32768, 12 + t))
        for k2 in range(2):
            for t in range(4):
                for hf in range(2):
                    i = t * 18 + 2 * kb + k2
                    p("ds_read_b64_tr_b16 %s, v%d offset:%d" % (bfrag(i, 2 * hf, 2), 16 + t, k2 * 8192 + hf * 1024))
    wstamp(p, 2, "s96")
    p("s_mov_b32 %s, 0" % s(S_IT))
    p("v_mov_b32 v203, 0")
    p("s_waitcnt vmcnt(0) lgkmcnt(0)")
    lv = p.newlabel("G1V")
    p("s_cmp_lg_u32 %s, 0" % s(S_VT))
    p("s_cbranch_scc1 %s" % lv)
    for vtype in (0, 1):
        if vtype:
            p.label(lv)
        top = p.newlabel("G1L")
        p.label(top)
        p("s_waitcnt vmcnt(4)")
        p("s_barrier")
        p("s_max_u32 %s, %s, 1" % (s(S_T0), s(S_IT)))
        p("s_sub_u32 %s, %s, 1" % (s(S_T0), s(S_T0)))
        p("v_mov_b32 v204, %s" % s(S_T0))
        p("s_mov_b64 exec, 1")
        p("buffer_store_dword v204, v203, %s, %s offen sc1" % (s(SWS, 4), s(S_FLAG)))
        p("s_mov_b64 exec, -1")
        p("v_add_u32 v205, %s, %s" % (s(S_BUF), v(V_L16)))
        p("s_add_u32 %s, %s, %d" % (s(S_ROW), s(S_ROW), 32 * 1152))
        p("s_xor_b32 %s, %s, %d" % (s(S_BUF), s(S_BUF), XB0 ^ XB1))
        x_dma(p, S_ROW, S_BUF, S_T0, S_T1)
        NX = 6
        XR = 40
        for f in range(NX):
            p("ds_read_b128 %s, v205 offset:%d" % (v(XR + 4 * f, 4), f * 1024))
        for f in range(36):
            rt, ks = divmod(f, 18)
            p("s_waitcnt lgkmcnt(%d)" % min(NX - 2, 35 - f) if f else "s_waitcnt lgkmcnt(%d)" % (NX - 1))
            xr = v(XR + 4 * (f % NX), 4)
            for t in range(4):
                acc = v(16 * rt + 4 * t, 4)
                c = "0" if ks == 0 else acc
                if vtype:
                    p("v_mfma_f32_16x16x32_bf16 %s, %s, %s, %s" % (acc, xr, bfrag(t * 18 + ks), c))
                else:
                    p("v_mfma_f32_16x16x32_bf16 %s, %s, %s, %s" % (acc, bfrag(t * 18 + ks), xr, c))
                if t == 0 and f >= 1 and f - 1 + NX < 36:
                    g_ = f - 1 + NX
                    p("ds_read_b128 %s, v205 offset:%d" % (v(XR + 4 * (g_ % NX), 4), g_ * 1024))
        PK = 64
        p("s_add_u32 %s, %s, 4096" % (s(S_T0), s(S_OUT)))
        for o in range(4):
            if vtype:
                src = [4 * o, 16 + 4 * o]
                so, off = S_OUT, o * 1024
            else:
                rt, tp = divmod(o, 2)
                src = [16 * rt + 8 * tp, 16 * rt + 8 * tp + 4]
                so, off = (S_OUT, S_T0)[rt], tp * 1024
            d = PK + 4 * o
            for i, b in enumerate(src):
                p("v_cvt_pk_bf16_f32 %s, %s, %s" % (v(d + 2 * i), v(b), v(b + 1)))
                p("v_cvt_pk_bf16_f32 %s, %s, %s" % (v(d + 2 * i + 1), v(b + 2), v(b + 3)))
            p("buffer_store_dwordx4 %s, %s, %s, %s offen offset:%d sc1" % (v(d, 4), v(V_L16), s(SWS, 4), s(so), off))
        p("s_add_u32 %s, %s, 0x40000" % (s(S_OUT), s(S_OUT)))
        p("s_add_u32 %s, %s, 1" % (s(S_IT), s(S_IT)))
        p("s_cmp_lt_u32 %s, s48" % s(S_IT))
        p("s_cbranch_scc1 %s" % top)
        p("s_waitcnt vmcnt(0)")
        p("s_barrier")
        p("v_mov_b32 v204, s48")
        p("s_mov_b64 exec, 1")
        p("buffer_store_dword v204, v203, %s, %s offen sc1" % (s(SWS, 4), s(S_FLAG)))
        p("s_mov_b64 exec, -1")
        p("s_branch %s" % done_label)


def poll_flags(p, voff, soff, nlanes, target, tmp, fail="W_FAIL", cmp_sgpr=None, cmp_vgpr=None, sleep=8):
    top = p.newlabel("POLL")
    ok = p.newlabel("POLLOK")
    p("s_mov_b32 exec_lo, 0x%x" % (((1 << nlanes) - 1) & 0xffffffff))
    p("s_mov_b32 exec_hi, 0x%x" % (((1 << nlanes) - 1) >> 32))
    p.label(top)
    p("buffer_load_dword %s, %s, %s, %s offen sc1" % (v(tmp), v(voff), s(SWS, 4), s(soff)))
    p("s_waitcnt vmcnt(0)")
    p("v_cmp_gt_u32 vcc, %s, %s" % (v(cmp_vgpr) if cmp_vgpr is not None else (s(cmp_sgpr) if cmp_sgpr is not None else str(target)), v(tmp)))
    p("s_cbranch_vccz %s" % ok)
    p("s_sleep %d" % sleep)
    p("s_sub_u32 %s, %s, 1" % (s(S_BUDW), s(S_BUDW)))
    p("s_cbranch_scc0 %s" % top)
    p("s_mov_b64 exec, -1")
    p("s_branch %s" % fail)
    p.label(ok)
    p("s_mov_b64 exec, -1")


LOG2E = f2u(math.log2(math.e))
EPS6 = f2u(1e-6)


def phi(p, dst, src, t0):
    p("v_min_f32 %s, 0, %s" % (v(t0), v(src)))
    p("v_mul_f32 %s, s36, %s" % (v(t0), v(t0)))
    p("v_exp_f32 %s, %s" % (v(t0), v(t0)))
    p("v_max_f32 %s, 0, %s" % (v(dst), v(src)))
    p("v_add_f32 %s, 0x%x, %s" % (v(dst), EPS6, v(dst)))
    p("v_add_f32 %s, %s, %s" % (v(dst), v(dst), v(t0)))


def gen_bbranch(p, done_label):
    S_Q, S_ROW, S_PQ, S_FLAG, S_IT, S_BUF, S_HD = S_A, S_B, S_C_, S_D, S_E, S_F, S_G
    S_T0, S_T1 = S_H_, S_I
    S_GO, S_ISG, S_OC = 37, 38, 39
    p.c("---- branch B role")
    srd(p, SA, B_WQKV, DM * 3 * DM * 2)
    srd(p, SB, GATE, DM * 2)
    p("s_mov_b32 s36, 0x%x" % LOG2E)
    p("s_sub_u32 %s, %s, 160" % (s(S_T0), s(S_RANK)))
    p("s_and_b32 %s, %s, 7" % (s(S_Q), s(S_T0)))
    p("s_lshr_b32 %s, %s, 3" % (s(S_HD), s(S_T0)))
    p("s_lshl_b32 %s, %s, 2" % (s(S_HD), s(S_HD)))
    p("s_add_u32 %s, %s, %s" % (s(S_HD), s(S_HD), s(S_WV)))
    p("s_lshl_b32 %s, %s, 7" % (s(S_FLAG), s(S_T0)))
    p("s_add_u32 %s, %s, 0x%x" % (s(S_FLAG), s(S_FLAG), OFF_FLAG + F_KV))
    p("s_mul_i32 %s, %s, %d" % (s(S_ROW), s(S_Q), 256 * 1152))
    p("s_lshl_b32 %s, %s, 2" % (s(S_T0), s(S_T0)))
    p("s_add_u32 %s, %s, %s" % (s(S_T0), s(S_T0), s(S_WV)))
    p("s_lshl_b32 %s, %s, 14" % (s(S_PQ), s(S_T0)))
    p("s_add_u32 %s, %s, 0x%x" % (s(S_PQ), s(S_PQ), OFF_PQ))
    p("s_lshl_b32 %s, %s, 10" % (s(S_GO), s(S_Q)))
    p("s_add_u32 %s, %s, 0x%x" % (s(S_GO), s(S_GO), OFF_G))
    x_dma_setup(p)
    x_dma_consts(p)
    p("s_mov_b32 %s, %d" % (s(S_BUF), XB0))
    p("s_waitcnt lgkmcnt(0)")
    x_dma(p, S_ROW, S_BUF, S_T0, S_T1)
    lane_fields(p, 1, 2, 3, 4)
    GF = 128
    p("v_lshlrev_b32 v5, 4, v2")
    for ks in range(18):
        p("buffer_load_dwordx4 %s, v5, %s, 0 offen offset:%d" % (v(GF + 4 * ks, 4), s(SB, 4), ks * 64))
    p("s_mul_i32 %s, %s, 36" % (s(S_T0), s(S_HD)))
    p("v_and_b32 v5, 7, %s" % v(V_LANE))
    p("v_bfe_u32 v6, %s, 3, 2" % v(V_LANE))
    p("v_lshrrev_b32 v7, 5, %s" % v(V_LANE))
    p("v_mul_u32_u24 v7, 3456, v7")
    p("v_add_u32 v7, %s, v7" % s(S_T0))
    p("v_lshlrev_b32 v12, 2, v5")
    p("v_mov_b32 v13, 0x40000000")
    for j, o in ((0, 1184), (1, 2336), (2, 32)):
        p("v_cmp_eq_u32 vcc, %d, v5" % j)
        p("v_mov_b32 v14, %d" % o)
        p("v_cndmask_b32 v13, v13, v14, vcc")
    for f2 in range(4):
        p("v_xor_b32 v14, %d, v6" % f2)
        p("v_add_u32 v15, 1152, v12")
        p("v_add_u32 v16, 2304, v12")
        p("v_cmp_eq_u32 vcc, 1, v14")
        p("v_cndmask_b32 v15, v15, v16, vcc")
        p("v_cmp_eq_u32 vcc, 2, v14")
        p("v_cndmask_b32 v15, v15, v13, vcc")
        p("v_cmp_eq_u32 vcc, 3, v14")
        p("v_cndmask_b32 v15, v15, v12, vcc")
        p("v_add_u32 v%d, v15, v7" % (8 + f2))
    p("v_and_b32 v5, 1, v2")
    p("v_lshrrev_b32 v6, 1, v3")
    p("v_lshl_or_b32 v6, v5, 1, v6")
    p("v_lshl_add_u32 v7, v2, 3, v3")
    p("v_lshlrev_b32 v7, 7, v7")
    p("v_lshl_add_u32 v7, v4, 3, v7")
    p("s_mul_i32 %s, %s, 24576" % (s(S_J), s(S_WV)))
    p("v_add_u32 v7, %s, v7" % s(S_J))
    for t in range(4):
        p("v_xor_b32 v5, %d, v6" % t)
        p("v_lshl_add_u32 v%d, v5, 5, v7" % (12 + t))
    p("s_waitcnt vmcnt(0)")

    def issue(ks):
        slot = ks % 3
        for i in range(16):
            f2 = (i & 1) | (((i >> 2) & 1) << 1)
            p("s_add_u32 m0, %s, %d" % (s(S_J), slot * 4096 + i * 256))
            p("s_mov_b32 %s, %d" % (s(S_T0), (32 * ks + 2 * i) * 3456))
            p("buffer_load_dword v%d, %s, %s offen lds" % (8 + f2, s(SA, 4), s(S_T0)))

    for ks in range(3):
        issue(ks)
    issued = 3
    for ks in range(18):
        slot = ks % 3
        p("s_waitcnt vmcnt(%d)" % (16 * (issued - ks - 1)))
        for t in range(4):
            for hf in range(2):
                p("ds_read_b64_tr_b16 %s, v%d offset:%d" % (bfrag(t * 18 + ks, 2 * hf, 2), 12 + t, slot * 4096 + hf * 512))
        if issued < 18:
            p("s_waitcnt lgkmcnt(0)")
            issue(issued)
            issued += 1
    wstamp(p, 2, "s96")
    KV = 96
    ONE = 120
    for r in range(24):
        p("v_mov_b32 %s, 0" % v(KV + r))
    for r in range(4):
        p("v_mov_b32 %s, 0x3f803f80" % v(ONE + r))
    p("s_mov_b32 %s, 0" % s(S_IT))
    p("v_mov_b32 v203, 0")
    p("s_mov_b32 s40, 0xffff0000")
    p("s_mov_b32 s41, 0")
    p("s_waitcnt vmcnt(0) lgkmcnt(0)")
    top = p.newlabel("BL")
    p.label(top)
    p("s_waitcnt vmcnt(2)")
    p("s_barrier")
    p("v_add_u32 v205, %s, %s" % (s(S_BUF), v(V_L16)))
    p("s_add_u32 %s, %s, %d" % (s(S_ROW), s(S_ROW), 32 * 1152))
    p("s_xor_b32 %s, %s, %d" % (s(S_BUF), s(S_BUF), XB0 ^ XB1))
    x_dma(p, S_ROW, S_BUF, S_T0, S_T1)
    NX = 6
    XR = 40
    for f in range(NX):
        p("ds_read_b128 %s, v205 offset:%d" % (v(XR + 4 * f, 4), f * 1024))
    for f in range(36):
        rt, ks = divmod(f, 18)
        p("s_waitcnt lgkmcnt(%d)" % min(NX - 2, 35 - f) if f else "s_waitcnt lgkmcnt(%d)" % (NX - 1))
        xr = v(XR + 4 * (f % NX), 4)
        for i, (t, tr) in enumerate(((0, 0), (1, 0), (2, 0), (3, 1), (2, 1))):
            acc = v(20 * rt + 4 * i, 4)
            c = "0" if ks == 0 else acc
            if not tr:
                p("v_mfma_f32_16x16x32_bf16 %s, %s, %s, %s" % (acc, xr, bfrag(t * 18 + ks), c))
            else:
                p("v_mfma_f32_16x16x32_bf16 %s, %s, %s, %s" % (acc, bfrag(t * 18 + ks), xr, c))
            if i == 0 and f >= 1 and f - 1 + NX < 36:
                g_ = f - 1 + NX
                p("ds_read_b128 %s, v205 offset:%d" % (v(XR + 4 * (g_ % NX), 4), g_ * 1024))
    ng = p.newlabel("NOG")
    p("s_cmp_lg_u32 %s, 0" % s(S_HD))
    p("s_cbranch_scc1 %s" % ng)
    GA = 64
    for f0 in range(0, 36, 6):
        for f in range(f0, f0 + 6):
            p("ds_read_b128 %s, v205 offset:%d" % (v(XR + 4 * (f % 6), 4), f * 1024))
        p("s_waitcnt lgkmcnt(0)")
        for f in range(f0, f0 + 6):
            rt, ks = divmod(f, 18)
            acc = v(GA + 4 * rt, 4)
            p("v_mfma_f32_16x16x32_bf16 %s, %s, %s, %s" % (acc, v(GF + 4 * ks, 4), v(XR + 4 * (f % 6), 4), "0" if ks == 0 else acc))
    p("v_lshlrev_b32 v72, 2, %s" % v(V_LANE))
    for rt in range(2):
        g = GA + 4 * rt
        p("v_mul_f32 %s, s36, %s" % (v(g), v(g)))
        p("v_exp_f32 %s, -%s" % (v(g), v(g)))
        p("v_add_f32 %s, 1.0, %s" % (v(g), v(g)))
        p("v_rcp_f32 %s, %s" % (v(g), v(g)))
        p("s_mov_b64 exec, 0xffff")
        p("buffer_store_dword %s, v72, %s, %s offen offset:%d sc1" % (v(g), s(SWS, 4), s(S_GO), rt * 64))
        p("s_mov_b64 exec, -1")
    p("s_add_u32 %s, %s, 128" % (s(S_GO), s(S_GO)))
    p.label(ng)
    KA, XA, VB, XB, PQ = 64, 68, 72, 76, 80
    T = 88
    for rt in range(2):
        b = 20 * rt
        p("v_cvt_pk_bf16_f32 %s, %s, %s" % (v(VB + 2 * rt), v(b + 4), v(b + 5)))
        p("v_cvt_pk_bf16_f32 %s, %s, %s" % (v(VB + 2 * rt + 1), v(b + 6), v(b + 7)))
        p("v_cvt_pk_bf16_f32 %s, %s, %s" % (v(XB + 2 * rt), v(b + 8), v(b + 9)))
        p("v_cvt_pk_bf16_f32 %s, %s, %s" % (v(XB + 2 * rt + 1), v(b + 10), v(b + 11)))
        for i, r in enumerate(list(range(0, 4)) + list(range(8, 18))):
            phi(p, b + r, b + r, T + (i & 3))
        p("v_cvt_pk_bf16_f32 %s, %s, %s" % (v(KA + 2 * rt), v(b), v(b + 1)))
        p("v_cvt_pk_bf16_f32 %s, %s, %s" % (v(KA + 2 * rt + 1), v(b + 2), v(b + 3)))
        p("v_cvt_pk_bf16_f32 %s, %s, %s" % (v(XA + 2 * rt), v(b + 8), v(b + 9)))
        p("v_cvt_pk_bf16_f32 %s, %s, %s" % (v(XA + 2 * rt + 1), v(b + 10), v(b + 11)))
        p("v_cvt_pk_bf16_f32 %s, %s, %s" % (v(PQ + 2 * rt), v(b + 12), v(b + 13)))
        p("v_cvt_pk_bf16_f32 %s, %s, %s" % (v(PQ + 2 * rt + 1), v(b + 14), v(b + 15)))
        p("v_cvt_pk_bf16_f32 %s, %s, %s" % (v(T), v(b + 16), v(b + 17)))
        p("v_cndmask_b32 %s, 0, %s, s[40:41]" % (v(PQ + 4 + rt), v(T)))
    for dp, A_ in enumerate((KA, XA)):
        for E, B_ in enumerate((VB, XB, ONE)):
            acc = v(KV + 4 * (3 * dp + E), 4)
            p("v_mfma_f32_16x16x32_bf16 %s, %s, %s, %s" % (acc, v(A_, 4), v(B_, 4), acc))
    p("buffer_store_dwordx4 %s, %s, %s, %s offen" % (v(PQ, 4), v(V_L16), s(SWS, 4), s(S_PQ)))
    p("buffer_store_dwordx2 %s, %s, %s, %s offen offset:1024" % (v(PQ + 4, 2), v(V_L16), s(SWS, 4), s(S_PQ)))
    p("s_add_u32 %s, %s, 2048" % (s(S_PQ), s(S_PQ)))
    p("s_add_u32 %s, %s, 1" % (s(S_IT), s(S_IT)))
    p("s_cmp_lt_u32 %s, 8" % s(S_IT))
    p("s_cbranch_scc1 %s" % top)
    p("s_lshl_b32 %s, %s, 3" % (s(S_T0), s(S_HD)))
    p("s_mul_i32 %s, %s, 6144" % (s(S_OC), s(S_T0)))
    p("s_add_u32 %s, %s, 0x%x" % (s(S_OC), s(S_OC), OFF_KV))
    p("s_mul_i32 %s, %s, 6144" % (s(S_T0), s(S_Q)))
    p("s_add_u32 %s, %s, %s" % (s(S_T0), s(S_T0), s(S_OC)))
    p("s_add_u32 %s, %s, 3072" % (s(S_T1), s(S_T0)))
    for t in range(6):
        p("buffer_store_dwordx4 %s, %s, %s, %s offen offset:%d sc1" % (v(KV + 4 * t, 4), v(V_L16), s(SWS, 4), s((S_T0, S_T1)[t // 3]), (t % 3) * 1024))
    p("s_waitcnt vmcnt(0)")
    p("s_barrier")
    p("v_mov_b32 v204, 1")
    p("s_mov_b64 exec, 1")
    p("buffer_store_dword v204, v203, %s, %s offen sc1" % (s(SWS, 4), s(S_FLAG)))
    p("s_mov_b64 exec, -1")
    wstamp(p, 3, "s96")
    p("v_lshlrev_b32 v1, 3, %s" % v(V_L16))
    p("s_and_b32 %s, %s, 0xfffffc00" % (s(S_T0), s(S_FLAG)))
    poll_flags(p, 1, S_T0, 8, 1, 2, sleep=2)
    p("v_and_b32 v1, 0xf0, %s" % v(V_L16))
    for q in range(8):
        p("s_add_u32 %s, %s, %d" % (s(S_T0), s(S_OC), q * 6144))
        p("s_add_u32 %s, %s, %d" % (s(S_T1), s(S_OC), q * 6144 + 3072))
        for t in range(6):
            p("buffer_load_dwordx4 %s, %s, %s, %s offen offset:%d sc1" % (v(8 + 24 * q + 4 * t, 4), v(V_L16) if t < 3 else "v1", s(SWS, 4), s((S_T0, S_T1)[t // 3]), (t % 3) * 1024))
    p("s_waitcnt vmcnt(0)")
    AK_ = 104
    for r in range(24):
        for q in range(1, 8):
            p("v_add_f32 %s, %s, %s" % (v(8 + r), v(8 + r), v(8 + 24 * q + r)))
    for t in range(6):
        p("v_cvt_pk_bf16_f32 %s, %s, %s" % (v(AK_ + 2 * t), v(8 + 4 * t), v(9 + 4 * t)))
        p("v_cvt_pk_bf16_f32 %s, %s, %s" % (v(AK_ + 2 * t + 1), v(10 + 4 * t), v(11 + 4 * t)))
    wstamp(p, 4, "s96")
    p("s_sub_u32 %s, %s, 16384" % (s(S_PQ), s(S_PQ)))
    p("s_mul_i32 %s, %s, %d" % (s(S_OC), s(S_Q), 16 * 146 * 1024))
    p("s_add_u32 %s, %s, 0x%x" % (s(S_OC), s(S_OC), OFF_OC))
    p("s_lshr_b32 %s, %s, 1" % (s(S_T0), s(S_HD)))
    p("s_lshl_b32 %s, %s, 10" % (s(S_T0), s(S_T0)))
    p("s_and_b32 %s, %s, 1" % (s(S_T1), s(S_HD)))
    p("s_lshl_b32 %s, %s, 3" % (s(S_T1), s(S_T1)))
    p("s_add_u32 s42, %s, %s" % (s(S_T0), s(S_T1)))
    p("s_add_u32 s42, s42, %d" % (128 * 1024))
    p("s_add_u32 s42, s42, %s" % s(S_OC))
    p("s_lshr_b32 %s, %s, 2" % (s(S_T0), s(S_HD)))
    p("s_lshl_b32 %s, %s, 8" % (s(S_T0), s(S_T0)))
    p("s_and_b32 %s, %s, 3" % (s(S_T1), s(S_HD)))
    p("s_lshl_b32 %s, %s, 2" % (s(S_T1), s(S_T1)))
    p("s_add_u32 s43, %s, %s" % (s(S_T0), s(S_T1)))
    p("s_add_u32 s43, s43, %d" % (144 * 1024))
    p("s_add_u32 s43, s43, %s" % s(S_OC))
    p("v_mov_b32 v9, 0")
    p("v_mov_b32 v11, 0")
    PQR = 128
    for it in range(8):
        p("buffer_load_dwordx4 %s, %s, %s, %s offen sc1" % (v(PQR + 6 * it, 4), v(V_L16), s(SWS, 4), s(S_PQ)))
        p("buffer_load_dwordx2 %s, %s, %s, %s offen offset:1024 sc1" % (v(PQR + 6 * it + 4, 2), v(V_L16), s(SWS, 4), s(S_PQ)))
        p("s_add_u32 %s, %s, 2048" % (s(S_PQ), s(S_PQ)))
    p("s_waitcnt vmcnt(0)")
    for it in range(8):
        q0 = PQR + 6 * it
        p("v_mov_b32 v8, %s" % v(q0 + 4))
        p("v_mov_b32 v10, %s" % v(q0 + 5))
        o = 16 + 24 * (it & 1)
        for rt in range(2):
            for E in range(3):
                acc = v(o + 12 * rt + 4 * E, 4)
                p("v_mfma_f32_16x16x16_bf16 %s, %s, %s, 0" % (acc, v(AK_ + 2 * E, 2), v(q0 + 2 * rt, 2)))
                p("v_mfma_f32_16x16x16_bf16 %s, %s, %s, %s" % (acc, v(AK_ + 2 * (3 + E), 2), v(8 + 2 * rt, 2), acc))
        for rt in range(2):
            b = o + 12 * rt
            p("v_add_f32 %s, 0x%x, %s" % (v(b + 8), EPS6, v(b + 8)))
            p("v_rcp_f32 %s, %s" % (v(b + 8), v(b + 8)))
            for r in (0, 1, 2, 3, 6, 7):
                p("v_mul_f32 %s, %s, %s" % (v(b + r), v(b + r), v(b + 8)))
            p("v_cvt_pk_bf16_f32 %s, %s, %s" % (v(b), v(b), v(b + 1)))
            p("v_cvt_pk_bf16_f32 %s, %s, %s" % (v(b + 1), v(b + 2), v(b + 3)))
            p("v_cvt_pk_bf16_f32 %s, %s, %s" % (v(b + 2), v(b + 6), v(b + 7)))
            p("buffer_store_dwordx2 %s, %s, %s, s42 offen sc1" % (v(b, 2), v(V_L16), s(SWS, 4)))
            p("s_mov_b64 exec, 0xffff")
            p("buffer_store_dword %s, %s, %s, s43 offen sc1" % (v(b + 2), v(V_L16), s(SWS, 4)))
            p("s_mov_b64 exec, -1")
            p("s_add_u32 s42, s42, %d" % (146 * 1024))
            p("s_add_u32 s43, s43, %d" % (146 * 1024))
    p("s_waitcnt vmcnt(0)")
    p("s_barrier")
    p("s_add_u32 %s, %s, %d" % (s(S_FLAG), s(S_FLAG), F_B2 - F_KV))
    p("s_mov_b64 exec, 1")
    p("buffer_store_dword v204, v203, %s, %s offen sc1" % (s(SWS, 4), s(S_FLAG)))
    p("s_mov_b64 exec, -1")
    p("s_branch %s" % done_label)


def gen_attn(p, done_label):
    S_SEG, S_HD, S_BASE, S_QT, S_EH = S_B, S_C_, S_D, S_E, S_F
    S_T0, S_T1, S_T2 = S_H_, S_I, S_J
    SENT = 0xFFBFFFBF
    p.c("---- mem projection + x-row attention role")
    p("s_mov_b32 s36, 0x%x" % f2u(DH ** -0.5 * math.log2(math.e)))
    p("s_lshr_b32 %s, %s, 2" % (s(S_HD), s(S_RANK)))
    p("s_and_b32 %s, %s, 3" % (s(S_SEG), s(S_RANK)))
    p("s_and_b32 %s, %s, 1" % (s(S_QT), s(S_WV)))
    p("s_lshr_b32 %s, %s, 1" % (s(S_EH), s(S_WV)))
    MF, QF, KF, VF, KM, VM, SC, PJ = 0, 72, 88, 120, 136, 152, 160, 172
    p("v_and_b32 v1, 15, %s" % v(V_LANE))
    p("s_lshl_b32 %s, %s, 4" % (s(S_T0), s(S_QT)))
    p("v_add_u32 v1, %s, v1" % s(S_T0))
    p("v_lshrrev_b32 v2, 4, %s" % v(V_LANE))
    p("v_lshlrev_b32 v3, 2, v2")
    for kt in range(2):
        for r in range(4):
            p("v_add_u32 v4, %d, v3" % (16 * kt + r))
            p("v_cmp_gt_u32 %s, v4, v1" % s(40 + 8 * kt + 2 * r, 2))
    p("s_mov_b32 s56, 0")
    p("s_mov_b32 s57, -1")
    p("v_mov_b32 v203, 0")
    p("v_lshrrev_b32 v204, 1, %s" % v(V_L16))
    p("v_and_b32 v4, 7, %s" % v(V_LANE))
    p("v_lshl_add_u32 v4, v2, 3, v4")
    p("v_lshlrev_b32 v202, 4, v4")
    p("s_lshl_b32 s58, %s, 9" % s(S_HD))
    p("s_lshr_b32 s59, %s, 1" % s(S_HD))
    p("s_lshl_b32 s59, s59, 8")
    p("s_add_u32 s59, s59, %d" % (128 * 128))
    p("v_mov_b32 v206, 0xff800000")
    p("s_lshl_b32 %s, %s, 11" % (s(S_T0), s(S_WV)))
    p("v_add_u32 v240, %s, %s" % (s(S_T0), v(V_L16)))
    p("s_lshl_b32 %s, %s, 11" % (s(S_T0), s(S_EH)))
    p("v_add_u32 v241, %s, %s" % (s(S_T0), v(V_L16)))
    top = p.newlabel("AL")
    p.label(top)
    p("s_lshr_b32 %s, %s, 4" % (s(S_T0), s(S_SEG)))
    p("s_lshl_b32 %s, %s, 7" % (s(S_T0), s(S_T0)))
    p("s_add_u32 %s, %s, s58" % (s(S_T0), s(S_T0)))
    p("v_mov_b32 v205, %s" % s(S_T0))
    p("s_lshr_b32 %s, %s, 5" % (s(S_T0), s(S_SEG)))
    p("s_lshl_b32 %s, %s, 7" % (s(S_T0), s(S_T0)))
    p("s_add_u32 %s, %s, s59" % (s(S_T0), s(S_T0)))
    p("v_writelane_b32 v205, %s, 1" % s(S_T0))
    p("s_and_b32 %s, %s, 15" % (s(S_T1), s(S_SEG)))
    p("s_add_u32 %s, %s, 1" % (s(S_T1), s(S_T1)))
    p("v_mov_b32 v242, %s" % s(S_T1))
    p("s_and_b32 %s, %s, 31" % (s(S_T1), s(S_SEG)))
    p("s_add_u32 %s, %s, 1" % (s(S_T1), s(S_T1)))
    p("v_writelane_b32 v242, %s, 1" % s(S_T1))
    p("s_mov_b32 %s, 0x%x" % (s(S_T0), OFF_FLAG + F_G1))
    poll_flags(p, 205, S_T0, 2, None, 207, cmp_vgpr=242)
    p("s_lshl_b32 %s, %s, 5" % (s(S_BASE), s(S_SEG)))
    p("s_add_u32 %s, %s, %s" % (s(S_BASE), s(S_BASE), s(S_HD)))
    p("s_lshl_b32 %s, %s, 13" % (s(S_T2), s(S_BASE)))
    p("s_lshl_b32 %s, %s, 12" % (s(S_T0), s(S_QT)))
    p("s_add_u32 %s, %s, %s" % (s(S_T0), s(S_T0), s(S_T2)))
    p("s_add_u32 %s, %s, 0x%x" % (s(S_T0), s(S_T0), OFF_QX))
    for i in range(4):
        p("buffer_load_dwordx4 %s, %s, %s, %s offen offset:%d sc1" % (v(QF + 4 * i, 4), v(V_L16), s(SWS, 4), s(S_T0), i * 1024))
    p("s_add_u32 %s, %s, 0x%x" % (s(S_T0), s(S_T2), OFF_KX))
    p("s_add_u32 %s, %s, 0x%x" % (s(S_T1), s(S_T2), OFF_KX + 4096))
    for i in range(8):
        p("buffer_load_dwordx4 %s, %s, %s, %s offen offset:%d sc1" % (v(KF + 4 * i, 4), v(V_L16), s(SWS, 4), s((S_T0, S_T1)[i // 4]), (i % 4) * 1024))
    p("s_lshl_b32 %s, %s, 12" % (s(S_T0), s(S_EH)))
    p("s_add_u32 %s, %s, %s" % (s(S_T0), s(S_T0), s(S_T2)))
    p("s_add_u32 %s, %s, 0x%x" % (s(S_T0), s(S_T0), OFF_VX))
    for i in range(4):
        p("buffer_load_dwordx4 %s, %s, %s, %s offen offset:%d sc1" % (v(VF + 4 * i, 4), v(V_L16), s(SWS, 4), s(S_T0), i * 1024))
    p("s_waitcnt vmcnt(4)")
    for kt in range(2):
        acc = v(SC + 4 * (1 + kt), 4)
        for ks in range(4):
            p("v_mfma_f32_16x16x32_bf16 %s, %s, %s, %s" % (acc, v(KF + 16 * kt + 4 * ks, 4), v(QF + 4 * ks, 4), "0" if ks == 0 else acc))
    p("s_mul_i32 %s, %s, 9216" % (s(S_T0), s(S_SEG)))
    p("s_add_u32 %s, %s, 0x%x" % (s(S_T0), s(S_T0), OFF_HIST))
    p("s_add_u32 %s, %s, 4096" % (s(S_T1), s(S_T0)))
    p("s_add_u32 %s, %s, 8192" % (s(S_T2), s(S_T0)))
    mp = p.newlabel("MP")
    mok = p.newlabel("MOK")
    pre = p.newlabel("MPRE")
    p.label(pre)
    p("buffer_load_dwordx4 %s, v202, %s, %s offen offset:512 sc1" % (v(MF + 68, 4), s(SWS, 4), s(S_T2)))
    p("s_waitcnt vmcnt(0)")
    p("v_cmp_eq_u32 vcc, 0x%x, %s" % (SENT, v(MF + 68)))
    p("s_cbranch_vccz %s" % mp)
    p("s_sleep 4")
    p("s_sub_u32 %s, %s, 1" % (s(S_BUDW), s(S_BUDW)))
    p("s_cbranch_scc0 %s" % pre)
    p("s_branch W_FAIL")
    p.label(mp)
    for ks in range(18):
        p("buffer_load_dwordx4 %s, v202, %s, %s offen offset:%d sc1" % (v(MF + 4 * ks, 4), s(SWS, 4), s((S_T0, S_T1, S_T2)[ks // 8]), (ks % 8) * 512))
    p("s_sub_u32 %s, %s, 1" % (s(S_BUDW), s(S_BUDW)))
    p("s_cbranch_scc1 W_FAIL")
    p("s_waitcnt vmcnt(0)")
    p("v_max3_u32 v207, %s, %s, %s" % (v(MF), v(MF + 1), v(MF + 2)))
    for k in range(3, 71, 2):
        p("v_max3_u32 v207, v207, %s, %s" % (v(MF + k), v(MF + k + 1)))
    p("v_max_u32 v207, v207, %s" % v(MF + 71))
    p("v_cmp_eq_u32 vcc, 0x%x, v207" % SENT)
    p("s_cbranch_vccnz %s" % mp)
    lv = p.newlabel("APV")
    le = p.newlabel("APE")
    p("s_cmp_lg_u32 %s, 0" % s(S_EH))
    p("s_cbranch_scc1 %s" % lv)
    for vtype in (0, 1):
        if vtype:
            p.label(lv)
        for ks in range(18):
            for t in range(4):
                acc = v(PJ + 4 * t, 4)
                c = "0" if ks == 0 else acc
                if vtype:
                    p("v_mfma_f32_16x16x32_bf16 %s, %s, %s, %s" % (acc, v(MF + 4 * ks, 4), bfrag(t * 18 + ks), c))
                else:
                    p("v_mfma_f32_16x16x32_bf16 %s, %s, %s, %s" % (acc, bfrag(t * 18 + ks), v(MF + 4 * ks, 4), c))
        if not vtype:
            p("s_branch %s" % le)
    p.label(le)
    for kt in range(2):
        for r in range(4):
            d = SC + 4 * (1 + kt) + r
            p("v_cndmask_b32 %s, %s, v206, %s" % (v(d), v(d), s(40 + 8 * kt + 2 * r, 2)))
    for i in range(8):
        p("v_cvt_pk_bf16_f32 %s, %s, %s" % (v(PJ + i), v(PJ + 2 * i), v(PJ + 2 * i + 1)))
    p("ds_write_b128 v240, %s" % v(PJ, 4))
    p("ds_write_b128 v240, %s offset:1024" % v(PJ + 4, 4))
    p("s_waitcnt lgkmcnt(0)")
    p("s_barrier")
    for ks in range(4):
        p("ds_read_b128 %s, %s offset:%d" % (v(KM + 4 * ks, 4), v(V_L16), ks * 1024))
    for i in range(2):
        p("ds_read_b128 %s, v241 offset:%d" % (v(VM + 4 * i, 4), 4096 + i * 1024))
    p("s_waitcnt lgkmcnt(2)")
    acc = v(SC, 4)
    for ks in range(4):
        p("v_mfma_f32_16x16x32_bf16 %s, %s, %s, %s" % (acc, v(KM + 4 * ks, 4), v(QF + 4 * ks, 4), "0" if ks == 0 else acc))
    PXr, PMr, RI, T0, T1 = 188, 192, 194, 195, 196
    b = SC
    n = 12
    for r in range(4):
        p("v_cndmask_b32 %s, %s, v206, s[56:57]" % (v(b + r), v(b + r)))
    M = T0
    p("v_max3_f32 %s, %s, %s, %s" % (v(M), v(b), v(b + 1), v(b + 2)))
    for k in range(3, 11, 2):
        p("v_max3_f32 %s, %s, %s, %s" % (v(M), v(M), v(b + k), v(b + k + 1)))
    p("v_max_f32 %s, %s, %s" % (v(M), v(M), v(b + 11)))
    for sw in ("16", "32"):
        p("v_mov_b32 %s, %s" % (v(T1), v(M)))
        p("v_permlane%s_swap_b32 %s, %s" % (sw, v(M), v(T1)))
        p("v_max_f32 %s, %s, %s" % (v(M), v(M), v(T1)))
    p("v_mul_f32 %s, s36, %s" % (v(M), v(M)))
    for r in range(n):
        p("v_fma_f32 %s, %s, s36, -%s" % (v(b + r), v(b + r), v(M)))
    for r in range(n):
        p("v_exp_f32 %s, %s" % (v(b + r), v(b + r)))
    L = RI
    p("v_add_f32 %s, %s, %s" % (v(L), v(b), v(b + 1)))
    for r in range(2, n):
        p("v_add_f32 %s, %s, %s" % (v(L), v(L), v(b + r)))
    for sw in ("16", "32"):
        p("v_mov_b32 %s, %s" % (v(T1), v(L)))
        p("v_permlane%s_swap_b32 %s, %s" % (sw, v(L), v(T1)))
        p("v_add_f32 %s, %s, %s" % (v(L), v(L), v(T1)))
    p("v_rcp_f32 %s, %s" % (v(L), v(L)))
    p("v_cvt_pk_bf16_f32 %s, %s, %s" % (v(PMr), v(b), v(b + 1)))
    p("v_cvt_pk_bf16_f32 %s, %s, %s" % (v(PMr + 1), v(b + 2), v(b + 3)))
    for i in range(4):
        p("v_cvt_pk_bf16_f32 %s, %s, %s" % (v(PXr + i), v(b + 4 + 2 * i), v(b + 5 + 2 * i)))
    p("s_waitcnt lgkmcnt(0)")
    p("s_lshl_b32 %s, %s, 1" % (s(S_T0), s(S_SEG)))
    p("s_add_u32 %s, %s, %s" % (s(S_T0), s(S_T0), s(S_QT)))
    p("s_mul_i32 %s, %s, %d" % (s(S_T0), s(S_T0), 146 * 1024))
    p("s_lshl_b32 %s, %s, 12" % (s(S_T1), s(S_HD)))
    p("s_add_u32 %s, %s, %s" % (s(S_T0), s(S_T0), s(S_T1)))
    p("s_lshl_b32 %s, %s, 11" % (s(S_T1), s(S_EH)))
    p("s_add_u32 %s, %s, %s" % (s(S_T0), s(S_T0), s(S_T1)))
    p("s_add_u32 %s, %s, 0x%x" % (s(S_T0), s(S_T0), OFF_OC))
    for et in range(4):
        p("v_mfma_f32_16x16x32_bf16 %s, %s, %s, 0" % (v(4 * et, 4), v(VF + 4 * et, 4), v(PXr, 4)))
    for et in range(4):
        p("v_mfma_f32_16x16x16_bf16 %s, %s, %s, %s" % (v(4 * et, 4), v(VM + 2 * et, 2), v(PMr, 2), v(4 * et, 4)))
    for tp in range(2):
        bb = 8 * tp
        for r in range(8):
            p("v_mul_f32 %s, %s, %s" % (v(bb + r), v(bb + r), v(RI)))
        d = 16 + 4 * tp
        for i in range(4):
            p("v_cvt_pk_bf16_f32 %s, %s, %s" % (v(d + i), v(bb + 2 * i), v(bb + 2 * i + 1)))
        p("buffer_store_dwordx4 %s, %s, %s, %s offen offset:%d sc1" % (v(d, 4), v(V_L16), s(SWS, 4), s(S_T0), tp * 1024))
    p("s_lshl_b32 %s, %s, 2" % (s(S_T0), s(S_BASE)))
    p("s_add_u32 %s, %s, 0x%x" % (s(S_T0), s(S_T0), OFF_FLAG + F_O))
    p("v_mov_b32 v207, 1")
    p("s_waitcnt vmcnt(0)")
    p("s_barrier")
    p("s_mov_b64 exec, 1")
    p("buffer_store_dword v207, v203, %s, %s offen sc1" % (s(SWS, 4), s(S_T0)))
    p("s_mov_b64 exec, -1")
    p("s_add_u32 %s, %s, 4" % (s(S_SEG), s(S_SEG)))
    p("s_cmp_lt_u32 %s, 64" % s(S_SEG))
    p("s_cbranch_scc1 %s" % top)
    p("s_branch %s" % done_label)


def gen_final(p, done_label, NG):
    S_U, S_SEG, S_NG, S_AB, S_BB, S_XB, S_PARW = S_A, S_B, S_C_, S_D, S_E, S_F, S_G
    S_T0, S_T1, S_T2 = S_H_, S_I, S_J
    p.c("---- final GEMM role")
    srd(p, SA, A_WO, H * DH * DM * 2)
    srd(p, SB, B_WO, DM * DM * 2)
    srd(p, SX, D_OUT, S * DM * 2)
    p("s_mov_b32 %s, 0" % s(S_SEG))
    p("s_mov_b32 %s, %s" % (s(S_NG), s(S_U)))
    for _ in range(NG - 1):
        p("s_cmp_ge_u32 %s, 18" % s(S_NG))
        p("s_cselect_b32 %s, 18, 0" % s(S_T0))
        p("s_cselect_b32 %s, 1, 0" % s(S_T1))
        p("s_sub_u32 %s, %s, %s" % (s(S_NG), s(S_NG), s(S_T0)))
        p("s_add_u32 %s, %s, %s" % (s(S_SEG), s(S_SEG), s(S_T1)))
    lane_fields(p, 1, 2, 3, 4)
    p("v_lshrrev_b32 v5, 2, %s" % v(V_LANE))
    p("v_mul_u32_u24 v6, 1152, v5")
    p("v_lshl_add_u32 v8, v4, 4, v6")
    p("s_lshl_b32 %s, %s, 6" % (s(S_T0), s(S_NG)))
    p("v_add_u32 v8, %s, v8" % s(S_T0))
    p("v_lshrrev_b32 v6, 1, v5")
    p("v_mul_u32_u24 v6, 18, v6")
    p("v_and_b32 v7, 1, v5")
    p("v_add3_u32 v6, v6, v7, 16")
    p("v_mul_u32_u24 v6, 1152, v6")
    p("v_lshl_add_u32 v9, v4, 4, v6")
    p("v_add_u32 v9, %s, v9" % s(S_T0))
    p("v_lshl_add_u32 v5, v2, 2, v3")
    p("v_lshlrev_b32 v5, 6, v5")
    p("v_lshl_add_u32 v5, v4, 3, v5")
    p("s_mul_i32 %s, %s, 36864" % (s(S_K), s(S_WV)))
    p("v_add_u32 v10, %s, v5" % s(S_K))
    p("v_lshl_add_u32 v5, v2, 3, v3")
    p("v_lshlrev_b32 v5, 6, v5")
    p("v_lshl_add_u32 v5, v4, 3, v5")
    p("v_add_u32 v11, %s, v5" % s(S_K))
    p("s_mul_i32 %s, %s, %d" % (s(S_L), s(S_WV), 1024 * 1152))
    p("s_waitcnt lgkmcnt(0)")

    SL = 9216

    def issue(c):
        slot = c % 4
        if c < 8:
            for i in range(8):
                p("s_add_u32 m0, %s, %d" % (s(S_K), slot * SL + i * 1024))
                p("s_add_u32 %s, %s, %d" % (s(S_T0), s(S_L), (128 * c + 16 * i) * 1152))
                p("buffer_load_dwordx4 v8, %s, %s offen lds" % (s(SA, 4), s(S_T0)))
            return 8
        if c == 8:
            p("s_mul_i32 %s, %s, %d" % (s(S_T1), s(S_WV), 144 * 1152))
            for i in range(9):
                p("s_add_u32 m0, %s, %d" % (s(S_K), slot * SL + i * 1024))
                p("s_add_u32 %s, %s, %d" % (s(S_T0), s(S_T1), 16 * i * 1152))
                p("buffer_load_dwordx4 v8, %s, %s offen lds" % (s(SB, 4), s(S_T0)))
            return 9
        p("s_mul_i32 %s, %s, %d" % (s(S_T1), s(S_WV), 16 * 18 * 1152))
        for i in range(2):
            p("s_add_u32 m0, %s, %d" % (s(S_K), slot * SL + i * 1024))
            p("s_add_u32 %s, %s, %d" % (s(S_T0), s(S_T1), 8 * 18 * 1152 * i))
            p("buffer_load_dwordx4 v9, %s, %s offen lds" % (s(SB, 4), s(S_T0)))
        return 2

    cnt = []
    for c in range(4):
        cnt.append(issue(c))
    for c in range(10):
        slot = c % 4
        p("s_waitcnt vmcnt(%d)" % sum(cnt[c + 1:]))
        if c < 8:
            for tp in range(4):
                for nt in range(2):
                    for hf in range(2):
                        p("ds_read_b64_tr_b16 %s, v10 offset:%d" % (bfrag((4 * c + tp) * 2 + nt, 2 * hf, 2), slot * SL + (32 * tp + 16 * hf) * 64 + nt * 32))
        elif c == 8:
            for i in range(4):
                for nt in range(2):
                    for hf in range(2):
                        p("ds_read_b64_tr_b16 %s, v10 offset:%d" % (bfrag((32 + i) * 2 + nt, 2 * hf, 2), slot * SL + (36 * i + 18 * hf) * 64 + nt * 32))
        else:
            for nt in range(2):
                for hf in range(2):
                    p("ds_read_b64_tr_b16 %s, v11 offset:%d" % (bfrag(36 * 2 + nt, 2 * hf, 2), slot * SL + 4 * hf * 64 + nt * 32))
        if len(cnt) < 10:
            p("s_waitcnt lgkmcnt(0)")
            cnt.append(issue(len(cnt)))
    p("s_waitcnt lgkmcnt(0)")
    p("s_barrier")
    wstamp(p, 4, "s96")
    p("v_lshlrev_b32 v1, 3, %s" % v(V_L16))
    p("s_mov_b32 %s, 0x%x" % (s(S_T0), OFF_FLAG + F_B2))
    poll_flags(p, 1, S_T0, 64, 1, 2)
    wstamp(p, 5, "s96")
    p("v_lshlrev_b32 v203, 2, %s" % v(V_LANE))
    p("v_and_b32 v204, 60, v203")
    p("v_and_b32 v1, 15, %s" % v(V_LANE))
    p("v_mul_u32_u24 v1, 1152, v1")
    p("v_lshrrev_b32 v2, 4, %s" % v(V_LANE))
    p("v_lshl_add_u32 v205, v2, 3, v1")
    p("s_lshr_b32 %s, %s, 1" % (s(S_T0), s(S_WV)))
    p("s_mul_i32 %s, %s, %d" % (s(S_T0), s(S_T0), 16 * 1152))
    p("s_and_b32 %s, %s, 1" % (s(S_T1), s(S_WV)))
    p("s_lshl_b32 %s, %s, 5" % (s(S_T1), s(S_T1)))
    p("s_add_u32 %s, %s, %s" % (s(S_T0), s(S_T0), s(S_T1)))
    p("s_lshl_b32 %s, %s, 6" % (s(S_T1), s(S_NG)))
    p("s_add_u32 %s, %s, %s" % (s(S_T0), s(S_T0), s(S_T1)))
    p("v_add_u32 v205, %s, v205" % s(S_T0))
    p("s_lshl_b32 %s, %s, 12" % (s(S_T0), s(S_WV)))
    p("v_add_u32 v206, %s, %s" % (s(S_T0), v(V_L16)))
    p("s_lshl_b32 %s, %s, 10" % (s(S_T0), s(S_WV)))
    p("v_add_u32 v207, %s, %s" % (s(S_T0), v(V_L16)))
    RING = 40
    NR = 40
    ACA, ACB, GV = 0, 16, 32
    top = p.newlabel("FL")
    p.label(top)
    p("s_mul_i32 %s, %s, %d" % (s(S_T0), s(S_SEG), 2 * 146 * 1024))
    p("s_add_u32 %s, %s, 0x%x" % (s(S_T0), s(S_T0), OFF_OC))
    p("s_lshl_b32 %s, %s, 15" % (s(S_T1), s(S_WV)))
    p("s_add_u32 %s, %s, %s" % (s(S_AB), s(S_T0), s(S_T1)))
    p("s_lshl_b32 %s, %s, 12" % (s(S_T1), s(S_WV)))
    p("s_add_u32 %s, %s, %s" % (s(S_BB), s(S_T0), s(S_T1)))
    p("s_add_u32 %s, %s, %d" % (s(S_BB), s(S_BB), 128 * 1024))
    p("s_and_b32 %s, %s, 1" % (s(S_T1), s(S_WV)))
    p("s_lshl_b32 %s, %s, 10" % (s(S_T1), s(S_T1)))
    p("s_add_u32 %s, %s, %s" % (s(S_XB), s(S_T0), s(S_T1)))
    p("s_add_u32 %s, %s, %d" % (s(S_XB), s(S_XB), 144 * 1024))
    for rt in range(2):
        if rt:
            p("s_add_u32 %s, %s, %d" % (s(S_BB), s(S_BB), 146 * 1024))
            p("s_add_u32 %s, %s, %d" % (s(S_XB), s(S_XB), 146 * 1024))
        for i in range(4):
            p("buffer_load_dwordx4 %s, %s, %s, %s offen offset:%d sc1" % (v(RING + 4 * (5 * rt + i), 4), v(V_L16), s(SWS, 4), s(S_BB), i * 1024))
        p("buffer_load_dwordx4 %s, %s, %s, %s offen sc1" % (v(RING + 4 * (5 * rt + 4), 4), v(V_L16), s(SWS, 4), s(S_XB)))
    p("s_lshl_b32 %s, %s, 7" % (s(S_T0), s(S_SEG)))
    p("s_add_u32 %s, %s, 0x%x" % (s(S_T1), s(S_T0), OFF_G))
    p("buffer_load_dword %s, v204, %s, %s offen sc1" % (v(GV), s(SWS, 4), s(S_T1)))
    p("buffer_load_dword %s, v204, %s, %s offen offset:64 sc1" % (v(GV + 1), s(SWS, 4), s(S_T1)))
    p("s_waitcnt vmcnt(0)")
    for rt in range(2):
        for i in range(5):
            for nt in range(2):
                acc = v(ACB + 8 * rt + 4 * nt, 4)
                p("v_mfma_f32_16x16x32_bf16 %s, %s, %s, %s" % (acc, bfrag((32 + i) * 2 + nt), v(RING + 4 * (5 * rt + i), 4), "0" if i == 0 else acc))
    p("s_lshl_b32 %s, %s, 5" % (s(S_T1), s(S_WV)))
    p("s_add_u32 %s, %s, %s" % (s(S_T0), s(S_T0), s(S_T1)))
    p("s_add_u32 %s, %s, 0x%x" % (s(S_T0), s(S_T0), OFF_FLAG + F_O))
    poll_flags(p, 203, S_T0, 8, 1, 34, sleep=2)

    def aload(f):
        rt, ks = divmod(f, 32)
        if f % 4 == 0:
            p("s_add_u32 %s, %s, %d" % (s(S_T2), s(S_AB), rt * 146 * 1024 + ks * 1024))
        p("buffer_load_dwordx4 %s, %s, %s, %s offen offset:%d sc1" % (v(RING + 4 * (f % NR), 4), v(V_L16), s(SWS, 4), s(S_T2), (f % 4) * 1024))

    for f in range(NR):
        aload(f)
    for f in range(64):
        rt, ks = divmod(f, 32)
        p("s_waitcnt vmcnt(%d)" % (min(NR - 2, 63 - f) if f else NR - 1))
        for nt in range(2):
            acc = v(ACA + 8 * rt + 4 * nt, 4)
            p("v_mfma_f32_16x16x32_bf16 %s, %s, %s, %s" % (acc, bfrag(ks * 2 + nt), v(RING + 4 * (f % NR), 4), "0" if ks == 0 else acc))
            if nt == 0 and f >= 1 and f - 1 + NR < 64:
                aload(f - 1 + NR)
    for rt in range(2):
        for r in range(8):
            i = 8 * rt + r
            p("v_sub_f32 %s, %s, %s" % (v(ACA + i), v(ACA + i), v(ACB + i)))
            p("v_fma_f32 %s, %s, %s, %s" % (v(ACA + i), v(ACA + i), v(GV + rt), v(ACB + i)))
    for t in range(4):
        p("ds_write_b128 v206, %s offset:%d" % (v(ACA + 4 * t, 4), t * 1024))
    p("s_waitcnt lgkmcnt(0)")
    p("s_barrier")
    for ww in range(4):
        p("ds_read_b128 %s, v207 offset:%d" % (v(ACB + 4 * ww, 4), ww * 4096))
    p("v_xor_b32 v206, 16384, v206")
    p("v_xor_b32 v207, 16384, v207")
    p("s_mul_i32 %s, %s, %d" % (s(S_T0), s(S_SEG), 32 * 1152))
    p("s_waitcnt lgkmcnt(0)")
    for r in range(4):
        p("v_add_f32 %s, %s, %s" % (v(ACB + r), v(ACB + r), v(ACB + 4 + r)))
        p("v_add_f32 %s, %s, %s" % (v(ACB + 8 + r), v(ACB + 8 + r), v(ACB + 12 + r)))
        p("v_add_f32 %s, %s, %s" % (v(ACB + r), v(ACB + r), v(ACB + 8 + r)))
    p("v_cvt_pk_bf16_f32 v36, %s, %s" % (v(ACB), v(ACB + 1)))
    p("v_cvt_pk_bf16_f32 v37, %s, %s" % (v(ACB + 2), v(ACB + 3)))
    p("buffer_store_dwordx2 v[36:37], v205, %s, %s offen" % (s(SX, 4), s(S_T0)))
    p("s_add_u32 %s, %s, %d" % (s(S_SEG), s(S_SEG), NG))
    p("s_cmp_lt_u32 %s, 64" % s(S_SEG))
    p("s_cbranch_scc1 %s" % top)
    p("s_branch %s" % done_label)
```

```python
import sys
from asmlib import *
from layout import *
import rec
import worker as wk

kw = dict(a.split("=") for a in sys.argv[2:] if "=" in a)
kw = {k: (int(x) if x.isdigit() else x) for k, x in kw.items()}
NP = kw.pop("NP", 2)
NG = kw.pop("NG", 3)
OVF = kw.pop("OVF", 32)
wk.TSTAMP[0] = bool(kw.pop("TS", 0))
NAME = "gated_mix__memory_aug_recurrent_mem_tr__linear_attn_block__prompt"

q = Prog()
NI = 64
q("s_cmp_ge_u32 s2, %d" % NI)
q("s_cbranch_scc1 I_DONE")
wk.srd(q, 4, D_WS, WS_BYTES)
q("s_lshl_b32 s3, s2, 12")
q("v_lshlrev_b32 v1, 4, v0")
q("v_add_u32 v1, s3, v1")
for r in range(4):
    q("v_mov_b32 v%d, 0x%x" % (4 + r, rec.SENT))
    q("v_mov_b32 v%d, 0" % (8 + r))
q("s_waitcnt lgkmcnt(0)")
for o in (OFF_PB2, OFF_PB2 + 0x40000, OFF_PB2 + PB_STR, OFF_PB2 + PB_STR + 0x40000):
    q("s_mov_b32 s8, 0x%x" % o)
    q("buffer_store_dwordx4 v[8:11], v1, s[4:7], s8 offen")
for o in (OFF_MB, OFF_MB + 0x40000, OFF_MB + 0x80000):
    q("s_mov_b32 s8, 0x%x" % o)
    q("buffer_store_dwordx4 v[4:7], v1, s[4:7], s8 offen")
q("s_cmp_ge_u32 s2, 16")
q("s_cbranch_scc1 I_DONE")
q("s_mov_b32 s8, 0x%x" % OFF_FLAG)
q("buffer_store_dwordx4 v[8:11], v1, s[4:7], s8 offen")
q.label("I_DONE")
q("s_endpgm")

p = Prog()
p("s_cmp_ge_u32 s2, 256")
p("s_cbranch_scc1 X_DONE")
RC = OFF_FLAG + F_ROLE
wk.srd(p, 12, D_WS, WS_BYTES)
p("s_getreg_b32 s3, hwreg(HW_REG_XCC_ID, 0, 3)")
p("v_lshrrev_b32 v1, 6, v0")
p("v_mov_b32 v2, 1")
p("v_readfirstlane_b32 s20, v1")
p("s_lshl_b32 s21, s3, 7")
p("v_mov_b32 v3, s21")
p("v_mov_b32 v4, 0")
p("s_mov_b32 s22, 2000000")
p("s_mov_b32 s23, 0x%x" % RC)
p("s_waitcnt lgkmcnt(0)")
p("s_cmp_lg_u32 s20, 0")
p("s_cbranch_scc1 ROLE_WAIT")
p("s_mov_b64 exec, 1")
p("buffer_atomic_add v2, v3, s[12:15], s23 offen sc0")
p("s_waitcnt vmcnt(0)")
p("v_readfirstlane_b32 s24, v2")
p("v_mov_b32 v2, 1")
p("buffer_atomic_add v2, v4, s[12:15], s23 offen offset:1024")
p("s_lshl_b32 s21, s3, 5")
p("s_add_u32 s21, s21, s24")
p("s_cmp_lt_u32 s24, %d" % OVF)
p("s_cbranch_scc1 ROLE_SET")
p("v_mov_b32 v5, 1")
p("buffer_atomic_add v5, v4, s[12:15], s23 offen offset:1152 sc0")
p.label("ROLE_P")
p("buffer_load_dword v6, v4, s[12:15], s23 offen offset:1024 sc1")
p("s_waitcnt vmcnt(0)")
p("v_readfirstlane_b32 s24, v6")
p("s_sub_u32 s22, s22, 1")
p("s_cbranch_scc1 ROLE_GIVEUP")
p("s_cmp_lt_u32 s24, 256")
p("s_cbranch_scc1 ROLE_P")
p("v_readfirstlane_b32 s25, v5")
for x in range(8):
    p("buffer_load_dword v6, v4, s[12:15], s23 offen offset:%d sc1" % (128 * x))
    p("s_waitcnt vmcnt(0)")
    p("v_readfirstlane_b32 s24, v6")
    p("s_min_u32 s24, s24, %d" % OVF)
    p("s_sub_u32 s26, 32, s24")
    p("s_add_u32 s21, s24, s25")
    p("s_add_u32 s21, s21, %d" % (32 * x))
    p("s_cmp_lt_u32 s25, s26")
    p("s_cbranch_scc1 ROLE_SET")
    p("s_sub_u32 s25, s25, s26")
p.label("ROLE_GIVEUP")
p("s_mov_b32 s21, 1000")
p.label("ROLE_SET")
p("v_mov_b32 v2, s21")
p("ds_write_b32 v4, v2")
p("s_mov_b64 exec, -1")
p("s_waitcnt lgkmcnt(0)")
p.label("ROLE_WAIT")
p("s_barrier")
p("ds_read_b32 v2, v4")
p("s_waitcnt lgkmcnt(0)")
p("v_readfirstlane_b32 s21, v2")
p("s_barrier")
p("s_cmp_ge_u32 s21, 256")
p("s_cbranch_scc1 X_DONE")
p("s_mov_b32 s96, s21")
if wk.TSTAMP[0]:
    wk.srd(p, 4, D_WS, WS_BYTES)
    p("s_waitcnt lgkmcnt(0)")
    wk.wstamp(p, 1, "s96")
p("s_cmp_ge_u32 s21, 32")
p("s_cbranch_scc1 WORKER")
p("s_mov_b32 %s, s21" % s(rec.S_H))
rec.gen_rec(p, census=OVF, TS=wk.TSTAMP[0], **kw)
p.label("WORKER")
p("s_sub_u32 %s, s21, 32" % s(wk.S_RANK))
wk.worker_setup(p)
p("s_cmp_ge_u32 %s, 160" % s(wk.S_RANK))
p("s_cbranch_scc1 W_BB")
wk.gen_gemm1(p, "W_NEXT")
p.label("W_BB")
wk.gen_bbranch(p, "W_FIN")
p.label("W_NEXT")
wk.wstamp(p, 3, "s96")
p("s_cmp_ge_u32 %s, 128" % s(wk.S_RANK))
p("s_cbranch_scc1 REC_DONE")
wk.gen_attn(p, "REC_DONE")
p.label("W_FIN")
wk.wstamp(p, 6, "s96")
p("s_sub_u32 %s, %s, 160" % (s(wk.S_A), s(wk.S_RANK)))
p("s_cmp_ge_u32 %s, %d" % (s(wk.S_A), 18 * NG))
p("s_cbranch_scc1 REC_DONE")
wk.gen_final(p, "REC_DONE", NG)
p.label("REC_FAIL")
p.label("W_FAIL")
p("s_load_dwordx2 s[12:13], s[0:1], %d" % (D_DBG * 8))
p("s_mov_b32 s14, 256")
p("s_mov_b32 s15, 0x20000")
p("v_mov_b32 v0, 0")
p("v_mov_b32 v1, s2")
p("v_add_u32 v1, 0x1000, v1")
p("s_waitcnt lgkmcnt(0)")
p("buffer_store_dword v1, v0, s[12:15], 0 offen offset:64")
p("s_endpgm")
p.label("REC_DONE")
wk.wstamp(p, 7, "s96")
p.label("X_DONE")
p("s_endpgm")
l0 = fix_hazards(q.lines)
l1 = fix_hazards(p.lines, verbose=True)
txt = build_file([("init_kernel", NI, 256, 0), ("main_kernel", 256, 256, 163840)],
                 [("init_kernel", l0, 16, 16, 16), ("main_kernel", l1, 512, 102, 256)])
open(sys.argv[1], "w").write(txt)
print(len(l1), "lines", len(txt), "bytes")
```

```python
import math
import struct
from asmlib import *
from layout import *

L_MEM = 0
L_Q = 9216
L_O = L_Q
L_K = 11264
L_PX = L_K
L_PM = L_K + 512
L_RI = L_K + 1024
L_SX = 13312
L_WL = 16384
LDS_BYTES = 163840

MA = 0
AQ = 36
AK = 44
KXF = 52
QF = 60
VXF = 52
STG0 = 64
IDX = 72
L16 = 73
TRA = 74
QWA = 75
SXR = 76
T0, T1, T2 = 77, 78, 79

SWS = 4
SW = 8
S_H, S_W, S_STEP, S_BUD = 16, 17, 18, 19
S_MB, S_M0, S_KX0, S_KX1, S_VX, S_KM, S_VM, S_PB = 20, 21, 22, 23, 24, 25, 26, 27
S_U, S_RL, S_PUB = 28, 29, 30
S_T0 = 31
S_PUBM = 32
S_PART = 34
S_C = 36
S_W512 = 37
S_T1, S_T2, S_T3 = 38, 39, 40
S_STAMP = 42
S_STO = 44
S_SAFE = 45
S_PAR = 46
SENT = 0xFFBFFFBF
S_SENT = 47
S_HIST = 41
S_TF, S_KVF, S_KVC = 42, 43, 45
S_C2, S_Q2, S_NC = 92, 94, 91
S_PH, S_PMB, S_H288 = 90, 100, 101


def f2u(x):
    return struct.unpack("<I", struct.pack("<f", x))[0]


def wt_reg(mat, j, tt, r, n):
    i = (mat * 9 + j) * 2 + tt
    if i < 32:
        return a(8 * i + r, n)
    return v(80 + 8 * (i - 32) + r, n)


def wt(mat, j, tt):
    return wt_reg(mat, j, tt, 0, 8)


def slot_addr(t, w):
    if t < 16:
        return L_WL + t * 8192 + w * 2048
    return L_WL + 131072 + (t - 16) * 4096 + (w - 2) * 2048


def lref(addr):
    b, off = divmod(addr, 65536)
    if off > 65536 - 2048:
        raise ValueError("tile straddles base")
    return v([L16, T1, T2][b]), off


def smf(acc, A, B):
    return "v_smfmac_f32_16x16x64_bf16 %s, %s, %s, %s" % (v(acc, 4), v(A, 4), B, v(IDX))


def gen_rec(p, nsteps=63, stamps=False, st_flags="", EXP="sc1", NQKL=4, DEP=2, FD0=0, FD1=0, C1=6, RDEP=2,
            R0=0, R1=0, R2=0, Q0=0, Q1=0, Q2=0, hist=1, RT=0, flags=1, census=0, TS=0, KVS=0x40000, EXS=0x20000, PFW=2, NOEXP=0, B3=1, V0=1, V1=0, V2=0, F2E=1, TW=2, SETMID=1):
    VW = [x if x < 9 else -1 for x in (V0, V1, V2)]
    RD0 = [R0, R1, R2]
    RD1 = [Q0, Q1, Q2]
    ST = st_flags

    NSTAMP = 15

    def stamp(k):
        if not stamps or k >= 15:
            return
        p("%s %s" % ("s_memrealtime" if RT else "s_memtime", s(60 + 2 * k, 2)))

    def flush_stamps():
        if not stamps:
            return
        p("s_waitcnt lgkmcnt(0)")
        for k in range(NSTAMP):
            p("v_writelane_b32 %s, %s, %d" % (v(T2), s(60 + 2 * k), k))
        p("v_lshrrev_b32 %s, 2, %s" % (v(T1), v(L16)))
        p("s_mov_b64 exec, 0xfffff")
        p("buffer_store_dword %s, %s, %s, %s offen" % (v(T2), v(T1), s(SWS, 4), s(S_STO)))
        p("s_mov_b64 exec, -1")

    p.c("---- recurrence setup")
    p("s_load_dwordx2 %s, s[0:1], %d" % (s(SWS, 2), D_WS * 8))
    p("s_load_dwordx2 s[48:49], s[0:1], %d" % (A_WQ * 8))
    p("s_load_dwordx2 s[50:51], s[0:1], %d" % (A_WK * 8))
    p("s_load_dwordx2 s[52:53], s[0:1], %d" % (A_WV * 8))
    p("s_load_dwordx2 s[54:55], s[0:1], %d" % (A_WO * 8))
    p("s_load_dwordx2 s[56:57], s[0:1], %d" % (A_MEM0 * 8))
    p("v_lshrrev_b32 v1, 6, v0")
    p("v_and_b32 v0, 63, v0")
    p("v_readfirstlane_b32 %s, v1" % s(S_W))
    p("s_mov_b32 %s, %d" % (s(SWS + 2), WS_BYTES))
    p("s_mov_b32 %s, 0x20000" % s(SWS + 3))
    p("s_mov_b32 %s, %d" % (s(SW + 2), DM * H * DH * 2))
    p("s_mov_b32 %s, 0x20000" % s(SW + 3))
    p("s_mov_b32 %s, 0x00ff00ff" % s(S_PUBM))
    p("s_mov_b32 %s, 0x00ff00ff" % s(S_PUBM + 1))
    p("s_mov_b32 %s, 0xff00ff00" % s(S_PART))
    p("s_mov_b32 %s, 0xff00ff00" % s(S_PART + 1))
    p("s_mov_b32 %s, 0x%x" % (s(S_C), f2u(DH ** -0.5 * math.log2(math.e))))
    p("s_mov_b32 %s, 1000000" % s(S_BUD))
    p("s_mov_b32 %s, %s" % (s(S_C2), s(S_C)))
    p("s_mov_b32 %s, %s" % (s(S_C2 + 1), s(S_C)))
    p("s_mov_b32 %s, 0x3e800000" % s(S_Q2))
    p("s_mov_b32 %s, 0x3e800000" % s(S_Q2 + 1))
    p("s_xor_b32 %s, %s, 0x80000000" % (s(S_NC), s(S_C)))
    p("s_mov_b32 %s, 0x%x" % (s(S_SENT), SENT))
    p("s_lshl_b32 %s, %s, 9" % (s(S_W512), s(S_W)))
    p("v_and_b32 v1, 15, v0")
    p("v_lshrrev_b32 v2, 4, v0")
    p("v_bfe_u32 v3, v0, 2, 2")
    p("v_and_b32 v4, 3, v0")
    p("v_lshlrev_b32 %s, 4, v0" % v(L16))
    p("v_mov_b32 %s, 0x4444" % v(IDX))
    p("v_mov_b32 v5, 0xeeee")
    p("v_cndmask_b32 %s, %s, v5, %s" % (v(IDX), v(IDX), s(S_PART, 2)))
    p("v_lshl_add_u32 v5, v2, 2, v3")
    p("v_lshlrev_b32 v5, 4, v5")
    p("v_and_b32 v6, 1, v4")
    p("v_lshl_add_u32 %s, v6, 3, v5" % v(TRA))
    p("v_lshrrev_b32 v5, 5, v0")
    p("v_lshl_add_u32 v5, v5, 4, v1")
    p("v_lshlrev_b32 v5, 4, v5")
    p("v_and_b32 v6, 1, v2")
    p("v_lshl_add_u32 %s, v6, 3, v5" % v(QWA))
    p("v_and_b32 v5, 7, v0")
    p("v_lshl_add_u32 v5, v2, 3, v5")
    p("v_lshlrev_b32 %s, 4, v5" % v(SXR))
    p("s_waitcnt lgkmcnt(0)")

    p("s_lshl_b32 %s, %s, 2" % (s(S_T0), s(S_H)))
    p("s_add_u32 %s, %s, %s" % (s(S_T0), s(S_T0), s(S_W)))
    p("s_lshl_b32 %s, %s, 13" % (s(S_T0), s(S_T0)))
    p("s_add_u32 %s, %s, 0x%x" % (s(S_STO), s(S_T0), OFF_STAMP))

    p("s_lshl_b32 %s, %s, 5" % (s(S_U), s(S_W)))
    p("s_add_u32 %s, %s, %s" % (s(S_U), s(S_U), s(S_H)))

    lab = p.newlabel("NOPUB0")
    p("s_cmp_ge_u32 %s, 72" % s(S_U))
    p("s_cbranch_scc1 %s" % lab)
    p("s_mov_b32 %s, s56" % s(12))
    p("s_mov_b32 %s, s57" % s(13))
    p("s_mov_b32 %s, 9216" % s(14))
    p("s_mov_b32 %s, 0x20000" % s(15))
    p("v_and_b32 v5, 1, v2")
    p("v_lshlrev_b32 v5, 3, v5")
    p("v_lshrrev_b32 v6, 1, v2")
    p("v_lshl_add_u32 v7, v6, 2, v5")
    p("v_and_b32 v5, 7, v0")
    p("v_mul_u32_u24 v6, 1152, v5")
    p("v_add_u32 v6, v6, v7")
    p("v_lshl_add_u32 v7, v5, 4, v7")
    p("s_lshl_b32 %s, %s, 4" % (s(S_T0), s(S_U)))
    p("s_lshl_b32 %s, %s, 7" % (s(S_T1), s(S_U)))
    p("s_add_u32 %s, %s, 0x%x" % (s(S_T1), s(S_T1), OFF_MB))
    p("s_mov_b64 exec, %s" % s(S_PUBM, 2))
    p("buffer_load_dword v8, v6, s[12:15], %s offen" % s(S_T0))
    p("s_waitcnt vmcnt(0)")
    p("v_cmp_eq_u32 vcc, 0x%x, v8" % SENT)
    p("v_mov_b32 v9, 0xffffffff")
    p("v_cndmask_b32 v8, v8, v9, vcc")
    p("buffer_store_dword v8, v7, %s, %s offen sc1" % (s(SWS, 4), s(S_T1)))
    p("s_mov_b64 exec, -1")
    p("s_waitcnt vmcnt(0)")
    p.label(lab)
    p("s_load_dwordx2 s[12:13], s[0:1], %d" % (D_DBG * 8))
    p("s_mov_b32 s14, 256")
    p("s_mov_b32 s15, 0x20000")
    p("s_waitcnt lgkmcnt(0)")

    p.c("---- weight load through LDS with transposing reads")
    p("v_and_b32 v5, 1, v2")
    p("s_lshl_b32 %s, %s, 1" % (s(S_T0), s(S_W)))
    p("v_or_b32 v5, %s, v5" % s(S_T0))
    p("v_lshlrev_b32 v5, 1, v5")
    p("v_xor_b32 v5, v5, v1")
    p("v_lshlrev_b32 v5, 4, v5")
    p("v_lshl_add_u32 v8, v2, 13, v5")
    p("s_lshl_b32 %s, %s, 15" % (s(S_T0), s(S_W)))
    p("s_lshl_b32 %s, %s, 8" % (s(S_T1), s(S_H)))
    p("s_add_u32 %s, %s, %s" % (s(S_T0), s(S_T0), s(S_T1)))
    p("v_add_u32 v8, %s, v8" % s(S_T0))
    p("v_and_b32 v5, 1, v2")
    p("s_and_b32 %s, %s, 1" % (s(S_T0), s(S_W)))
    p("s_lshl_b32 %s, %s, 1" % (s(S_T0), s(S_T0)))
    p("v_or_b32 v5, %s, v5" % s(S_T0))
    p("v_lshlrev_b32 v5, 2, v5")
    p("v_xor_b32 v5, v5, v1")
    p("v_lshlrev_b32 v5, 4, v5")
    p("v_mul_u32_u24 v6, 1152, v2")
    p("v_add_u32 v9, v5, v6")
    p("s_mul_i32 %s, %s, %d" % (s(S_T0), s(S_W), 16 * 1152))
    p("s_mul_i32 %s, %s, 147456" % (s(S_T1), s(S_H)))
    p("s_add_u32 %s, %s, %s" % (s(S_T0), s(S_T0), s(S_T1)))
    p("v_add_u32 v9, %s, v9" % s(S_T0))
    p("v_and_b32 v5, 7, v0")
    p("v_lshlrev_b32 v5, 4, v5")
    p("v_lshrrev_b32 v6, 3, v0")
    p("v_mul_u32_u24 v6, 1152, v6")
    p("s_mul_i32 %s, %s, %d" % (s(S_T0), s(S_W), 32 * 1152))
    p("s_add_u32 %s, %s, %s" % (s(S_T0), s(S_T0), s(S_T1)))
    p("s_add_u32 %s, %s, 1024" % (s(S_T0), s(S_T0)))
    p("v_add_u32 v6, %s, v6" % s(S_T0))
    p("v_add_u32 v60, v5, v6")
    p("v_xor_b32 v5, 64, v5")
    p("v_add_u32 v61, v5, v6")
    p("v_lshrrev_b32 v5, 1, v2")
    p("v_lshlrev_b32 v5, 4, v5")
    p("v_and_b32 v6, 1, v2")
    p("v_lshl_add_u32 v5, v6, 2, v5")
    p("v_and_b32 v7, 1, v3")
    p("v_add_u32 v5, v5, v7")
    p("v_lshrrev_b32 v10, 1, v3")
    p("v_lshl_add_u32 v5, v10, 3, v5")
    p("v_lshl_or_b32 v11, v6, 1, v7")
    p("v_lshl_or_b32 v11, v10, 2, v11")
    p("s_lshl_b32 %s, %s, 1" % (s(S_T0), s(S_W)))
    p("v_xor_b32 v12, %s, v11" % s(S_T0))
    p("v_lshlrev_b32 v12, 5, v12")
    p("v_lshl_add_u32 v12, v4, 3, v12")
    p("v_lshl_add_u32 v12, v5, 8, v12")
    p("v_add_u32 v12, %d, v12" % L_WL)
    p("v_xor_b32 v13, 32, v12")
    p("v_lshrrev_b32 v5, 1, v2")
    p("v_lshl_add_u32 v5, v5, 2, v7")
    p("v_lshl_add_u32 v5, v6, 4, v5")
    p("v_lshl_or_b32 v14, v6, 1, v7")
    p("v_lshl_or_b32 v14, v14, 1, v10")
    p("s_lshl_b32 %s, %s, 1" % (s(S_T0), s(S_W)))
    p("v_xor_b32 v14, %s, v14" % s(S_T0))
    p("v_lshlrev_b32 v14, 5, v14")
    p("v_lshl_add_u32 v14, v4, 3, v14")
    p("v_lshl_add_u32 v14, v5, 8, v14")
    p("v_add_u32 v14, %d, v14" % L_WL)
    p("v_lshl_or_b32 v62, v6, 1, v10")
    p("v_lshlrev_b32 v62, 5, v62")
    p("v_lshl_add_u32 v62, v4, 3, v62")
    p("v_lshl_add_u32 v62, v5, 7, v62")
    p("s_lshl_b32 %s, %s, 12" % (s(S_T0), s(S_W)))
    p("s_add_u32 %s, %s, %d" % (s(S_T0), s(S_T0), L_WL + 8 * 16384))
    p("v_add_u32 v62, %s, v62" % s(S_T0))
    p("v_xor_b32 v63, 64, v62")
    p("v_add_u32 v64, %s, %s" % (s(S_T0), v(L16)))
    p("s_lshl_b32 %s, %s, 12" % (s(S_T3), s(S_W)))
    p("s_lshl_b32 %s, %s, 11" % (s(S_T0), s(S_W)))
    p("v_add_u32 v15, %s, %s" % (s(S_T0), v(L16)))
    p("v_add_u32 v15, %d, v15" % L_WL)
    p("s_lshl_b32 %s, %s, 10" % (s(S_T2), s(S_W)))

    cur_mat = [None]

    def set_mat(mi):
        if cur_mat[0] != mi:
            p("s_mov_b32 %s, s%d" % (s(SW), 48 + 2 * mi))
            p("s_mov_b32 %s, s%d" % (s(SW + 1), 49 + 2 * mi))
            cur_mat[0] = mi

    def issue_group(G):
        slot = G % 9
        if G < 27:
            mi, j = divmod(G, 9)
            set_mat(mi)
            for qq in range(4):
                p("s_add_u32 m0, %s, %d" % (s(S_T2), L_WL + slot * 16384 + qq * 4096))
                p("s_mov_b32 %s, %d" % (s(S_T0), (64 * j + 16 * qq) * 8192))
                p("buffer_load_dwordx4 v8, %s, %s offen lds" % (s(SW, 4), s(S_T0)))
        else:
            set_mat(3)
            tau, kp = divmod(slot, 2)
            for qq in range(4):
                p("s_add_u32 m0, %s, %d" % (s(S_T3), L_WL + slot * 16384 + qq * 1024))
                if slot < 8:
                    p("s_mov_b32 %s, %d" % (s(S_T0), (64 * kp + 4 * qq) * 1152 + tau * 256))
                    p("buffer_load_dwordx4 v9, %s, %s offen lds" % (s(SW, 4), s(S_T0)))
                else:
                    p("s_mov_b32 %s, %d" % (s(S_T0), 8 * qq * 1152))
                    p("buffer_load_dwordx4 v%d, %s, %s offen lds" % (60 + (qq >> 1), s(SW, 4), s(S_T0)))

    NG = 36
    for G in range(9):
        issue_group(G)
    issued = 9
    for G in range(NG):
        slot = G % 9
        p("s_waitcnt vmcnt(%d) lgkmcnt(0)" % (4 * (issued - G - 1)))
        p("s_barrier")
        if G >= 1 and issued < NG:
            issue_group(issued)
            issued += 1
        if G >= 28:
            pb = 20 + 16 * ((G - 1) & 1)
            ps = (G - 1) % 9
            p("v_add_u32 v18, %d, v15" % (ps * 16384))
            for j2 in range(2):
                for hf in range(2):
                    p("ds_write_b128 v18, %s offset:%d" % (v(pb + 8 * j2 + 4 * hf, 4), j2 * 8192 + hf * 1024))
        if G < 27:
            mi, j = divmod(G, 9)
            p("v_add_u32 v16, %d, v12" % (slot * 16384))
            p("v_add_u32 v17, %d, v13" % (slot * 16384))
            for tt in range(2):
                for rd in range(4):
                    off = (rd & 1) * 512 + (rd >> 1) * 8192
                    p("ds_read_b64_tr_b16 %s, v%d offset:%d" % (wt_reg(mi, j, tt, 2 * rd, 2), 16 + tt, off))
        else:
            b = 20 + 16 * (G & 1)
            if slot < 8:
                p("v_add_u32 v16, %d, v14" % (slot * 16384))
                for j2 in range(2):
                    for rd in range(4):
                        off = j2 * 8192 + (rd & 1) * 512 + (rd >> 1) * 2048
                        p("ds_read_b64_tr_b16 %s, v16 offset:%d" % (v(b + 8 * j2 + 2 * rd, 2), off))
            else:
                for pp in range(2):
                    for rd in range(4):
                        off = (rd & 1) * 256 + (rd >> 1) * 1024
                        p("ds_read_b64_tr_b16 %s, v%d offset:%d" % (v(b + 8 * pp + 2 * rd, 2), 62 + pp, off))
    p("s_waitcnt lgkmcnt(0)")
    p("s_barrier")
    pb = 20 + 16 * ((NG - 1) & 1)
    for pp in range(2):
        for hf in range(2):
            p("ds_write_b128 v64, %s offset:%d" % (v(pb + 8 * pp + 4 * hf, 4), pp * 2048 + hf * 1024))

    p("s_mov_b32 %s, 0" % s(S_STEP))
    p("s_mov_b32 %s, 0x%x" % (s(S_PAR), OFF_PB2))
    p("s_mov_b32 %s, 1" % s(S_PH))
    p("s_mov_b32 %s, 0x%x" % (s(S_MB), OFF_MB))
    p("s_lshl_b32 %s, %s, 13" % (s(S_T0), s(S_H)))
    p("s_add_u32 %s, %s, 0x%x" % (s(S_VX), s(S_T0), OFF_VX))
    p("s_add_u32 %s, %s, 0x%x" % (s(S_M0), s(S_T0), OFF_KX + KVS))
    p("s_add_u32 %s, %s, 0x%x" % (s(S_KX0), s(S_T0), OFF_KX))
    p("s_add_u32 %s, %s, 4096" % (s(S_KX1), s(S_KX0)))
    p("s_lshl_b32 %s, %s, 12" % (s(S_T0), s(S_H)))
    p("s_add_u32 %s, %s, 0x%x" % (s(S_KM), s(S_T0), OFF_KM))
    p("s_add_u32 %s, %s, 0x%x" % (s(S_VM), s(S_T0), OFF_VM))
    p("s_lshl_b32 %s, %s, 7" % (s(S_PUB), s(S_U)))
    p("s_mul_i32 %s, %s, 288" % (s(S_H288), s(S_H)))
    p("s_mov_b32 %s, 0x%x" % (s(S_HIST), OFF_HIST))
    p("s_lshl_b32 %s, %s, 7" % (s(S_TF), s(S_H)))
    p("s_add_u32 %s, %s, 0x%x" % (s(S_TF), s(S_TF), OFF_FLAG + F_TEAM))
    p("s_lshl_b32 %s, %s, 9" % (s(S_KVF), s(S_H)))
    p("s_add_u32 %s, %s, 0x%x" % (s(S_KVF), s(S_KVF), OFF_FLAG + F_G1))
    p("s_mov_b32 %s, 0" % s(S_KVC))
    p("v_add_u32 %s, 65536, %s" % (v(T1), v(L16)))
    p("v_add_u32 %s, 131072, %s" % (v(T2), v(L16)))
    p("s_waitcnt lgkmcnt(0)")
    p("s_barrier")
    for w in range(1, 4):
        p("s_cmp_eq_u32 %s, %d" % (s(S_W), w))
        p("s_cbranch_scc1 REC_W%d" % w)
    MODES = ["", "sc1"] if census else [st_flags]

    def budget():
        p("s_sub_u32 %s, %s, 1" % (s(S_BUD), s(S_BUD)))
        p("s_cbranch_scc1 REC_FAIL")

    def bg(q, n=1):
        for _ in range(n):
            if q:
                x = q.pop(0)
                if callable(x):
                    x()
                else:
                    p(x)

    def combine(acc):
        return ([("v_permlane32_swap_b32 %s, %s" % (v(acc + r), v(acc + 4 + r))) for r in range(4)]
                + [("v_add_f32 %s, %s, %s" % (v(acc + r), v(acc + r), v(acc + 4 + r))) for r in range(4)]
                + ["v_cvt_pk_bf16_f32 %s, %s, %s" % (v(acc), v(acc), v(acc + 1)),
                   "v_cvt_pk_bf16_f32 %s, %s, %s" % (v(acc + 1), v(acc + 2), v(acc + 3))])

    def zero(r, n):
        return ["v_mov_b64 %s, 0" % v(r + i, 2) for i in range(0, n, 2)]

    class LG:
        def __init__(self):
            self.log = []

        def op(self, text, tag):
            p(text)
            self.log.append(tag)

        def wait(self, *tags):
            hit = [i for i, x in enumerate(self.log) if x in tags]
            if hit:
                k = max(hit)
                n = len(self.log) - 1 - k
                assert n <= 15
                p("s_waitcnt lgkmcnt(%d)" % n)
                self.log = self.log[k + 1:]

        def all(self):
            if self.log:
                p("s_waitcnt lgkmcnt(0)")
            self.log = []

    def bases():
        p("v_add_u32 %s, 65536, %s" % (v(T1), v(L16)))
        p("v_add_u32 %s, 131072, %s" % (v(T2), v(L16)))

    MSK = [48, 50, 52, 54]

    def masks(bases_, tmps, half=False):
        for i, b in enumerate(bases_):
            if half:
                p("v_max_u32 %s, %s, %s" % (v(tmps[i]), v(b), v(b + 2)))
            else:
                p("v_max3_u32 %s, %s, %s, %s" % (v(tmps[i]), v(b), v(b + 1), v(b + 2)))
                p("v_max_u32 %s, %s, %s" % (v(tmps[i]), v(tmps[i]), v(b + 3)))
        for i, b in enumerate(bases_):
            p("v_cmp_eq_u32 %s, %s, %s" % (s(MSK[i], 2), s(S_SENT), v(tmps[i])))
        if len(bases_) == 1:
            p("s_or_b64 s[56:57], %s, %s" % (s(MSK[0], 2), s(MSK[0], 2)))
        else:
            p("s_or_b64 s[56:57], %s, %s" % (s(MSK[0], 2), s(MSK[1], 2)))
        for i in range(2, len(bases_)):
            p("s_or_b64 s[56:57], s[56:57], %s" % s(MSK[i], 2))

    def kexport():
        if NOEXP:
            return
        p("s_mov_b64 exec, %s" % s(S_PUBM, 2))
        for ks in range(4):
            p("buffer_store_dwordx4 %s, %s, %s, %s offen offset:%d %s" % (v(52 + 4 * ks, 4), v(SXR), s(SWS, 4), s(S_KM), ks * 512, EXP))
        p("s_mov_b64 exec, -1")
        p("s_add_u32 %s, %s, %d" % (s(S_KM), s(S_KM), EXS))

    def teamflag(sval):
        p("v_mov_b32 %s, %s" % (v(T0), s(sval)))
        p("s_mov_b64 exec, 1")
        p("buffer_store_dword %s, %s, %s, %s offen sc1" % (v(T0), v(L16), s(SWS, 4), s(S_TF)))
        p("s_mov_b64 exec, -1")

    def kv_wait(sseg):
        if not flags:
            return
        ok = p.newlabel("KVOK")
        top = p.newlabel("KVP")
        p("s_cmp_ge_u32 %s, 64" % s(sseg))
        p("s_cbranch_scc1 %s" % ok)
        p.label(top)
        p("s_cmp_gt_u32 %s, %s" % (s(S_KVC), s(sseg)))
        p("s_cbranch_scc1 %s" % ok)
        p("v_lshlrev_b32 %s, 3, %s" % (v(T0), v(L16)))
        p("s_mov_b64 exec, 15")
        p("buffer_load_dword %s, %s, %s, %s offen sc1" % (v(T0), v(T0), s(SWS, 4), s(S_KVF)))
        p("s_mov_b64 exec, -1")
        p("s_waitcnt vmcnt(0)")
        p("v_readlane_b32 s56, %s, 0" % v(T0))
        for i in range(1, 4):
            p("v_readlane_b32 s57, %s, %d" % (v(T0), i))
            p("s_min_u32 s56, s56, s57")
        p("s_lshl_b32 %s, s56, 2" % s(S_KVC))
        budget()
        p("s_branch %s" % top)
        p.label(ok)

    H1 = [0, 1, 2, 3]
    H2 = [4, 5, 6, 7, 8]

    def plan(w):
        own1 = {0: [], 1: [], 2: [0, 1], 3: [2, 3]}[w]
        own2 = {0: [4], 1: [5, 8], 2: [6], 3: [7]}[w]
        h1ord = own1 + [j for j in H1 if j not in own1]
        h2ord = own2 + [j for j in H2 if j not in own2]
        seqA = [(m, j, tt) for j in h1ord for m in range(2) for tt in range(2)]
        seqQ = [(0, j, tt) for j in h2ord for tt in range(2)]
        seqK = [(1, j, tt) for j in h2ord for tt in range(2)]
        seq = seqA + seqQ + seqK
        if w < 3:
            lds_qk = [seq[i] for i in (0, 8, 16, 24)][:NQKL]
            reg_wo = [4, 5, 10, 11][:NQKL]
            swaps = list(zip(lds_qk, reg_wo))
        else:
            lds_qk = []
            reg_wo = list(range(18))
            swaps = [((2, k // 2, k % 2), k) for k in range(18)]
        return own1, own2, h1ord, h2ord, seqA, seqQ, seqK, lds_qk, reg_wo, swaps

    def gen_wave(w):
        own1, own2, h1ord, h2ord, seqA, seqQ, seqK, lds_qk, reg_wo, swaps = plan(w)
        p.label("REC_W%d" % w)
        for base in range(0, len(swaps), 4):
            grp = swaps[base:base + 4]
            for i, (tile, t) in enumerate(grp):
                b, off = lref(slot_addr(t, w))
                p("ds_read_b128 %s, %s offset:%d" % (v(8 * i, 4), b, off))
                p("ds_read_b128 %s, %s offset:%d" % (v(8 * i + 4, 4), b, off + 1024))
            p("s_waitcnt lgkmcnt(0)")
            for i, (tile, t) in enumerate(grp):
                b, off = lref(slot_addr(t, w))
                p("ds_write_b128 %s, %s offset:%d" % (b, wt_reg(*tile, 0, 4), off))
                p("ds_write_b128 %s, %s offset:%d" % (b, wt_reg(*tile, 4, 4), off + 1024))
            p("s_waitcnt lgkmcnt(0)")
            for i, (tile, t) in enumerate(grp):
                for r in range(8):
                    d = wt_reg(*tile, r, 1)
                    p("%s %s, %s" % ("v_accvgpr_write_b32" if d[0] == "a" else "v_mov_b32", d, v(8 * i + r)))
        if w == PFW:
            kv_wait(S_STEP)
        p("s_barrier")
        if TS:
            p("s_memrealtime s[98:99]")
            p("s_lshl_b32 s97, s96, 8")
            p("s_add_u32 s97, s97, 0x%x" % (OFF_STAMP + 0x200000 + 8))
            p("s_waitcnt lgkmcnt(0)")
            p("v_mov_b32 %s, s98" % v(T0))
            p("s_mov_b64 exec, 1")
            p("buffer_store_dword %s, %s, %s, s97 offen" % (v(T0), v(L16), s(SWS, 4)))
            p("s_mov_b64 exec, -1")
        if census:
            top = p.newlabel("CEN")
            fast = p.newlabel("CENF")
            p("s_mov_b32 s58, 0x%x" % (OFF_FLAG + F_ROLE))
            p.label(top)
            p("s_mov_b64 exec, 1")
            p("buffer_load_dword %s, %s, %s, s58 offen offset:1024 sc1" % (v(T0), v(L16), s(SWS, 4)))
            p("s_waitcnt vmcnt(0)")
            p("buffer_load_dword %s, %s, %s, s58 offen sc1" % (v(QF), v(L16), s(SWS, 4)))
            p("s_mov_b64 exec, -1")
            p("s_waitcnt vmcnt(0)")
            p("v_readfirstlane_b32 s56, %s" % v(T0))
            p("v_readfirstlane_b32 s57, %s" % v(QF))
            p("s_min_u32 s57, s57, %d" % census)
            p("s_cmp_ge_u32 s57, 32")
            p("s_cbranch_scc1 %s" % fast)
            budget()
            p("s_cmp_lt_u32 s56, 256")
            p("s_cbranch_scc1 %s" % top)
            p("s_branch W%dsc1_PRE" % w)
            p.label(fast)
        for ST in MODES:
            gen_loop(w, ST, "W%d%s_" % (w, ST))

    def gen_loop(w, ST, W):
        own1, own2, h1ord, h2ord, seqA, seqQ, seqK, lds_qk, reg_wo, swaps = plan(w)
        wo_reg = {t: tile for tile, t in swaps}
        qk_addr = {tile: slot_addr(t, w) for tile, t in swaps}
        nt = 16 if w < 2 else 20
        lg = LG()

        def rdtile(dst, addr, tag):
            b, off = lref(addr)
            lg.op("ds_read_b128 %s, %s offset:%d" % (v(dst, 4), b, off), tag)
            lg.op("ds_read_b128 %s, %s offset:%d" % (v(dst + 4, 4), b, off + 1024), tag)

        def fetch(own, masked=False):
            for i, j in enumerate(own):
                if masked:
                    p("s_mov_b64 exec, %s" % s(MSK[i], 2))
                so, off = (S_MB, j * 1024) if j < 4 else ((S_T1, (j - 4) * 1024) if j < 8 else (S_T2, 0))
                p("buffer_load_dwordx4 %s, %s, %s, %s offen offset:%d sc1" % (v(MA + 4 * j, 4), v(L16), s(SWS, 4), s(so), off))
            if masked:
                p("s_mov_b64 exec, -1")

        pend = []

        def issue_qk(tile):
            m, j, tt = tile
            lg.wait(("m", j), ("s", tile))
            p(smf((AQ, AK)[m] + 4 * tt, MA + 4 * j, v(STG0, 8) if tile in lds_qk else wt(*tile)))
            if pend:
                t2 = pend.pop()
                rdtile(STG0, qk_addr[t2], ("s", t2))
            if tile in lds_qk:
                i = lds_qk.index(tile)
                if i + 1 < len(lds_qk):
                    pend.append(lds_qk[i + 1])

        vt = {0: [0, 1, 6], 1: [2, 3, 7], 2: [4, 5], 3: []}[w]
        KX = [[52, 56, 60, 64], [68, 0, 4, 8]]

        def ldkx(kt, ks):
            p("buffer_load_dwordx4 %s, %s, %s, %s offen offset:%d sc1" % (v(KX[kt][ks], 4), v(L16), s(SWS, 4), s((S_KX0, S_KX1)[kt]), ks * 1024))

        def ldvx(i):
            et = vt[i]
            so, off = (S_VX, et * 1024) if et < 4 else (S_T0, (et - 4) * 1024)
            p("buffer_load_dwordx4 %s, %s, %s, %s offen offset:%d sc1" % (v(VXF + 4 * i, 4), v(L16), s(SWS, 4), s(so), off))

        def wrmem(j):
            lg.op("ds_write_b128 %s, %s offset:%d" % (v(L16), v(MA + 4 * j, 4), L_MEM + j * 1024), "wm")

        def rdmem(j):
            lg.op("ds_read_b128 %s, %s offset:%d" % (v(MA + 4 * j, 4), v(L16), L_MEM + j * 1024), ("m", j))

        def prefetch():
            p("s_add_u32 %s, %s, 1" % (s(S_T0), s(S_STEP)))
            kv_wait(S_T0)
            p("v_lshlrev_b32 %s, 3, %s" % (v(T0), v(L16)))
            p("s_mov_b32 m0, %d" % L_SX)
            p("s_add_u32 %s, %s, 0x%x" % (s(S_T0), s(S_M0), OFF_VX - OFF_KX))
            p("buffer_load_dword %s, %s, %s offen lds" % (v(T0), s(SWS, 4), s(S_M0)))
            p("buffer_load_dword %s, %s, %s offen lds" % (v(T0), s(SWS, 4), s(S_T0)))
            p("s_add_u32 %s, %s, %d" % (s(S_M0), s(S_M0), KVS))

        p.label(W + "PRE")
        bases()
        p("s_add_u32 %s, %s, 4096" % (s(S_T0), s(S_VX)))
        p("s_add_u32 %s, %s, 4096" % (s(S_T1), s(S_MB)))
        p("s_add_u32 %s, %s, 8192" % (s(S_T2), s(S_MB)))
        stamp(0)
        def prework():
            if w < 3:
                rdtile(STG0, qk_addr[lds_qk[0]], ("s", lds_qk[0]))
            for r in range(16):
                p("v_mov_b32 %s, 0" % v(AQ + r))
        if not (own1 and SETMID):
            prework()
        tm = MA + 4 * h2ord[-1]
        A = list(seqA)
        if B3:
            p("s_barrier")
        if own1:
            for _ in range(FD0):
                p("s_nop 15")
            for d in range(DEP):
                fetch(own1)
                if d == 0 and SETMID:
                    prework()
                if d + 1 < DEP:
                    for _ in range(FD1):
                        p("s_nop 7")
            p.label(W + "CHK1")
            p("s_waitcnt vmcnt(%d)" % (2 * (DEP - 1)))
            masks([MA + 4 * j for j in own1], [tm, tm + 1])
            p("s_cbranch_scc1 %sRETRY1" % W)
            stamp(1)
            for j in own1:
                wrmem(j)
            fetch(own2)
            for _ in range(3):
                issue_qk(A.pop(0))
            lg.wait("wm")
        else:
            if F2E:
                fetch(own2)
            stamp(1)
        p("s_barrier")
        stamp(2)
        for j in h1ord:
            if j not in own1:
                rdmem(j)
        fetch(own2)
        n = 0
        while len(A) > C1:
            issue_qk(A.pop(0))
            n += 1
            if n == 4 or (n == 2 and not own1 and not F2E):
                fetch(own2)
        no = len(own2)
        p.label(W + "CHK2")
        p("s_waitcnt vmcnt(%d)" % (2 * no))
        masks([MA + 4 * j for j in own2], [tm, tm + 1])
        p("s_cbranch_scc1 %sRETRY2" % W)
        stamp(3)
        for j in own2:
            wrmem(j)
        if w == 3:
            for ks in range(4):
                ldkx(0, ks)
            ldkx(1, 0)
        while len(A) > 2:
            issue_qk(A.pop(0))
        lg.wait("wm")
        p("s_barrier")
        for j in h2ord:
            if j not in own2:
                rdmem(j)
        while A:
            issue_qk(A.pop(0))
        stamp(4)
        for i, tile in enumerate(seqQ):
            issue_qk(tile)
            if w == 3 and i < 3:
                ldkx(1, i + 1)
            if w < 3 and 2 <= i < 2 + len(vt):
                ldvx(i - 2)
        if w < 3:
            p("s_add_u32 %s, %s, %d" % (s(S_VX), s(S_VX), KVS))
        if w == 3:
            for r in (S_KX0, S_KX1):
                p("s_add_u32 %s, %s, %d" % (s(r), s(r), KVS))
        stamp(5)
        Kq = [(lambda t=t: issue_qk(t)) for t in seqK]
        bg(Kq, 2)
        cq = combine(AQ)
        for i, x in enumerate(cq):
            p(x)
            if i % 3 == 2:
                bg(Kq)
        lg.op("ds_write_b64 %s, %s offset:%d" % (v(QWA), v(AQ, 2), L_Q + 512 * w), "wq")
        if w < 2:
            rdtile(STG0, slot_addr(w, 3), ("v", 0))
        STG = [8, 16, 24, STG0, VXF]
        NST = len(STG)
        OA = AQ
        ACC = [0, 4, 32, QF, 0] if w < 3 else [0, 4, 32, QF, 24]
        lt = [t for t in range(nt) if t not in reg_wo]

        if w < 3:
            Z = zero(AQ + 2, 6)
            for i in range(3):
                bg(Kq)
                bg(Z, 1)
            lg.wait("wq")
            p("s_barrier")
            bg(Kq)
            p(zero(AQ, 2)[0])
            bg(Kq, 99)
            stamp(6)
            AVs = [AQ, AQ + 4, AK + 4]
            nv = len(vt)

            def vr(j, tt):
                p(smf(AVs[tt], MA + 4 * j, wt(2, j, tt)))

            vr(0, 0)
            vr(0, 1)
            for x in combine(AK):
                p(x)
            lg.op("ds_write_b64 %s, %s offset:%d" % (v(QWA), v(AK, 2), L_K + 512 * w), "wk")
            if nv == 3:
                for x in zero(AVs[2], 4):
                    p(x)
                slots = {0: STG0, 1: STG0, 2: STG0, 3: 0, 4: STG0, 5: 0, 6: 8, 7: STG0, 8: 0}

                def vl(j):
                    lg.wait(("v", j))
                    p(smf(AVs[2], MA + 4 * j, v(slots[j], 8)))

                def req(j):
                    rdtile(slots[j], slot_addr(2 * j + w, 3), ("v", j))
                vr(1, 0); vl(0); vr(1, 1)
                lg.wait("wk")
                p("s_barrier")
                stamp(7)
                req(1); vr(2, 0)
                vr(2, 1); vr(3, 0); vl(1); vr(3, 1); req(2); req(3); vr(4, 0); vr(4, 1); vr(5, 0)
                vl(2); vl(3); vr(5, 1); req(4); req(5); req(6); vr(6, 0); vr(6, 1); vr(7, 0)
                vl(4); vl(5); req(7); vl(6); req(8); vr(7, 1); vr(8, 0); vr(8, 1)
                vl(7); vl(8)
            else:
                vr(1, 0); vr(1, 1); vr(2, 0)
                lg.wait("wk")
                p("s_barrier")
                stamp(7)
                if PFW == 2:
                    prefetch()
                p("v_add_u32 %s, %s, %s" % (v(T0), s(S_H288), v(L16)))
                lg.op("ds_read_b128 %s, %s offset:%d" % (v(STG0, 4), v(T0), L_MEM), "hx")
                vr(2, 1)
                for j in range(3, 9):
                    vr(j, 0)
                    vr(j, 1)
                    if j == 4:
                        lg.wait("hx")
                        p("s_mov_b64 exec, 0x3ffff")
                        p("buffer_store_dwordx4 %s, %s, %s, %s offen sc1" % (v(STG0, 4), v(T0), s(SWS, 4), s(S_HIST)))
                        p("s_mov_b64 exec, -1")
                        p("s_add_u32 %s, %s, 9216" % (s(S_HIST), s(S_HIST)))
            for i in range(2):
                rdtile(STG[i], slot_addr(lt[i], w), ("w", lt[i]))
            for i in range(nv):
                p("v_cvt_pk_bf16_f32 %s, %s, %s" % (v(AVs[i]), v(AVs[i]), v(AVs[i] + 1)))
                p("v_cvt_pk_bf16_f32 %s, %s, %s" % (v(AVs[i] + 1), v(AVs[i] + 2), v(AVs[i] + 3)))
            rdtile(STG[2], slot_addr(lt[2], w), ("w", lt[2]))
            rdtile(STG[3], slot_addr(lt[3], w), ("w", lt[3]))

            def vexport():
                if NOEXP:
                    return
                p("v_lshrrev_b32 %s, 1, %s" % (v(T0), v(L16)))
                for i, et in enumerate(vt):
                    p("buffer_store_dwordx2 %s, %s, %s, %s offen offset:%d %s" % (v(AVs[i], 2), v(T0), s(SWS, 4), s(S_VM), et * 512, EXP))
                p("s_add_u32 %s, %s, %d" % (s(S_VM), s(S_VM), EXS))
            p("v_lshrrev_b32 %s, 1, %s" % (v(T0), v(SXR)))
            p("s_waitcnt vmcnt(%d)" % (3 if w == 2 else 0))
            stamp(8)
            p("s_barrier")
            stamp(9)
            PX, PM = AK, AQ + 2
            lg.op("ds_read_b128 %s, %s offset:%d" % (v(PX, 4), v(SXR), L_PX), "px")
            lg.op("ds_read_b64 %s, %s offset:%d" % (v(PM, 2), v(T0), L_PM), "pm")
            OX = [0, 4, 32]
            lg.wait("px")
            for i in range(nv):
                p("v_mfma_f32_16x16x32_bf16 %s, %s, %s, 0" % (v(OX[i], 4), v(VXF + 4 * i, 4), v(PX, 4)))
            lg.wait("pm")
            for i in range(nv):
                p("v_mfma_f32_16x16x16_bf16 %s, %s, %s, %s" % (v(OX[i], 4), v(AVs[i], 2), v(PM, 2), v(OX[i], 4)))
            p("v_cvt_pk_bf16_f32 %s, %s, %s" % (v(0), v(0), v(1)))
            p("v_cvt_pk_bf16_f32 %s, %s, %s" % (v(1), v(2), v(3)))
            p("v_cvt_pk_bf16_f32 %s, %s, %s" % (v(2), v(4), v(5)))
            p("v_cvt_pk_bf16_f32 %s, %s, %s" % (v(3), v(6), v(7)))
            lg.op("ds_write_b128 %s, %s offset:%d" % (v(SXR), v(0, 4), L_O + 512 * w), "wo")
            if nv == 3:
                p("v_cvt_pk_bf16_f32 %s, %s, %s" % (v(32), v(32), v(33)))
                p("v_cvt_pk_bf16_f32 %s, %s, %s" % (v(33), v(34), v(35)))
                lg.op("ds_write_b64 %s, %s offset:%d" % (v(SXR), v(32, 2), L_O + 512 * 3 + 8 * w), "wo")
            stamp(10)
            for x in zero(ACC[1], 4) + zero(ACC[3], 4):
                p(x)
            npre = 4
        else:
            bg(Kq, 3)
            lg.wait("wq")
            p("s_barrier")
            QFR = [MA + 4 * j for j in h2ord[:4]]
            bg(Kq, 1)
            for ks in range(4):
                if ks == 3:
                    bg(Kq, 1)
                for b in range(2):
                    lg.op("ds_read_b64_tr_b16 %s, %s offset:%d" % (v(QFR[ks] + 2 * b, 2), v(TRA), L_Q + (32 * ks + 16 * b) * 16), ("q", ks))
            assert not Kq
            stamp(6)
            KFR = [52, 56, 60, 64]
            SX = AQ
            SM = AK
            MX, LX, FX, TM = AK + 4, AK + 5, AK + 6, AK + 7
            XS = []
            for ks in range(4):
                for kt in range(2):
                    def xs(ks=ks, kt=kt):
                        lg.wait(("q", ks))
                        p("v_mfma_f32_16x16x32_bf16 %s, %s, %s, %s" % (v(SX + 4 * kt, 4), v(KX[kt][ks], 4), v(QFR[ks], 4), "0" if ks == 0 else v(SX + 4 * kt, 4)))
                    XS.append(xs)
            p("s_waitcnt vmcnt(0)")
            bg(XS, 2)
            CK = combine(AK)
            for i, x in enumerate(CK):
                p(x)
                if i in (3, 7):
                    bg(XS)
            lg.op("ds_write_b64 %s, %s offset:%d" % (v(QWA), v(AK, 2), L_K + 512 * w), "wk")
            bg(XS, 99)
            X = []
            X.append("v_bfe_u32 %s, %s, 7, 1" % (v(T1), v(L16)))
            X.append("v_lshl_add_u32 %s, %s, 3, %s" % (v(T1), v(T1), v(SXR)))
            X.append("v_lshrrev_b32 %s, 1, %s" % (v(T2), v(SXR)))
            for r in range(4):
                X.append("v_cndmask_b32 %s, %s, %s, %s" % (v(SX + r), v(SX + r), v(SX + 4 + r), s(S_PART, 2)))
            X.append("v_max3_f32 %s, %s, %s, %s" % (v(MX), v(SX), v(SX + 1), v(SX + 2)))
            X.append("v_max_f32 %s, %s, %s" % (v(MX), v(MX), v(SX + 3)))
            X.append("v_max_f32_dpp %s, %s, %s row_ror:8 row_mask:0xf bank_mask:0xf" % (v(MX), v(MX), v(MX)))
            X.append("v_mov_b32 %s, %s" % (v(T0), v(MX)))
            X.append("v_permlane32_swap_b32 %s, %s" % (v(MX), v(T0)))
            X.append("v_max_f32 %s, %s, %s" % (v(MX), v(MX), v(T0)))
            lg.wait("wk")
            p("s_barrier")
            stamp(7)
            for ks in range(4):
                for b in range(2):
                    lg.op("ds_read_b64_tr_b16 %s, %s offset:%d" % (v(KFR[ks] + 2 * b, 2), v(TRA), L_K + (32 * ks + 16 * b) * 16), ("k", ks))
            bg(X, 7)
            for ks in range(4):
                lg.wait(("k", ks))
                p("v_mfma_f32_16x16x32_bf16 %s, %s, %s, %s" % (v(SM, 4), v(KFR[ks], 4), v(QFR[ks], 4), "0" if ks == 0 else v(SM, 4)))
                bg(X, 2)
            bg(X, 99)
            p("v_max3_f32 %s, %s, %s, %s" % (v(TM), v(SM), v(SM + 1), v(SM + 2)))
            p("v_max3_f32 %s, %s, %s, %s" % (v(TM), v(TM), v(SM + 3), v(MX)))
            p("v_mov_b32 %s, %s" % (v(MX), v(TM)))
            p("v_permlane16_swap_b32 %s, %s" % (v(TM), v(MX)))
            p("v_max_f32 %s, %s, %s" % (v(TM), v(TM), v(MX)))
            p("v_mul_f32 %s, %s, %s" % (v(FX), s(S_NC), v(TM)))
            p("v_mul_f32 %s, %s, %s" % (v(TM), s(S_NC), v(TM)))
            for b in (SM, SM + 2, SX, SX + 2):
                p("v_pk_fma_f32 %s, %s, %s, %s" % (v(b, 2), v(b, 2), s(S_C2, 2), v(FX, 2)))
            for b in (SM, SX):
                for r in range(4):
                    p("v_exp_f32 %s, %s" % (v(b + r), v(b + r)))
            p("v_pk_add_f32 %s, %s, %s" % (v(MX, 2), v(SM, 2), v(SM + 2, 2)))
            p("v_pk_add_f32 %s, %s, %s" % (v(FX, 2), v(SX, 2), v(SX + 2, 2)))
            p("v_pk_fma_f32 %s, %s, %s, %s" % (v(MX, 2), v(MX, 2), s(S_Q2, 2), v(FX, 2)))
            p("v_add_f32 %s, %s, %s" % (v(LX), v(MX), v(LX)))
            p("v_add_f32_dpp %s, %s, %s row_ror:8 row_mask:0xf bank_mask:0xf" % (v(LX), v(LX), v(LX)))
            p("v_mov_b32 %s, %s" % (v(T0), v(LX)))
            p("v_permlane16_swap_b32 %s, %s" % (v(LX), v(T0)))
            p("v_add_f32 %s, %s, %s" % (v(LX), v(LX), v(T0)))
            p("v_mov_b32 %s, %s" % (v(T0), v(LX)))
            p("v_permlane32_swap_b32 %s, %s" % (v(LX), v(T0)))
            p("v_add_f32 %s, %s, %s" % (v(LX), v(LX), v(T0)))
            p("v_rcp_f32 %s, %s" % (v(MX), v(LX)))
            p("v_rcp_f32 %s, %s" % (v(LX), v(LX)))
            for b in (SM, SM + 2, SX, SX + 2):
                p("v_pk_mul_f32 %s, %s, %s" % (v(b, 2), v(b, 2), v(MX, 2)))
            p("v_cvt_pk_bf16_f32 %s, %s, %s" % (v(SM), v(SM), v(SM + 1)))
            p("v_cvt_pk_bf16_f32 %s, %s, %s" % (v(SM + 1), v(SM + 2), v(SM + 3)))
            lg.op("ds_write_b64 %s, %s offset:%d" % (v(T2), v(SM, 2), L_PM), "wp")
            p("v_cvt_pk_bf16_f32 %s, %s, %s" % (v(SX), v(SX), v(SX + 1)))
            p("v_cvt_pk_bf16_f32 %s, %s, %s" % (v(SX + 1), v(SX + 2), v(SX + 3)))
            lg.op("ds_write_b64 %s, %s offset:%d" % (v(T1), v(SX, 2), L_PX), "wp")
            lg.all()
            stamp(8)
            p("s_barrier")
            stamp(9)
            if PFW == 3:
                prefetch()
            bases()
            for i in range(len(lt)):
                rdtile(STG[i], slot_addr(lt[i], w), ("w", lt[i]))
            stamp(10)
            for t in range(5):
                for x in zero(ACC[t], 4):
                    p(x)
            npre = len(lt)
        p("s_mul_i32 %s, %s, 9216" % (s(S_PB), s(S_H)))
        p("s_add_u32 %s, %s, %s" % (s(S_PB), s(S_PB), s(S_PAR)))
        p("s_add_u32 %s, %s, 4096" % (s(S_T0), s(S_PB)))
        p("s_add_u32 %s, %s, 7168" % (s(S_T1), s(S_PB)))
        lg.wait("wo")
        stamp(11)
        p("s_barrier")
        stamp(12)
        for ks in range(4):
            lg.op("ds_read_b128 %s, %s offset:%d" % (v(OA + 4 * ks, 4), v(SXR), L_O + 512 * ks), ("o", ks))
        slot_of = {t: i for i, t in enumerate(lt[:npre])}
        if w < 3:
            rdtile(STG[4], slot_addr(lt[4], w), ("w", lt[4]))
            slot_of[lt[4]] = 4
            npre = 5
            for x in zero(ACC[0], 4) + zero(ACC[2], 4):
                p(x)
        nxt = npre
        freed = []

        def post(tau):
            A0 = ACC[tau]
            so, off = [(S_PB, 0), (S_PB, 2048), (S_T0, 0), (S_T0, 2048), (S_T1, 0)][tau]
            L = []
            L.append("v_cvt_pk_bf16_f32 %s, %s, %s" % (v(A0), v(A0), v(A0 + 1)))
            L.append("v_cvt_pk_bf16_f32 %s, %s, %s" % (v(A0 + 1), v(A0 + 2), v(A0 + 3)))
            L.append("v_and_or_b32 %s, %s, -2, %s" % (v(A0), v(A0), s(S_PH)))
            L.append("buffer_store_dwordx2 %s, %s, %s, %s offen offset:%d %s" % (v(A0, 2), v(QWA), s(SWS, 4), s(so), off + 512 * w, ST))
            if tau == 0 and w == 2:
                L += zero(A0, 4)
            return L

        PQ = []
        for t in range(nt):
            tau, ks = divmod(t, 4)
            lg.wait(("o", ks), ("w", t))
            if ks == 0 and tau == 4:
                bg(PQ, 99)
            if t in lt:
                p(smf(ACC[tau], OA + 4 * ks, v(STG[slot_of[t]], 8)))
            else:
                p(smf(ACC[tau], OA + 4 * ks, wt(*wo_reg[t])))
            if freed:
                sl = freed.pop()
                if nxt < len(lt):
                    rdtile(STG[sl], slot_addr(lt[nxt], w), ("w", lt[nxt]))
                    slot_of[lt[nxt]] = sl
                    nxt += 1
            if t in lt:
                freed.append(slot_of[t])
            if ks == 2 and tau >= 1:
                bg(PQ, 99)
                PQ = post(tau - 1)
            bg(PQ, 2)
        bg(PQ, 99)
        for x in post(nt // 4 - 1):
            p(x)
        assert not lg.log
        stamp(13)
        p("s_add_u32 %s, %s, 16384" % (s(S_T3), s(S_MB)))
        p("s_and_b32 %s, %s, 0x%x" % (s(S_T3), s(S_T3), OFF_MB | 0xffff))
        if w == TW:
            RD, SEL, RA, RP, RACC = 16, 32, 36, 37, 40
            p("v_lshrrev_b32 %s, 5, %s" % (v(T0), v(L16)))
            p("v_mul_u32_u24 %s, 9216, %s" % (v(T0), v(T0)))
            p("v_and_b32 %s, 16, %s" % (v(RP), v(L16)))
            p("v_add_u32 %s, %s, %s" % (v(RA), v(T0), v(RP)))
            p("s_lshl_b32 %s, %s, 5" % (s(S_T0), s(S_H)))
            p("s_add_u32 %s, %s, %s" % (s(S_RL), s(S_T0), s(S_PAR)))
            p("s_add_u32 %s, %s, 8192" % (s(S_RL), s(S_RL)))
            p("v_bfe_u32 %s, %s, 4, 4" % (v(T0), v(L16)))
            p("v_and_b32 %s, 1, %s" % (v(T1), v(T0)))
            p("v_lshlrev_b32 %s, 4, %s" % (v(T1), v(T1)))
            p("v_mov_b32 %s, 0x3f80" % v(T2))
            p("v_lshlrev_b32 %s, %s, %s" % (v(T1), v(T1), v(T2)))
            p("v_lshrrev_b32 %s, 1, %s" % (v(T0), v(T0)))
            for r in range(4):
                p("v_cmp_eq_u32 vcc, %d, %s" % (r, v(T0)))
                p("v_cndmask_b32 %s, 0, %s, vcc" % (v(SEL + r), v(T1)))
            p("s_lshr_b32 %s, %s, 2" % (s(S_T0), s(S_H)))
            p("s_lshl_b32 %s, %s, 7" % (s(S_T0), s(S_T0)))
            p("s_and_b32 %s, %s, 3" % (s(S_T1), s(S_H)))
            p("s_lshl_b32 %s, %s, 2" % (s(S_T1), s(S_T1)))
            p("s_add_u32 %s, %s, %s" % (s(S_T0), s(S_T0), s(S_T1)))
            p("s_add_u32 %s, %s, 8192" % (s(S_T0), s(S_T0)))
            p("s_add_u32 s58, %s, %s" % (s(S_T3), s(S_T0)))
            p("s_add_u32 %s, %s, %s" % (s(S_PMB), s(S_MB), s(S_T0)))
            p("s_add_u32 s59, %s, 0x%x" % (s(S_T0), OFF_HIST + nsteps * 9216))
            p("v_mov_b32 v8, 0x%x" % SENT)
            p("s_waitcnt vmcnt(0)")
            p.label(W + "TRED")
            p("buffer_load_dwordx4 %s, %s, %s, %s offen sc1" % (v(RD, 4), v(RA), s(SWS, 4), s(S_RL)))
            budget()
            p("s_waitcnt vmcnt(0)")
            p("v_mfma_f32_16x16x32_bf16 %s, %s, %s, 0" % (v(RACC, 4), v(RD, 4), v(SEL, 4)))
            p("v_bitop3_b32 v44, %s, %s, %s bitop3:0x7e" % (v(RD), v(RD + 2), s(S_PH)))
            p("v_and_b32 v44, 1, v44")
            p("v_cmp_ne_u32 vcc, 0, v44")
            p("s_cbranch_vccnz %sTRED" % W)
            stamp(14)
            p("v_pk_add_f32 %s, %s, %s" % (v(RACC, 2), v(RACC, 2), v(RACC + 2, 2)))
            for sw in ("16", "32"):
                p("v_mov_b64 %s, %s" % (v(RACC + 2, 2), v(RACC, 2)))
                p("v_permlane%s_swap_b32 %s, %s" % (sw, v(RACC), v(RACC + 2)))
                p("v_permlane%s_swap_b32 %s, %s" % (sw, v(RACC + 1), v(RACC + 3)))
                p("v_pk_add_f32 %s, %s, %s" % (v(RACC, 2), v(RACC, 2), v(RACC + 2, 2)))
            p("v_cvt_pk_bf16_f32 %s, %s, %s" % (v(RACC), v(RACC), v(RACC + 1)))
            p("s_mov_b64 exec, 0xff")
            p("buffer_store_dword %s, %s, %s, s58 offen %s" % (v(RACC), v(L16), s(SWS, 4), ST))
            p("buffer_store_dword v8, %s, %s, %s offen %s" % (v(L16), s(SWS, 4), s(S_PMB), ST))
            lh = p.newlabel("NOH")
            p("s_cmp_lt_u32 %s, %d" % (s(S_STEP), nsteps - 1))
            p("s_cbranch_scc1 %s" % lh)
            p("buffer_store_dword %s, %s, %s, s59 offen sc1" % (v(RACC), v(L16), s(SWS, 4)))
            p.label(lh)
            p("s_mov_b64 exec, -1")
        if w < 2:
            labn = W + "NORED"
            RD = 16
            SEL = 32
            RA = 36
            RP = 37
            RACC = 40
            p("v_lshrrev_b32 %s, 7, %s" % (v(T0), v(L16)))
            p("v_mul_u32_u24 %s, 9216, %s" % (v(T0), v(T0)))
            p("v_and_b32 %s, 0x70, %s" % (v(RP), v(L16)))
            p("v_add_u32 %s, %s, %s" % (v(RA), v(T0), v(RP)))
            p("s_add_u32 %s, %s, %s" % (s(S_RL), s(S_PUB), s(S_PAR)))
            p("s_add_u32 %s, %s, %d" % (s(S_T0), s(S_RL), 73728))
            p("s_add_u32 %s, %s, %d" % (s(S_T1), s(S_RL), 2 * 73728))
            p("s_add_u32 %s, %s, %d" % (s(S_T2), s(S_RL), 3 * 73728))
            soffs = [S_RL, S_T0, S_T1, S_T2]

            def rload(masked=False):
                for ld in range(4):
                    if masked:
                        p("s_mov_b64 exec, %s" % s(MSK[ld], 2))
                    p("buffer_load_dwordx4 %s, %s, %s, %s offen sc1" % (v(RD + 4 * ld, 4), v(RA), s(SWS, 4), s(soffs[ld])))
                if masked:
                    p("s_mov_b64 exec, -1")

            SET = []
            SET.append("v_bfe_u32 %s, %s, 4, 4" % (v(T0), v(L16)))
            SET.append("v_and_b32 %s, 1, %s" % (v(T1), v(T0)))
            SET.append("v_lshlrev_b32 %s, 4, %s" % (v(T1), v(T1)))
            SET.append("v_mov_b32 %s, 0x3f80" % v(T2))
            SET.append("v_lshlrev_b32 %s, %s, %s" % (v(T1), v(T1), v(T2)))
            SET.append("v_lshrrev_b32 %s, 1, %s" % (v(T0), v(T0)))
            for r in range(4):
                SET.append("v_cmp_eq_u32 vcc, %d, %s" % (r, v(T0)))
                SET.append("v_cndmask_b32 %s, 0, %s, vcc" % (v(SEL + r), v(T1)))
            SET.append("v_bfe_u32 %s, %s, 8, 1" % (v(T2), v(L16)))
            SET.append("v_lshl_add_u32 %s, %s, 3, %s" % (v(RP), v(T2), v(RP)))
            SET.append("v_bfe_u32 %s, %s, 9, 1" % (v(T2), v(L16)))
            SET.append("v_lshl_add_u32 %s, %s, 2, %s" % (v(RP), v(T2), v(RP)))
            SET.append("s_add_u32 s58, %s, %s" % (s(S_T3), s(S_PUB)))
            SET.append("s_add_u32 %s, %s, %s" % (s(S_PMB), s(S_MB), s(S_PUB)))
            SET.append("v_mov_b32 v8, 0x%x" % SENT)

            def unit(tag, d0, d1, first):
                if first and w > 0 and not SETMID:
                    bg(SET, 99)
                for _ in range(d0):
                    p("s_nop 15")
                if VW[w] >= 0:
                    p("s_waitcnt vmcnt(%d)" % VW[w])
                rload()
                bg(SET, 99)
                for d in range(1, RDEP):
                    for _ in range(d1):
                        p("s_nop 7")
                    rload()
                p("s_branch %sRED1%s" % (W, tag))
                p.label(W + "RED" + tag)
                for ld in range(4):
                    p("v_and_b32 %s, 1, %s" % (v(44 + ld), v(44 + ld)))
                    p("v_cmp_ne_u32 %s, 0, %s" % (s(MSK[ld], 2), v(44 + ld)))
                rload(True)
                budget()
                p.label(W + "RED1" + tag)
                p("s_waitcnt vmcnt(%d)" % (4 * (RDEP - 1)))
                for ld in range(4):
                    b = RD + 4 * ld
                    p("v_bitop3_b32 %s, %s, %s, %s bitop3:0x7e" % (v(44 + ld), v(b), v(b + 2), s(S_PH)))
                p("v_or3_b32 v48, v44, v45, v46")
                p("v_or_b32 v48, v48, v47")
                p("v_and_b32 v48, 1, v48")
                p("v_cmp_ne_u32 vcc, 0, v48")
                for ld in range(4):
                    b = RD + 4 * ld
                    p("v_mfma_f32_16x16x32_bf16 %s, %s, %s, %s" % (v(RACC, 4), v(b, 4), v(SEL, 4), "0" if ld == 0 else v(RACC, 4)))
                    if ld == 0:
                        p("s_cbranch_vccnz %sRED%s" % (W, tag))
                if first:
                    stamp(14)
                p("v_permlane32_swap_b32 %s, %s" % (v(RACC), v(RACC + 2)))
                p("v_permlane32_swap_b32 %s, %s" % (v(RACC + 1), v(RACC + 3)))
                p("v_pk_add_f32 %s, %s, %s" % (v(RACC, 2), v(RACC, 2), v(RACC + 2, 2)))
                p("v_cvt_pk_bf16_f32 %s, %s, %s" % (v(RACC), v(RACC), v(RACC + 1)))
                p("s_mov_b64 exec, %s" % s(S_PUBM, 2))
                p("buffer_store_dword %s, %s, %s, s58 offen %s" % (v(RACC), v(RP), s(SWS, 4), ST))
                p("buffer_store_dword v8, %s, %s, %s offen %s" % (v(RP), s(SWS, 4), s(S_PMB), ST))
                lh = p.newlabel("NOH")
                p("s_cmp_lt_u32 %s, %d" % (s(S_STEP), nsteps - 1))
                p("s_cbranch_scc1 %s" % lh)
                p("s_add_u32 s59, %s, 0x%x" % (s(S_PUB), OFF_HIST + nsteps * 9216))
                p("buffer_store_dword %s, %s, %s, s59 offen sc1" % (v(RACC), v(RP), s(SWS, 4)))
                p.label(lh)
                p("s_mov_b64 exec, -1")

            unit("A", RD0[w], RD1[w], True)
            p.label(labn)
        stamp(15)
        p("s_mov_b32 %s, %s" % (s(S_MB), s(S_T3)))
        p("s_xor_b32 %s, %s, 0x%x" % (s(S_PAR), s(S_PAR), PB_STR))
        p("s_and_b32 %s, %s, 1" % (s(S_T0), s(S_STEP)))
        p("s_xor_b32 %s, %s, %s" % (s(S_PH), s(S_PH), s(S_T0)))
        p("s_add_u32 %s, %s, 1" % (s(S_STEP), s(S_STEP)))
        if stamps and w == 3 or stamps == 2:
            flush_stamps()
        if stamps:
            p("s_add_u32 %s, %s, 128" % (s(S_STO), s(S_STO)))
        p("s_cmp_lt_u32 %s, %d" % (s(S_STEP), nsteps))
        p("s_cbranch_scc1 %sPRE" % W)
        p("s_branch REC_DONE")
        if own1:
            p.label(W + "RETRY1")
            fetch(own1, True)
            budget()
            p("s_branch %sCHK1" % W)
        p.label(W + "RETRY2")
        fetch(own2, True)
        budget()
        p("s_branch %sCHK2" % W)

    for w in range(4):
        gen_wave(w)
```

```python
import math
import struct
from asmlib import *
from layout import *

SWS = 4
SA = 8
SB = 12
SX = 16
S_WV = 20
S_RANK = 21
S_BUDW = 22
S_A, S_B, S_C_, S_D, S_E, S_F, S_G, S_H_ = 24, 25, 26, 27, 28, 29, 30, 31
S_I, S_J, S_K, S_L = 32, 33, 34, 35

V_L16 = 200
V_LANE = 201


def f2u(x):
    return struct.unpack("<I", struct.pack("<f", x))[0]


def srd(p, sreg, slot, nbytes):
    p("s_load_dwordx2 %s, s[0:1], %d" % (s(sreg, 2), slot * 8))
    p("s_mov_b32 %s, %d" % (s(sreg + 2), nbytes))
    p("s_mov_b32 %s, 0x20000" % s(sreg + 3))


def worker_setup(p):
    srd(p, SWS, D_WS, WS_BYTES)
    srd(p, SX, A_X, S * DM * 2)
    p("v_lshrrev_b32 v1, 6, v0")
    p("v_and_b32 %s, 63, v0" % v(V_LANE))
    p("v_readfirstlane_b32 %s, v1" % s(S_WV))
    p("v_lshlrev_b32 %s, 4, %s" % (v(V_L16), v(V_LANE)))
    p("s_mov_b32 %s, 300000" % s(S_BUDW))
    p("s_waitcnt lgkmcnt(0)")


TSTAMP = [False]


def wstamp(p, k, role="s21", sws=SWS):
    if not TSTAMP[0]:
        return
    p("s_memrealtime s[98:99]")
    p("s_lshl_b32 s97, %s, 8" % role)
    p("s_add_u32 s97, s97, 0x%x" % (OFF_STAMP + 0x200000 + 4 * k))
    p("s_waitcnt lgkmcnt(0)")
    p("v_mov_b32 v254, s98")
    p("v_mov_b32 v255, 0")
    p("s_mov_b64 exec, 1")
    p("buffer_store_dword v254, v255, %s, s97 offen" % s(sws, 4))
    p("s_mov_b64 exec, -1")


def lane_fields(p, r16, g, r, c):
    p("v_and_b32 %s, 15, %s" % (v(r16), v(V_LANE)))
    p("v_lshrrev_b32 %s, 4, %s" % (v(g), v(V_LANE)))
    p("v_bfe_u32 %s, %s, 2, 2" % (v(r), v(V_LANE)))
    p("v_and_b32 %s, 3, %s" % (v(c), v(V_LANE)))


def bfrag(i, r=0, n=4):
    if i < 64:
        return a(4 * i + r, n)
    return v(208 + 4 * (i - 64) + r, n)


XB0 = 98304
XB1 = 0
V_XA = 202


def x_dma_setup(p):
    p("v_and_b32 v1, 15, %s" % v(V_LANE))
    p("v_mul_u32_u24 v1, 1152, v1")
    p("v_lshrrev_b32 v2, 4, %s" % v(V_LANE))
    p("v_lshl_add_u32 %s, v2, 4, v1" % v(V_XA))


def x_dma(p, srow, sbuf, st0, st1):
    p("s_add_u32 %s, %s, %s" % (s(st0), s(srow), s(S_K)))
    p("s_add_u32 %s, %s, %s" % (s(st1), s(sbuf), s(S_L)))
    for i in range(9):
        p("s_add_u32 m0, %s, %d" % (s(st1), i * 1024))
        if i:
            p("s_add_u32 %s, %s, 64" % (s(st0), s(st0)))
        else:
            p("s_nop 0")
        p("buffer_load_dwordx4 %s, %s, %s offen lds" % (v(V_XA), s(SX, 4), s(st0)))


def x_dma_consts(p):
    p("s_lshr_b32 %s, %s, 1" % (s(S_K), s(S_WV)))
    p("s_mul_i32 %s, %s, %d" % (s(S_K), s(S_K), 16 * 1152))
    p("s_and_b32 %s, %s, 1" % (s(S_L), s(S_WV)))
    p("s_mul_i32 %s, %s, 576" % (s(S_L), s(S_L)))
    p("s_add_u32 %s, %s, %s" % (s(S_K), s(S_K), s(S_L)))
    p("s_mul_i32 %s, %s, 9216" % (s(S_L), s(S_WV)))


def gen_gemm1(p, done_label):
    S_Q, S_ROW, S_OUT, S_FLAG, S_IT, S_BUF, S_VT = S_A, S_B, S_C_, S_D, S_E, S_F, S_G
    S_T0, S_T1 = S_H_, S_I
    NB = DM * H * DH * 2
    p.c("---- projection GEMM role")
    p("s_load_dwordx2 s[40:41], s[0:1], %d" % (A_WQ * 8))
    p("s_load_dwordx2 s[42:43], s[0:1], %d" % (A_WK * 8))
    p("s_load_dwordx2 s[44:45], s[0:1], %d" % (A_WV * 8))
    p("s_mov_b32 %s, %d" % (s(SA + 2), NB))
    p("s_mov_b32 %s, 0x20000" % s(SA + 3))
    p("s_mov_b32 %s, %d" % (s(SB + 2), NB))
    p("s_mov_b32 %s, 0x20000" % s(SB + 3))
    p("s_and_b32 %s, %s, 3" % (s(S_Q), s(S_RANK)))
    p("s_mov_b32 s48, 16")
    p("s_mov_b32 s49, %d" % (4 * 32 * 1152))
    p("s_mov_b32 s50, 0x100000")
    p("s_lshr_b32 %s, %s, 2" % (s(S_T0), s(S_RANK)))
    p("s_lshr_b32 %s, %s, 1" % (s(S_T1), s(S_WV)))
    p("s_waitcnt lgkmcnt(0)")
    lq = p.newlabel("G1Q")
    le = p.newlabel("G1E")
    p("s_cmp_ge_u32 %s, 32" % s(S_T0))
    p("s_cbranch_scc1 %s" % lq)
    p("s_mov_b32 %s, s42" % s(SA))
    p("s_mov_b32 %s, s43" % s(SA + 1))
    p("s_mov_b32 %s, s44" % s(SB))
    p("s_mov_b32 %s, s45" % s(SB + 1))
    p("s_lshl_b32 s46, %s, 8" % s(S_T0))
    p("s_mov_b32 s47, s46")
    p("s_mov_b32 %s, %s" % (s(S_VT), s(S_T1)))
    p("s_lshl_b32 %s, %s, 13" % (s(S_OUT), s(S_T0)))
    p("s_mul_i32 %s, %s, 0x%x" % (s(S_T1), s(S_T1), OFF_VX - OFF_KX))
    p("s_add_u32 %s, %s, %s" % (s(S_OUT), s(S_OUT), s(S_T1)))
    p("s_add_u32 %s, %s, 0x%x" % (s(S_OUT), s(S_OUT), OFF_KX))
    p("s_branch %s" % le)
    p.label(lq)
    p("s_mov_b32 %s, s40" % s(SA))
    p("s_mov_b32 %s, s41" % s(SA + 1))
    p("s_mov_b32 %s, s40" % s(SB))
    p("s_mov_b32 %s, s41" % s(SB + 1))
    p("s_sub_u32 %s, %s, 128" % (s(S_T0), s(S_RANK)))
    p("s_and_b32 %s, %s, 1" % (s(S_Q), s(S_T0)))
    p("s_lshr_b32 %s, %s, 1" % (s(S_T0), s(S_T0)))
    p("s_mov_b32 s48, 32")
    p("s_mov_b32 s49, %d" % (2 * 32 * 1152))
    p("s_mov_b32 s50, 0x80000")
    p("s_lshl_b32 s46, %s, 9" % s(S_T0))
    p("s_add_u32 s47, s46, 256")
    p("s_mov_b32 %s, 0" % s(S_VT))
    p("s_lshl_b32 %s, %s, 1" % (s(S_T0), s(S_T0)))
    p("s_add_u32 %s, %s, %s" % (s(S_T0), s(S_T0), s(S_T1)))
    p("s_lshl_b32 %s, %s, 13" % (s(S_OUT), s(S_T0)))
    p("s_add_u32 %s, %s, 0x%x" % (s(S_OUT), s(S_OUT), OFF_QX))
    p.label(le)
    p("s_lshl_b32 %s, %s, 18" % (s(S_T0), s(S_Q)))
    p("s_add_u32 %s, %s, %s" % (s(S_OUT), s(S_OUT), s(S_T0)))
    p("s_and_b32 %s, %s, 1" % (s(S_T0), s(S_WV)))
    p("s_add_u32 %s, %s, 11" % (s(S_T1), s(S_VT)))
    p("s_lshl_b32 %s, %s, %s" % (s(S_T0), s(S_T0), s(S_T1)))
    p("s_add_u32 %s, %s, %s" % (s(S_OUT), s(S_OUT), s(S_T0)))
    p("s_lshl_b32 %s, %s, 7" % (s(S_FLAG), s(S_RANK)))
    p("s_add_u32 %s, %s, 0x%x" % (s(S_FLAG), s(S_FLAG), OFF_FLAG + F_G1))
    p("s_mul_i32 %s, %s, %d" % (s(S_ROW), s(S_Q), 32 * 1152))
    x_dma_setup(p)
    x_dma_consts(p)
    p("s_mov_b32 %s, %d" % (s(S_BUF), XB0))
    x_dma(p, S_ROW, S_BUF, S_T0, S_T1)
    lane_fields(p, 1, 2, 3, 4)
    p("s_lshr_b32 %s, %s, 1" % (s(S_T0), s(S_WV)))
    p("s_lshl_b32 %s, %s, 2" % (s(S_T0), s(S_T0)))
    p("v_or_b32 v5, %s, v2" % s(S_T0))
    p("v_lshlrev_b32 v5, 1, v5")
    p("v_xor_b32 v5, v5, v1")
    p("v_lshlrev_b32 v5, 4, v5")
    p("v_lshl_add_u32 v5, v2, 13, v5")
    p("s_lshl_b32 %s, %s, 15" % (s(S_T0), s(S_WV)))
    p("v_add_u32 v5, %s, v5" % s(S_T0))
    p("v_add_u32 v8, s46, v5")
    p("v_add_u32 v9, s47, v5")
    p("v_and_b32 v6, 1, v2")
    p("v_lshl_or_b32 v6, v6, 2, v3")
    p("s_and_b32 %s, %s, 1" % (s(S_T0), s(S_WV)))
    p("s_lshl_b32 %s, %s, 2" % (s(S_T0), s(S_T0)))
    p("v_xor_b32 v6, %s, v6" % s(S_T0))
    p("v_lshl_add_u32 v7, v2, 3, v3")
    p("v_lshlrev_b32 v7, 8, v7")
    p("v_lshl_add_u32 v7, v4, 3, v7")
    p("s_lshr_b32 %s, %s, 1" % (s(S_T0), s(S_WV)))
    p("s_lshl_b32 %s, %s, 14" % (s(S_T0), s(S_T0)))
    p("v_add_u32 v7, %s, v7" % s(S_T0))
    for t in range(4):
        p("v_xor_b32 v10, %d, v6" % t)
        p("v_lshl_add_u32 v%d, v10, 5, v7" % (12 + t))
    p("s_lshl_b32 %s, %s, 10" % (s(S_J), s(S_WV)))

    def issue(kb):
        slot = kb % 3
        for grp in range(2):
            for qq in range(4):
                p("s_add_u32 m0, %s, %d" % (s(S_J), slot * 32768 + grp * 16384 + qq * 4096))
                p("s_mov_b32 %s, %d" % (s(S_T0), (64 * kb + 16 * qq) * 8192))
                p("buffer_load_dwordx4 v%d, %s, %s offen lds" % (8 + grp, s((SA, SB)[grp], 4), s(S_T0)))

    for kb in range(3):
        issue(kb)
    issued = 3
    for kb in range(9):
        slot = kb % 3
        p("s_waitcnt vmcnt(%d) lgkmcnt(0)" % (8 * (issued - kb - 1)))
        p("s_barrier")
        if kb >= 1 and issued < 9:
            issue(issued)
            issued += 1
        for t in range(4):
            p("v_add_u32 v%d, %d, v%d" % (16 + t, slot * 32768, 12 + t))
        for k2 in range(2):
            for t in range(4):
                for hf in range(2):
                    i = t * 18 + 2 * kb + k2
                    p("ds_read_b64_tr_b16 %s, v%d offset:%d" % (bfrag(i, 2 * hf, 2), 16 + t, k2 * 8192 + hf * 1024))
    wstamp(p, 2, "s96")
    p("s_mov_b32 %s, 0" % s(S_IT))
    p("v_mov_b32 v203, 0")
    p("s_waitcnt vmcnt(0) lgkmcnt(0)")
    lv = p.newlabel("G1V")
    p("s_cmp_lg_u32 %s, 0" % s(S_VT))
    p("s_cbranch_scc1 %s" % lv)
    for vtype in (0, 1):
        if vtype:
            p.label(lv)
        top = p.newlabel("G1L")
        p.label(top)
        p("s_waitcnt vmcnt(4)")
        p("s_barrier")
        p("s_max_u32 %s, %s, 1" % (s(S_T0), s(S_IT)))
        p("s_sub_u32 %s, %s, 1" % (s(S_T0), s(S_T0)))
        p("v_mov_b32 v204, %s" % s(S_T0))
        p("s_mov_b64 exec, 1")
        p("buffer_store_dword v204, v203, %s, %s offen sc1" % (s(SWS, 4), s(S_FLAG)))
        p("s_mov_b64 exec, -1")
        p("v_add_u32 v205, %s, %s" % (s(S_BUF), v(V_L16)))
        p("s_add_u32 %s, %s, s49" % (s(S_ROW), s(S_ROW)))
        p("s_xor_b32 %s, %s, %d" % (s(S_BUF), s(S_BUF), XB0 ^ XB1))
        x_dma(p, S_ROW, S_BUF, S_T0, S_T1)
        NX = 6
        XR = 40
        for f in range(NX):
            p("ds_read_b128 %s, v205 offset:%d" % (v(XR + 4 * f, 4), f * 1024))
        for f in range(36):
            rt, ks = divmod(f, 18)
            p("s_waitcnt lgkmcnt(%d)" % min(NX - 2, 35 - f) if f else "s_waitcnt lgkmcnt(%d)" % (NX - 1))
            xr = v(XR + 4 * (f % NX), 4)
            for t in range(4):
                acc = v(16 * rt + 4 * t, 4)
                c = "0" if ks == 0 else acc
                if vtype:
                    p("v_mfma_f32_16x16x32_bf16 %s, %s, %s, %s" % (acc, xr, bfrag(t * 18 + ks), c))
                else:
                    p("v_mfma_f32_16x16x32_bf16 %s, %s, %s, %s" % (acc, bfrag(t * 18 + ks), xr, c))
                if t == 0 and f >= 1 and f - 1 + NX < 36:
                    g_ = f - 1 + NX
                    p("ds_read_b128 %s, v205 offset:%d" % (v(XR + 4 * (g_ % NX), 4), g_ * 1024))
        PK = 64
        p("s_add_u32 %s, %s, 4096" % (s(S_T0), s(S_OUT)))
        for o in range(4):
            if vtype:
                src = [4 * o, 16 + 4 * o]
                so, off = S_OUT, o * 1024
            else:
                rt, tp = divmod(o, 2)
                src = [16 * rt + 8 * tp, 16 * rt + 8 * tp + 4]
                so, off = (S_OUT, S_T0)[rt], tp * 1024
            d = PK + 4 * o
            for i, b in enumerate(src):
                p("v_cvt_pk_bf16_f32 %s, %s, %s" % (v(d + 2 * i), v(b), v(b + 1)))
                p("v_cvt_pk_bf16_f32 %s, %s, %s" % (v(d + 2 * i + 1), v(b + 2), v(b + 3)))
            p("buffer_store_dwordx4 %s, %s, %s, %s offen offset:%d sc1" % (v(d, 4), v(V_L16), s(SWS, 4), s(so), off))
        p("s_add_u32 %s, %s, s50" % (s(S_OUT), s(S_OUT)))
        p("s_add_u32 %s, %s, 1" % (s(S_IT), s(S_IT)))
        p("s_cmp_lt_u32 %s, s48" % s(S_IT))
        p("s_cbranch_scc1 %s" % top)
        p("s_waitcnt vmcnt(0)")
        p("s_barrier")
        p("v_mov_b32 v204, s48")
        p("s_mov_b64 exec, 1")
        p("buffer_store_dword v204, v203, %s, %s offen sc1" % (s(SWS, 4), s(S_FLAG)))
        p("s_mov_b64 exec, -1")
        p("s_branch %s" % done_label)


def poll_flags(p, voff, soff, nlanes, target, tmp, fail="W_FAIL", cmp_sgpr=None, cmp_vgpr=None, sleep=8):
    top = p.newlabel("POLL")
    ok = p.newlabel("POLLOK")
    p("s_mov_b32 exec_lo, 0x%x" % (((1 << nlanes) - 1) & 0xffffffff))
    p("s_mov_b32 exec_hi, 0x%x" % (((1 << nlanes) - 1) >> 32))
    p.label(top)
    p("buffer_load_dword %s, %s, %s, %s offen sc1" % (v(tmp), v(voff), s(SWS, 4), s(soff)))
    p("s_waitcnt vmcnt(0)")
    p("v_cmp_gt_u32 vcc, %s, %s" % (v(cmp_vgpr) if cmp_vgpr is not None else (s(cmp_sgpr) if cmp_sgpr is not None else str(target)), v(tmp)))
    p("s_cbranch_vccz %s" % ok)
    p("s_sleep %d" % sleep)
    p("s_sub_u32 %s, %s, 1" % (s(S_BUDW), s(S_BUDW)))
    p("s_cbranch_scc0 %s" % top)
    p("s_mov_b64 exec, -1")
    p("s_branch %s" % fail)
    p.label(ok)
    p("s_mov_b64 exec, -1")


LOG2E = f2u(math.log2(math.e))
EPS6 = f2u(1e-6)


def phi(p, dst, src, t0):
    p("v_min_f32 %s, 0, %s" % (v(t0), v(src)))
    p("v_mul_f32 %s, s36, %s" % (v(t0), v(t0)))
    p("v_exp_f32 %s, %s" % (v(t0), v(t0)))
    p("v_max_f32 %s, 0, %s" % (v(dst), v(src)))
    p("v_add_f32 %s, 0x%x, %s" % (v(dst), EPS6, v(dst)))
    p("v_add_f32 %s, %s, %s" % (v(dst), v(dst), v(t0)))


def gen_bbranch(p, done_label):
    S_Q, S_ROW, S_PQ, S_FLAG, S_IT, S_BUF, S_HD = S_A, S_B, S_C_, S_D, S_E, S_F, S_G
    S_T0, S_T1 = S_H_, S_I
    S_GO, S_ISG, S_OC = 37, 38, 39
    p.c("---- branch B role")
    srd(p, SA, B_WQKV, DM * 3 * DM * 2)
    srd(p, SB, GATE, DM * 2)
    p("s_mov_b32 s36, 0x%x" % LOG2E)
    p("s_sub_u32 %s, %s, 160" % (s(S_T0), s(S_RANK)))
    p("s_and_b32 %s, %s, 7" % (s(S_Q), s(S_T0)))
    p("s_lshr_b32 %s, %s, 3" % (s(S_HD), s(S_T0)))
    p("s_lshl_b32 %s, %s, 2" % (s(S_HD), s(S_HD)))
    p("s_add_u32 %s, %s, %s" % (s(S_HD), s(S_HD), s(S_WV)))
    p("s_lshl_b32 %s, %s, 7" % (s(S_FLAG), s(S_T0)))
    p("s_add_u32 %s, %s, 0x%x" % (s(S_FLAG), s(S_FLAG), OFF_FLAG + F_KV))
    p("s_mul_i32 %s, %s, %d" % (s(S_ROW), s(S_Q), 256 * 1152))
    p("s_lshl_b32 %s, %s, 2" % (s(S_T0), s(S_T0)))
    p("s_add_u32 %s, %s, %s" % (s(S_T0), s(S_T0), s(S_WV)))
    p("s_lshl_b32 %s, %s, 14" % (s(S_PQ), s(S_T0)))
    p("s_add_u32 %s, %s, 0x%x" % (s(S_PQ), s(S_PQ), OFF_PQ))
    p("s_lshl_b32 %s, %s, 10" % (s(S_GO), s(S_Q)))
    p("s_add_u32 %s, %s, 0x%x" % (s(S_GO), s(S_GO), OFF_G))
    x_dma_setup(p)
    x_dma_consts(p)
    p("s_mov_b32 %s, %d" % (s(S_BUF), XB0))
    p("s_waitcnt lgkmcnt(0)")
    x_dma(p, S_ROW, S_BUF, S_T0, S_T1)
    lane_fields(p, 1, 2, 3, 4)
    GF = 128
    p("v_lshlrev_b32 v5, 4, v2")
    for ks in range(18):
        p("buffer_load_dwordx4 %s, v5, %s, 0 offen offset:%d" % (v(GF + 4 * ks, 4), s(SB, 4), ks * 64))
    p("s_mul_i32 %s, %s, 36" % (s(S_T0), s(S_HD)))
    p("v_and_b32 v5, 7, %s" % v(V_LANE))
    p("v_bfe_u32 v6, %s, 3, 2" % v(V_LANE))
    p("v_lshrrev_b32 v7, 5, %s" % v(V_LANE))
    p("v_mul_u32_u24 v7, 3456, v7")
    p("v_add_u32 v7, %s, v7" % s(S_T0))
    p("v_lshlrev_b32 v12, 2, v5")
    p("v_mov_b32 v13, 0x40000000")
    for j, o in ((0, 1184), (1, 2336), (2, 32)):
        p("v_cmp_eq_u32 vcc, %d, v5" % j)
        p("v_mov_b32 v14, %d" % o)
        p("v_cndmask_b32 v13, v13, v14, vcc")
    for f2 in range(4):
        p("v_xor_b32 v14, %d, v6" % f2)
        p("v_add_u32 v15, 1152, v12")
        p("v_add_u32 v16, 2304, v12")
        p("v_cmp_eq_u32 vcc, 1, v14")
        p("v_cndmask_b32 v15, v15, v16, vcc")
        p("v_cmp_eq_u32 vcc, 2, v14")
        p("v_cndmask_b32 v15, v15, v13, vcc")
        p("v_cmp_eq_u32 vcc, 3, v14")
        p("v_cndmask_b32 v15, v15, v12, vcc")
        p("v_add_u32 v%d, v15, v7" % (8 + f2))
    p("v_and_b32 v5, 1, v2")
    p("v_lshrrev_b32 v6, 1, v3")
    p("v_lshl_or_b32 v6, v5, 1, v6")
    p("v_lshl_add_u32 v7, v2, 3, v3")
    p("v_lshlrev_b32 v7, 7, v7")
    p("v_lshl_add_u32 v7, v4, 3, v7")
    p("s_mul_i32 %s, %s, 24576" % (s(S_J), s(S_WV)))
    p("v_add_u32 v7, %s, v7" % s(S_J))
    for t in range(4):
        p("v_xor_b32 v5, %d, v6" % t)
        p("v_lshl_add_u32 v%d, v5, 5, v7" % (12 + t))
    p("s_waitcnt vmcnt(0)")

    def issue(ks):
        slot = ks % 3
        for i in range(16):
            f2 = (i & 1) | (((i >> 2) & 1) << 1)
            p("s_add_u32 m0, %s, %d" % (s(S_J), slot * 4096 + i * 256))
            p("s_mov_b32 %s, %d" % (s(S_T0), (32 * ks + 2 * i) * 3456))
            p("buffer_load_dword v%d, %s, %s offen lds" % (8 + f2, s(SA, 4), s(S_T0)))

    for ks in range(3):
        issue(ks)
    issued = 3
    for ks in range(18):
        slot = ks % 3
        p("s_waitcnt vmcnt(%d)" % (16 * (issued - ks - 1)))
        for t in range(4):
            for hf in range(2):
                p("ds_read_b64_tr_b16 %s, v%d offset:%d" % (bfrag(t * 18 + ks, 2 * hf, 2), 12 + t, slot * 4096 + hf * 512))
        if issued < 18:
            p("s_waitcnt lgkmcnt(0)")
            issue(issued)
            issued += 1
    wstamp(p, 2, "s96")
    KV = 96
    ONE = 120
    for r in range(24):
        p("v_mov_b32 %s, 0" % v(KV + r))
    for r in range(4):
        p("v_mov_b32 %s, 0x3f803f80" % v(ONE + r))
    p("s_mov_b32 %s, 0" % s(S_IT))
    p("v_mov_b32 v203, 0")
    p("s_mov_b32 s40, 0xffff0000")
    p("s_mov_b32 s41, 0")
    p("s_waitcnt vmcnt(0) lgkmcnt(0)")
    top = p.newlabel("BL")
    p.label(top)
    p("s_waitcnt vmcnt(2)")
    p("s_barrier")
    p("v_add_u32 v205, %s, %s" % (s(S_BUF), v(V_L16)))
    p("s_add_u32 %s, %s, %d" % (s(S_ROW), s(S_ROW), 32 * 1152))
    p("s_xor_b32 %s, %s, %d" % (s(S_BUF), s(S_BUF), XB0 ^ XB1))
    x_dma(p, S_ROW, S_BUF, S_T0, S_T1)
    NX = 6
    XR = 40
    for f in range(NX):
        p("ds_read_b128 %s, v205 offset:%d" % (v(XR + 4 * f, 4), f * 1024))
    for f in range(36):
        rt, ks = divmod(f, 18)
        p("s_waitcnt lgkmcnt(%d)" % min(NX - 2, 35 - f) if f else "s_waitcnt lgkmcnt(%d)" % (NX - 1))
        xr = v(XR + 4 * (f % NX), 4)
        for i, (t, tr) in enumerate(((0, 0), (1, 0), (2, 0), (3, 1), (2, 1))):
            acc = v(20 * rt + 4 * i, 4)
            c = "0" if ks == 0 else acc
            if not tr:
                p("v_mfma_f32_16x16x32_bf16 %s, %s, %s, %s" % (acc, xr, bfrag(t * 18 + ks), c))
            else:
                p("v_mfma_f32_16x16x32_bf16 %s, %s, %s, %s" % (acc, bfrag(t * 18 + ks), xr, c))
            if i == 0 and f >= 1 and f - 1 + NX < 36:
                g_ = f - 1 + NX
                p("ds_read_b128 %s, v205 offset:%d" % (v(XR + 4 * (g_ % NX), 4), g_ * 1024))
    ng = p.newlabel("NOG")
    p("s_cmp_lg_u32 %s, 0" % s(S_HD))
    p("s_cbranch_scc1 %s" % ng)
    GA = 64
    for f0 in range(0, 36, 6):
        for f in range(f0, f0 + 6):
            p("ds_read_b128 %s, v205 offset:%d" % (v(XR + 4 * (f % 6), 4), f * 1024))
        p("s_waitcnt lgkmcnt(0)")
        for f in range(f0, f0 + 6):
            rt, ks = divmod(f, 18)
            acc = v(GA + 4 * rt, 4)
            p("v_mfma_f32_16x16x32_bf16 %s, %s, %s, %s" % (acc, v(GF + 4 * ks, 4), v(XR + 4 * (f % 6), 4), "0" if ks == 0 else acc))
    p("v_lshlrev_b32 v72, 2, %s" % v(V_LANE))
    for rt in range(2):
        g = GA + 4 * rt
        p("v_mul_f32 %s, s36, %s" % (v(g), v(g)))
        p("v_exp_f32 %s, -%s" % (v(g), v(g)))
        p("v_add_f32 %s, 1.0, %s" % (v(g), v(g)))
        p("v_rcp_f32 %s, %s" % (v(g), v(g)))
        p("s_mov_b64 exec, 0xffff")
        p("buffer_store_dword %s, v72, %s, %s offen offset:%d sc1" % (v(g), s(SWS, 4), s(S_GO), rt * 64))
        p("s_mov_b64 exec, -1")
    p("s_add_u32 %s, %s, 128" % (s(S_GO), s(S_GO)))
    p.label(ng)
    KA, XA, VB, XB, PQ = 64, 68, 72, 76, 80
    T = 88
    for rt in range(2):
        b = 20 * rt
        p("v_cvt_pk_bf16_f32 %s, %s, %s" % (v(VB + 2 * rt), v(b + 4), v(b + 5)))
        p("v_cvt_pk_bf16_f32 %s, %s, %s" % (v(VB + 2 * rt + 1), v(b + 6), v(b + 7)))
        p("v_cvt_pk_bf16_f32 %s, %s, %s" % (v(XB + 2 * rt), v(b + 8), v(b + 9)))
        p("v_cvt_pk_bf16_f32 %s, %s, %s" % (v(XB + 2 * rt + 1), v(b + 10), v(b + 11)))
        for i, r in enumerate(list(range(0, 4)) + list(range(8, 18))):
            phi(p, b + r, b + r, T + (i & 3))
        p("v_cvt_pk_bf16_f32 %s, %s, %s" % (v(KA + 2 * rt), v(b), v(b + 1)))
        p("v_cvt_pk_bf16_f32 %s, %s, %s" % (v(KA + 2 * rt + 1), v(b + 2), v(b + 3)))
        p("v_cvt_pk_bf16_f32 %s, %s, %s" % (v(XA + 2 * rt), v(b + 8), v(b + 9)))
        p("v_cvt_pk_bf16_f32 %s, %s, %s" % (v(XA + 2 * rt + 1), v(b + 10), v(b + 11)))
        p("v_cvt_pk_bf16_f32 %s, %s, %s" % (v(PQ + 2 * rt), v(b + 12), v(b + 13)))
        p("v_cvt_pk_bf16_f32 %s, %s, %s" % (v(PQ + 2 * rt + 1), v(b + 14), v(b + 15)))
        p("v_cvt_pk_bf16_f32 %s, %s, %s" % (v(T), v(b + 16), v(b + 17)))
        p("v_cndmask_b32 %s, 0, %s, s[40:41]" % (v(PQ + 4 + rt), v(T)))
    for dp, A_ in enumerate((KA, XA)):
        for E, B_ in enumerate((VB, XB, ONE)):
            acc = v(KV + 4 * (3 * dp + E), 4)
            p("v_mfma_f32_16x16x32_bf16 %s, %s, %s, %s" % (acc, v(A_, 4), v(B_, 4), acc))
    p("buffer_store_dwordx4 %s, %s, %s, %s offen" % (v(PQ, 4), v(V_L16), s(SWS, 4), s(S_PQ)))
    p("buffer_store_dwordx2 %s, %s, %s, %s offen offset:1024" % (v(PQ + 4, 2), v(V_L16), s(SWS, 4), s(S_PQ)))
    p("s_add_u32 %s, %s, 2048" % (s(S_PQ), s(S_PQ)))
    p("s_add_u32 %s, %s, 1" % (s(S_IT), s(S_IT)))
    p("s_cmp_lt_u32 %s, 8" % s(S_IT))
    p("s_cbranch_scc1 %s" % top)
    p("s_lshl_b32 %s, %s, 3" % (s(S_T0), s(S_HD)))
    p("s_mul_i32 %s, %s, 6144" % (s(S_OC), s(S_T0)))
    p("s_add_u32 %s, %s, 0x%x" % (s(S_OC), s(S_OC), OFF_KV))
    p("s_mul_i32 %s, %s, 6144" % (s(S_T0), s(S_Q)))
    p("s_add_u32 %s, %s, %s" % (s(S_T0), s(S_T0), s(S_OC)))
    p("s_add_u32 %s, %s, 3072" % (s(S_T1), s(S_T0)))
    for t in range(6):
        p("buffer_store_dwordx4 %s, %s, %s, %s offen offset:%d sc1" % (v(KV + 4 * t, 4), v(V_L16), s(SWS, 4), s((S_T0, S_T1)[t // 3]), (t % 3) * 1024))
    p("s_waitcnt vmcnt(0)")
    p("s_barrier")
    p("v_mov_b32 v204, 1")
    p("s_mov_b64 exec, 1")
    p("buffer_store_dword v204, v203, %s, %s offen sc1" % (s(SWS, 4), s(S_FLAG)))
    p("s_mov_b64 exec, -1")
    wstamp(p, 3, "s96")
    p("v_lshlrev_b32 v1, 3, %s" % v(V_L16))
    p("s_and_b32 %s, %s, 0xfffffc00" % (s(S_T0), s(S_FLAG)))
    poll_flags(p, 1, S_T0, 8, 1, 2, sleep=2)
    p("v_and_b32 v1, 0xf0, %s" % v(V_L16))
    for q in range(8):
        p("s_add_u32 %s, %s, %d" % (s(S_T0), s(S_OC), q * 6144))
        p("s_add_u32 %s, %s, %d" % (s(S_T1), s(S_OC), q * 6144 + 3072))
        for t in range(6):
            p("buffer_load_dwordx4 %s, %s, %s, %s offen offset:%d sc1" % (v(8 + 24 * q + 4 * t, 4), v(V_L16) if t < 3 else "v1", s(SWS, 4), s((S_T0, S_T1)[t // 3]), (t % 3) * 1024))
    p("s_waitcnt vmcnt(0)")
    AK_ = 104
    for r in range(24):
        for q in range(1, 8):
            p("v_add_f32 %s, %s, %s" % (v(8 + r), v(8 + r), v(8 + 24 * q + r)))
    for t in range(6):
        p("v_cvt_pk_bf16_f32 %s, %s, %s" % (v(AK_ + 2 * t), v(8 + 4 * t), v(9 + 4 * t)))
        p("v_cvt_pk_bf16_f32 %s, %s, %s" % (v(AK_ + 2 * t + 1), v(10 + 4 * t), v(11 + 4 * t)))
    wstamp(p, 4, "s96")
    p("s_sub_u32 %s, %s, 16384" % (s(S_PQ), s(S_PQ)))
    p("s_mul_i32 %s, %s, %d" % (s(S_OC), s(S_Q), 16 * 146 * 1024))
    p("s_add_u32 %s, %s, 0x%x" % (s(S_OC), s(S_OC), OFF_OC))
    p("s_lshr_b32 %s, %s, 1" % (s(S_T0), s(S_HD)))
    p("s_lshl_b32 %s, %s, 10" % (s(S_T0), s(S_T0)))
    p("s_and_b32 %s, %s, 1" % (s(S_T1), s(S_HD)))
    p("s_lshl_b32 %s, %s, 3" % (s(S_T1), s(S_T1)))
    p("s_add_u32 s42, %s, %s" % (s(S_T0), s(S_T1)))
    p("s_add_u32 s42, s42, %d" % (128 * 1024))
    p("s_add_u32 s42, s42, %s" % s(S_OC))
    p("s_lshr_b32 %s, %s, 2" % (s(S_T0), s(S_HD)))
    p("s_lshl_b32 %s, %s, 8" % (s(S_T0), s(S_T0)))
    p("s_and_b32 %s, %s, 3" % (s(S_T1), s(S_HD)))
    p("s_lshl_b32 %s, %s, 2" % (s(S_T1), s(S_T1)))
    p("s_add_u32 s43, %s, %s" % (s(S_T0), s(S_T1)))
    p("s_add_u32 s43, s43, %d" % (144 * 1024))
    p("s_add_u32 s43, s43, %s" % s(S_OC))
    p("v_mov_b32 v9, 0")
    p("v_mov_b32 v11, 0")
    PQR = 128
    for it in range(8):
        p("buffer_load_dwordx4 %s, %s, %s, %s offen sc1" % (v(PQR + 6 * it, 4), v(V_L16), s(SWS, 4), s(S_PQ)))
        p("buffer_load_dwordx2 %s, %s, %s, %s offen offset:1024 sc1" % (v(PQR + 6 * it + 4, 2), v(V_L16), s(SWS, 4), s(S_PQ)))
        p("s_add_u32 %s, %s, 2048" % (s(S_PQ), s(S_PQ)))
    p("s_waitcnt vmcnt(0)")
    for it in range(8):
        q0 = PQR + 6 * it
        p("v_mov_b32 v8, %s" % v(q0 + 4))
        p("v_mov_b32 v10, %s" % v(q0 + 5))
        o = 16 + 24 * (it & 1)
        for rt in range(2):
            for E in range(3):
                acc = v(o + 12 * rt + 4 * E, 4)
                p("v_mfma_f32_16x16x16_bf16 %s, %s, %s, 0" % (acc, v(AK_ + 2 * E, 2), v(q0 + 2 * rt, 2)))
                p("v_mfma_f32_16x16x16_bf16 %s, %s, %s, %s" % (acc, v(AK_ + 2 * (3 + E), 2), v(8 + 2 * rt, 2), acc))
        for rt in range(2):
            b = o + 12 * rt
            p("v_add_f32 %s, 0x%x, %s" % (v(b + 8), EPS6, v(b + 8)))
            p("v_rcp_f32 %s, %s" % (v(b + 8), v(b + 8)))
            for r in (0, 1, 2, 3, 6, 7):
                p("v_mul_f32 %s, %s, %s" % (v(b + r), v(b + r), v(b + 8)))
            p("v_cvt_pk_bf16_f32 %s, %s, %s" % (v(b), v(b), v(b + 1)))
            p("v_cvt_pk_bf16_f32 %s, %s, %s" % (v(b + 1), v(b + 2), v(b + 3)))
            p("v_cvt_pk_bf16_f32 %s, %s, %s" % (v(b + 2), v(b + 6), v(b + 7)))
            p("buffer_store_dwordx2 %s, %s, %s, s42 offen sc1" % (v(b, 2), v(V_L16), s(SWS, 4)))
            p("s_mov_b64 exec, 0xffff")
            p("buffer_store_dword %s, %s, %s, s43 offen sc1" % (v(b + 2), v(V_L16), s(SWS, 4)))
            p("s_mov_b64 exec, -1")
            p("s_add_u32 s42, s42, %d" % (146 * 1024))
            p("s_add_u32 s43, s43, %d" % (146 * 1024))
    p("s_waitcnt vmcnt(0)")
    p("s_barrier")
    p("s_add_u32 %s, %s, %d" % (s(S_FLAG), s(S_FLAG), F_B2 - F_KV))
    p("s_mov_b64 exec, 1")
    p("buffer_store_dword v204, v203, %s, %s offen sc1" % (s(SWS, 4), s(S_FLAG)))
    p("s_mov_b64 exec, -1")
    p("s_branch %s" % done_label)


def gen_attn(p, done_label):
    S_SEG, S_HD, S_BASE, S_QT, S_EH = S_B, S_C_, S_D, S_E, S_F
    S_T0, S_T1, S_T2 = S_H_, S_I, S_J
    SENT = 0xFFBFFFBF
    p.c("---- mem projection + x-row attention role")
    p("s_mov_b32 s36, 0x%x" % f2u(DH ** -0.5 * math.log2(math.e)))
    p("s_lshr_b32 %s, %s, 2" % (s(S_HD), s(S_RANK)))
    p("s_and_b32 %s, %s, 3" % (s(S_SEG), s(S_RANK)))
    p("s_and_b32 %s, %s, 1" % (s(S_QT), s(S_WV)))
    p("s_lshr_b32 %s, %s, 1" % (s(S_EH), s(S_WV)))
    MF, QF, KF, VF, KM, VM, SC, PJ = 0, 72, 88, 120, 136, 152, 160, 172
    p("v_and_b32 v1, 15, %s" % v(V_LANE))
    p("s_lshl_b32 %s, %s, 4" % (s(S_T0), s(S_QT)))
    p("v_add_u32 v1, %s, v1" % s(S_T0))
    p("v_lshrrev_b32 v2, 4, %s" % v(V_LANE))
    p("v_lshlrev_b32 v3, 2, v2")
    for kt in range(2):
        for r in range(4):
            p("v_add_u32 v4, %d, v3" % (16 * kt + r))
            p("v_cmp_gt_u32 %s, v4, v1" % s(40 + 8 * kt + 2 * r, 2))
    p("s_mov_b32 s56, 0")
    p("s_mov_b32 s57, -1")
    p("v_mov_b32 v203, 0")
    p("v_lshrrev_b32 v204, 1, %s" % v(V_L16))
    p("v_and_b32 v4, 7, %s" % v(V_LANE))
    p("v_lshl_add_u32 v4, v2, 3, v4")
    p("v_lshlrev_b32 v202, 4, v4")
    p("s_lshl_b32 s58, %s, 9" % s(S_HD))
    p("s_lshr_b32 s59, %s, 1" % s(S_HD))
    p("s_lshl_b32 s59, s59, 8")
    p("s_add_u32 s59, s59, %d" % (128 * 128))
    p("v_mov_b32 v206, 0xff800000")
    p("s_lshl_b32 %s, %s, 11" % (s(S_T0), s(S_WV)))
    p("v_add_u32 v240, %s, %s" % (s(S_T0), v(V_L16)))
    p("s_lshl_b32 %s, %s, 11" % (s(S_T0), s(S_EH)))
    p("v_add_u32 v241, %s, %s" % (s(S_T0), v(V_L16)))
    top = p.newlabel("AL")
    p.label(top)
    p("s_and_b32 %s, %s, 1" % (s(S_T0), s(S_SEG)))
    p("s_lshl_b32 %s, %s, 7" % (s(S_T0), s(S_T0)))
    p("s_add_u32 %s, %s, s59" % (s(S_T0), s(S_T0)))
    p("s_add_u32 %s, %s, 0x%x" % (s(S_T0), s(S_T0), OFF_FLAG + F_G1))
    p("s_lshr_b32 %s, %s, 1" % (s(S_T1), s(S_SEG)))
    p("s_add_u32 %s, %s, 1" % (s(S_T1), s(S_T1)))
    poll_flags(p, 203, S_T0, 1, None, 207, cmp_sgpr=S_T1)
    p("s_lshl_b32 %s, %s, 5" % (s(S_BASE), s(S_SEG)))
    p("s_add_u32 %s, %s, %s" % (s(S_BASE), s(S_BASE), s(S_HD)))
    p("s_lshl_b32 %s, %s, 13" % (s(S_T2), s(S_BASE)))
    p("s_lshl_b32 %s, %s, 12" % (s(S_T0), s(S_QT)))
    p("s_add_u32 %s, %s, %s" % (s(S_T0), s(S_T0), s(S_T2)))
    p("s_add_u32 %s, %s, 0x%x" % (s(S_T0), s(S_T0), OFF_QX))
    for i in range(4):
        p("buffer_load_dwordx4 %s, %s, %s, %s offen offset:%d sc1" % (v(QF + 4 * i, 4), v(V_L16), s(SWS, 4), s(S_T0), i * 1024))
    p("s_add_u32 %s, %s, 0x%x" % (s(S_T0), s(S_T2), OFF_KX))
    p("s_add_u32 %s, %s, 0x%x" % (s(S_T1), s(S_T2), OFF_KX + 4096))
    for i in range(8):
        p("buffer_load_dwordx4 %s, %s, %s, %s offen offset:%d sc1" % (v(KF + 4 * i, 4), v(V_L16), s(SWS, 4), s((S_T0, S_T1)[i // 4]), (i % 4) * 1024))
    p("s_lshl_b32 %s, %s, 12" % (s(S_T0), s(S_EH)))
    p("s_add_u32 %s, %s, %s" % (s(S_T0), s(S_T0), s(S_T2)))
    p("s_add_u32 %s, %s, 0x%x" % (s(S_T0), s(S_T0), OFF_VX))
    for i in range(4):
        p("buffer_load_dwordx4 %s, %s, %s, %s offen offset:%d sc1" % (v(VF + 4 * i, 4), v(V_L16), s(SWS, 4), s(S_T0), i * 1024))
    p("s_waitcnt vmcnt(4)")
    for kt in range(2):
        acc = v(SC + 4 * (1 + kt), 4)
        for ks in range(4):
            p("v_mfma_f32_16x16x32_bf16 %s, %s, %s, %s" % (acc, v(KF + 16 * kt + 4 * ks, 4), v(QF + 4 * ks, 4), "0" if ks == 0 else acc))
    p("s_mul_i32 %s, %s, 9216" % (s(S_T0), s(S_SEG)))
    p("s_add_u32 %s, %s, 0x%x" % (s(S_T0), s(S_T0), OFF_HIST))
    p("s_add_u32 %s, %s, 4096" % (s(S_T1), s(S_T0)))
    p("s_add_u32 %s, %s, 8192" % (s(S_T2), s(S_T0)))
    mp = p.newlabel("MP")
    mok = p.newlabel("MOK")
    pre = p.newlabel("MPRE")
    p.label(pre)
    p("buffer_load_dwordx4 %s, v202, %s, %s offen offset:512 sc1" % (v(MF + 68, 4), s(SWS, 4), s(S_T2)))
    p("s_waitcnt vmcnt(0)")
    p("v_cmp_eq_u32 vcc, 0x%x, %s" % (SENT, v(MF + 68)))
    p("s_cbranch_vccz %s" % mp)
    p("s_sleep 2")
    p("s_sub_u32 %s, %s, 1" % (s(S_BUDW), s(S_BUDW)))
    p("s_cbranch_scc0 %s" % pre)
    p("s_branch W_FAIL")
    p.label(mp)
    for ks in range(18):
        p("buffer_load_dwordx4 %s, v202, %s, %s offen offset:%d sc1" % (v(MF + 4 * ks, 4), s(SWS, 4), s((S_T0, S_T1, S_T2)[ks // 8]), (ks % 8) * 512))
    p("s_sub_u32 %s, %s, 1" % (s(S_BUDW), s(S_BUDW)))
    p("s_cbranch_scc1 W_FAIL")
    p("s_waitcnt vmcnt(0)")
    p("v_max3_u32 v207, %s, %s, %s" % (v(MF), v(MF + 1), v(MF + 2)))
    for k in range(3, 71, 2):
        p("v_max3_u32 v207, v207, %s, %s" % (v(MF + k), v(MF + k + 1)))
    p("v_max_u32 v207, v207, %s" % v(MF + 71))
    p("v_cmp_eq_u32 vcc, 0x%x, v207" % SENT)
    p("s_cbranch_vccnz %s" % mp)
    lv = p.newlabel("APV")
    le = p.newlabel("APE")
    p("s_cmp_lg_u32 %s, 0" % s(S_EH))
    p("s_cbranch_scc1 %s" % lv)
    for vtype in (0, 1):
        if vtype:
            p.label(lv)
        for ks in range(18):
            for t in range(4):
                acc = v(PJ + 4 * t, 4)
                c = "0" if ks == 0 else acc
                if vtype:
                    p("v_mfma_f32_16x16x32_bf16 %s, %s, %s, %s" % (acc, v(MF + 4 * ks, 4), bfrag(t * 18 + ks), c))
                else:
                    p("v_mfma_f32_16x16x32_bf16 %s, %s, %s, %s" % (acc, bfrag(t * 18 + ks), v(MF + 4 * ks, 4), c))
        if not vtype:
            p("s_branch %s" % le)
    p.label(le)
    for kt in range(2):
        for r in range(4):
            d = SC + 4 * (1 + kt) + r
            p("v_cndmask_b32 %s, %s, v206, %s" % (v(d), v(d), s(40 + 8 * kt + 2 * r, 2)))
    for i in range(8):
        p("v_cvt_pk_bf16_f32 %s, %s, %s" % (v(PJ + i), v(PJ + 2 * i), v(PJ + 2 * i + 1)))
    p("ds_write_b128 v240, %s" % v(PJ, 4))
    p("ds_write_b128 v240, %s offset:1024" % v(PJ + 4, 4))
    p("s_waitcnt lgkmcnt(0)")
    p("s_barrier")
    for ks in range(4):
        p("ds_read_b128 %s, %s offset:%d" % (v(KM + 4 * ks, 4), v(V_L16), ks * 1024))
    for i in range(2):
        p("ds_read_b128 %s, v241 offset:%d" % (v(VM + 4 * i, 4), 4096 + i * 1024))
    p("s_waitcnt lgkmcnt(2)")
    acc = v(SC, 4)
    for ks in range(4):
        p("v_mfma_f32_16x16x32_bf16 %s, %s, %s, %s" % (acc, v(KM + 4 * ks, 4), v(QF + 4 * ks, 4), "0" if ks == 0 else acc))
    PXr, PMr, RI, T0, T1 = 188, 192, 194, 195, 196
    b = SC
    n = 12
    for r in range(4):
        p("v_cndmask_b32 %s, %s, v206, s[56:57]" % (v(b + r), v(b + r)))
    M = T0
    p("v_max3_f32 %s, %s, %s, %s" % (v(M), v(b), v(b + 1), v(b + 2)))
    for k in range(3, 11, 2):
        p("v_max3_f32 %s, %s, %s, %s" % (v(M), v(M), v(b + k), v(b + k + 1)))
    p("v_max_f32 %s, %s, %s" % (v(M), v(M), v(b + 11)))
    for sw in ("16", "32"):
        p("v_mov_b32 %s, %s" % (v(T1), v(M)))
        p("v_permlane%s_swap_b32 %s, %s" % (sw, v(M), v(T1)))
        p("v_max_f32 %s, %s, %s" % (v(M), v(M), v(T1)))
    p("v_mul_f32 %s, s36, %s" % (v(M), v(M)))
    for r in range(n):
        p("v_fma_f32 %s, %s, s36, -%s" % (v(b + r), v(b + r), v(M)))
    for r in range(n):
        p("v_exp_f32 %s, %s" % (v(b + r), v(b + r)))
    L = RI
    p("v_add_f32 %s, %s, %s" % (v(L), v(b), v(b + 1)))
    for r in range(2, n):
        p("v_add_f32 %s, %s, %s" % (v(L), v(L), v(b + r)))
    for sw in ("16", "32"):
        p("v_mov_b32 %s, %s" % (v(T1), v(L)))
        p("v_permlane%s_swap_b32 %s, %s" % (sw, v(L), v(T1)))
        p("v_add_f32 %s, %s, %s" % (v(L), v(L), v(T1)))
    p("v_rcp_f32 %s, %s" % (v(L), v(L)))
    p("v_cvt_pk_bf16_f32 %s, %s, %s" % (v(PMr), v(b), v(b + 1)))
    p("v_cvt_pk_bf16_f32 %s, %s, %s" % (v(PMr + 1), v(b + 2), v(b + 3)))
    for i in range(4):
        p("v_cvt_pk_bf16_f32 %s, %s, %s" % (v(PXr + i), v(b + 4 + 2 * i), v(b + 5 + 2 * i)))
    p("s_waitcnt lgkmcnt(0)")
    p("s_lshl_b32 %s, %s, 1" % (s(S_T0), s(S_SEG)))
    p("s_add_u32 %s, %s, %s" % (s(S_T0), s(S_T0), s(S_QT)))
    p("s_mul_i32 %s, %s, %d" % (s(S_T0), s(S_T0), 146 * 1024))
    p("s_lshl_b32 %s, %s, 12" % (s(S_T1), s(S_HD)))
    p("s_add_u32 %s, %s, %s" % (s(S_T0), s(S_T0), s(S_T1)))
    p("s_lshl_b32 %s, %s, 11" % (s(S_T1), s(S_EH)))
    p("s_add_u32 %s, %s, %s" % (s(S_T0), s(S_T0), s(S_T1)))
    p("s_add_u32 %s, %s, 0x%x" % (s(S_T0), s(S_T0), OFF_OC))
    for et in range(4):
        p("v_mfma_f32_16x16x32_bf16 %s, %s, %s, 0" % (v(4 * et, 4), v(VF + 4 * et, 4), v(PXr, 4)))
    for et in range(4):
        p("v_mfma_f32_16x16x16_bf16 %s, %s, %s, %s" % (v(4 * et, 4), v(VM + 2 * et, 2), v(PMr, 2), v(4 * et, 4)))
    for tp in range(2):
        bb = 8 * tp
        for r in range(8):
            p("v_mul_f32 %s, %s, %s" % (v(bb + r), v(bb + r), v(RI)))
        d = 16 + 4 * tp
        for i in range(4):
            p("v_cvt_pk_bf16_f32 %s, %s, %s" % (v(d + i), v(bb + 2 * i), v(bb + 2 * i + 1)))
        p("buffer_store_dwordx4 %s, %s, %s, %s offen offset:%d sc1" % (v(d, 4), v(V_L16), s(SWS, 4), s(S_T0), tp * 1024))
    p("s_lshl_b32 %s, %s, 2" % (s(S_T0), s(S_BASE)))
    p("s_add_u32 %s, %s, 0x%x" % (s(S_T0), s(S_T0), OFF_FLAG + F_O))
    p("v_mov_b32 v207, 1")
    p("s_waitcnt vmcnt(0)")
    p("s_barrier")
    p("s_mov_b64 exec, 1")
    p("buffer_store_dword v207, v203, %s, %s offen sc1" % (s(SWS, 4), s(S_T0)))
    p("s_mov_b64 exec, -1")
    p("s_add_u32 %s, %s, 4" % (s(S_SEG), s(S_SEG)))
    p("s_cmp_lt_u32 %s, 64" % s(S_SEG))
    p("s_cbranch_scc1 %s" % top)
    p("s_branch %s" % done_label)


def gen_final(p, done_label, NG):
    S_U, S_SEG, S_NG, S_AB, S_BB, S_XB, S_PARW = S_A, S_B, S_C_, S_D, S_E, S_F, S_G
    S_T0, S_T1, S_T2 = S_H_, S_I, S_J
    p.c("---- final GEMM role")
    srd(p, SA, A_WO, H * DH * DM * 2)
    srd(p, SB, B_WO, DM * DM * 2)
    srd(p, SX, D_OUT, S * DM * 2)
    p("s_mov_b32 %s, 0" % s(S_SEG))
    p("s_mov_b32 %s, %s" % (s(S_NG), s(S_U)))
    for _ in range(NG - 1):
        p("s_cmp_ge_u32 %s, 18" % s(S_NG))
        p("s_cselect_b32 %s, 18, 0" % s(S_T0))
        p("s_cselect_b32 %s, 1, 0" % s(S_T1))
        p("s_sub_u32 %s, %s, %s" % (s(S_NG), s(S_NG), s(S_T0)))
        p("s_add_u32 %s, %s, %s" % (s(S_SEG), s(S_SEG), s(S_T1)))
    lane_fields(p, 1, 2, 3, 4)
    p("v_lshrrev_b32 v5, 2, %s" % v(V_LANE))
    p("v_mul_u32_u24 v6, 1152, v5")
    p("v_lshl_add_u32 v8, v4, 4, v6")
    p("s_lshl_b32 %s, %s, 6" % (s(S_T0), s(S_NG)))
    p("v_add_u32 v8, %s, v8" % s(S_T0))
    p("v_lshrrev_b32 v6, 1, v5")
    p("v_mul_u32_u24 v6, 18, v6")
    p("v_and_b32 v7, 1, v5")
    p("v_add3_u32 v6, v6, v7, 16")
    p("v_mul_u32_u24 v6, 1152, v6")
    p("v_lshl_add_u32 v9, v4, 4, v6")
    p("v_add_u32 v9, %s, v9" % s(S_T0))
    p("v_lshl_add_u32 v5, v2, 2, v3")
    p("v_lshlrev_b32 v5, 6, v5")
    p("v_lshl_add_u32 v5, v4, 3, v5")
    p("s_mul_i32 %s, %s, 36864" % (s(S_K), s(S_WV)))
    p("v_add_u32 v10, %s, v5" % s(S_K))
    p("v_lshl_add_u32 v5, v2, 3, v3")
    p("v_lshlrev_b32 v5, 6, v5")
    p("v_lshl_add_u32 v5, v4, 3, v5")
    p("v_add_u32 v11, %s, v5" % s(S_K))
    p("s_mul_i32 %s, %s, %d" % (s(S_L), s(S_WV), 1024 * 1152))
    p("s_waitcnt lgkmcnt(0)")

    SL = 9216

    def issue(c):
        slot = c % 4
        if c < 8:
            for i in range(8):
                p("s_add_u32 m0, %s, %d" % (s(S_K), slot * SL + i * 1024))
                p("s_add_u32 %s, %s, %d" % (s(S_T0), s(S_L), (128 * c + 16 * i) * 1152))
                p("buffer_load_dwordx4 v8, %s, %s offen lds" % (s(SA, 4), s(S_T0)))
            return 8
        if c == 8:
            p("s_mul_i32 %s, %s, %d" % (s(S_T1), s(S_WV), 144 * 1152))
            for i in range(9):
                p("s_add_u32 m0, %s, %d" % (s(S_K), slot * SL + i * 1024))
                p("s_add_u32 %s, %s, %d" % (s(S_T0), s(S_T1), 16 * i * 1152))
                p("buffer_load_dwordx4 v8, %s, %s offen lds" % (s(SB, 4), s(S_T0)))
            return 9
        p("s_mul_i32 %s, %s, %d" % (s(S_T1), s(S_WV), 16 * 18 * 1152))
        for i in range(2):
            p("s_add_u32 m0, %s, %d" % (s(S_K), slot * SL + i * 1024))
            p("s_add_u32 %s, %s, %d" % (s(S_T0), s(S_T1), 8 * 18 * 1152 * i))
            p("buffer_load_dwordx4 v9, %s, %s offen lds" % (s(SB, 4), s(S_T0)))
        return 2

    cnt = []
    for c in range(4):
        cnt.append(issue(c))
    for c in range(10):
        slot = c % 4
        p("s_waitcnt vmcnt(%d)" % sum(cnt[c + 1:]))
        if c < 8:
            for tp in range(4):
                for nt in range(2):
                    for hf in range(2):
                        p("ds_read_b64_tr_b16 %s, v10 offset:%d" % (bfrag((4 * c + tp) * 2 + nt, 2 * hf, 2), slot * SL + (32 * tp + 16 * hf) * 64 + nt * 32))
        elif c == 8:
            for i in range(4):
                for nt in range(2):
                    for hf in range(2):
                        p("ds_read_b64_tr_b16 %s, v10 offset:%d" % (bfrag((32 + i) * 2 + nt, 2 * hf, 2), slot * SL + (36 * i + 18 * hf) * 64 + nt * 32))
        else:
            for nt in range(2):
                for hf in range(2):
                    p("ds_read_b64_tr_b16 %s, v11 offset:%d" % (bfrag(36 * 2 + nt, 2 * hf, 2), slot * SL + 4 * hf * 64 + nt * 32))
        if len(cnt) < 10:
            p("s_waitcnt lgkmcnt(0)")
            cnt.append(issue(len(cnt)))
    p("s_waitcnt lgkmcnt(0)")
    p("s_barrier")
    wstamp(p, 4, "s96")
    p("v_lshlrev_b32 v1, 3, %s" % v(V_L16))
    p("s_mov_b32 %s, 0x%x" % (s(S_T0), OFF_FLAG + F_B2))
    poll_flags(p, 1, S_T0, 64, 1, 2)
    wstamp(p, 5, "s96")
    p("v_lshlrev_b32 v203, 2, %s" % v(V_LANE))
    p("v_and_b32 v204, 60, v203")
    p("v_and_b32 v1, 15, %s" % v(V_LANE))
    p("v_mul_u32_u24 v1, 1152, v1")
    p("v_lshrrev_b32 v2, 4, %s" % v(V_LANE))
    p("v_lshl_add_u32 v205, v2, 3, v1")
    p("s_and_b32 %s, %s, 1" % (s(S_T1), s(S_WV)))
    p("s_lshl_b32 %s, %s, 5" % (s(S_T0), s(S_T1)))
    p("s_lshl_b32 %s, %s, 6" % (s(S_T2), s(S_NG)))
    p("s_add_u32 %s, %s, %s" % (s(S_T0), s(S_T0), s(S_T2)))
    p("v_add_u32 v205, %s, v205" % s(S_T0))
    p("s_lshl_b32 %s, %s, 11" % (s(S_T0), s(S_WV)))
    p("v_add_u32 v206, %s, %s" % (s(S_T0), v(V_L16)))
    p("s_lshl_b32 %s, %s, 10" % (s(S_T0), s(S_T1)))
    p("v_add_u32 v207, %s, %s" % (s(S_T0), v(V_L16)))
    RING = 40
    ACA, ACB, GV = 0, 16, 32
    top = p.newlabel("FL")
    p.label(top)
    p("s_mul_i32 %s, %s, %d" % (s(S_T0), s(S_SEG), 146 * 1024))
    p("s_add_u32 %s, %s, 0x%x" % (s(S_T0), s(S_T0), OFF_OC))
    p("s_lshl_b32 %s, %s, 15" % (s(S_T1), s(S_WV)))
    p("s_add_u32 %s, %s, %s" % (s(S_AB), s(S_T0), s(S_T1)))
    p("s_lshl_b32 %s, %s, 12" % (s(S_T1), s(S_WV)))
    p("s_add_u32 %s, %s, %s" % (s(S_BB), s(S_T0), s(S_T1)))
    p("s_add_u32 %s, %s, %d" % (s(S_BB), s(S_BB), 128 * 1024))
    p("s_and_b32 %s, %s, 1" % (s(S_T1), s(S_WV)))
    p("s_lshl_b32 %s, %s, 10" % (s(S_T1), s(S_T1)))
    p("s_add_u32 %s, %s, %s" % (s(S_XB), s(S_T0), s(S_T1)))
    p("s_add_u32 %s, %s, %d" % (s(S_XB), s(S_XB), 144 * 1024))
    BR = RING + 128
    for i in range(4):
        p("buffer_load_dwordx4 %s, %s, %s, %s offen offset:%d sc1" % (v(BR + 4 * i, 4), v(V_L16), s(SWS, 4), s(S_BB), i * 1024))
    p("buffer_load_dwordx4 %s, %s, %s, %s offen sc1" % (v(BR + 16, 4), v(V_L16), s(SWS, 4), s(S_XB)))
    p("s_lshl_b32 %s, %s, 6" % (s(S_T0), s(S_SEG)))
    p("s_add_u32 %s, %s, 0x%x" % (s(S_T1), s(S_T0), OFF_G))
    p("buffer_load_dword %s, v204, %s, %s offen sc1" % (v(GV), s(SWS, 4), s(S_T1)))
    p("s_lshr_b32 %s, %s, 1" % (s(S_T0), s(S_SEG)))
    p("s_lshl_b32 %s, %s, 7" % (s(S_T0), s(S_T0)))
    p("s_lshl_b32 %s, %s, 5" % (s(S_T1), s(S_WV)))
    p("s_add_u32 %s, %s, %s" % (s(S_T0), s(S_T0), s(S_T1)))
    p("s_add_u32 %s, %s, 0x%x" % (s(S_T0), s(S_T0), OFF_FLAG + F_O))
    poll_flags(p, 203, S_T0, 8, 1, 34, sleep=1)
    for f in range(32):
        if f % 4 == 0:
            p("s_add_u32 %s, %s, %d" % (s(S_T2), s(S_AB), f * 1024))
        p("buffer_load_dwordx4 %s, %s, %s, %s offen offset:%d sc1" % (v(RING + 4 * f, 4), v(V_L16), s(SWS, 4), s(S_T2), (f % 4) * 1024))
    for i in range(5):
        for nt in range(2):
            acc = v(ACB + 4 * nt, 4)
            p("v_mfma_f32_16x16x32_bf16 %s, %s, %s, %s" % (acc, bfrag((32 + i) * 2 + nt), v(BR + 4 * i, 4), "0" if i == 0 else acc))
    for f in range(32):
        p("s_waitcnt vmcnt(%d)" % (31 - f))
        for nt in range(2):
            acc = v(ACA + 4 * nt, 4)
            p("v_mfma_f32_16x16x32_bf16 %s, %s, %s, %s" % (acc, bfrag(f * 2 + nt), v(RING + 4 * f, 4), "0" if f == 0 else acc))
    for i in range(8):
        p("v_sub_f32 %s, %s, %s" % (v(ACA + i), v(ACA + i), v(ACB + i)))
        p("v_fma_f32 %s, %s, %s, %s" % (v(ACA + i), v(ACA + i), v(GV), v(ACB + i)))
    for t in range(2):
        p("ds_write_b128 v206, %s offset:%d" % (v(ACA + 4 * t, 4), t * 1024))
    p("s_waitcnt lgkmcnt(0)")
    p("s_barrier")
    skip = p.newlabel("FSK")
    p("s_cmp_ge_u32 %s, 2" % s(S_WV))
    p("s_cbranch_scc1 %s" % skip)
    for ww in range(4):
        p("ds_read_b128 %s, v207 offset:%d" % (v(ACB + 4 * ww, 4), ww * 2048))
    p("s_mul_i32 %s, %s, %d" % (s(S_T0), s(S_SEG), 16 * 1152))
    p("s_waitcnt lgkmcnt(0)")
    for r in range(4):
        p("v_add_f32 %s, %s, %s" % (v(ACB + r), v(ACB + r), v(ACB + 4 + r)))
        p("v_add_f32 %s, %s, %s" % (v(ACB + 8 + r), v(ACB + 8 + r), v(ACB + 12 + r)))
        p("v_add_f32 %s, %s, %s" % (v(ACB + r), v(ACB + r), v(ACB + 8 + r)))
    p("v_cvt_pk_bf16_f32 v36, %s, %s" % (v(ACB), v(ACB + 1)))
    p("v_cvt_pk_bf16_f32 v37, %s, %s" % (v(ACB + 2), v(ACB + 3)))
    p("buffer_store_dwordx2 v[36:37], v205, %s, %s offen" % (s(SX, 4), s(S_T0)))
    p.label(skip)
    p("v_xor_b32 v206, 8192, v206")
    p("v_xor_b32 v207, 8192, v207")
    p("s_add_u32 %s, %s, %d" % (s(S_SEG), s(S_SEG), NG))
    p("s_cmp_lt_u32 %s, 128" % s(S_SEG))
    p("s_cbranch_scc1 %s" % top)
    p("s_branch %s" % done_label)
```

```python
import sys
from asmlib import *
from layout import *
import rec
import worker as wk

kw = dict(a.split("=") for a in sys.argv[2:] if "=" in a)
kw = {k: (int(x) if x.isdigit() else x) for k, x in kw.items()}
NP = kw.pop("NP", 2)
NG = kw.pop("NG", 5)
OVF = kw.pop("OVF", 32)
wk.TSTAMP[0] = bool(kw.pop("TS", 0))
NAME = "gated_mix__memory_aug_recurrent_mem_tr__linear_attn_block__prompt"

q = Prog()
NI = 64
q("s_cmp_ge_u32 s2, %d" % NI)
q("s_cbranch_scc1 I_DONE")
wk.srd(q, 4, D_WS, WS_BYTES)
q("s_lshl_b32 s3, s2, 12")
q("v_lshlrev_b32 v1, 4, v0")
q("v_add_u32 v1, s3, v1")
for r in range(4):
    q("v_mov_b32 v%d, 0x%x" % (4 + r, rec.SENT))
    q("v_mov_b32 v%d, 0" % (8 + r))
q("s_waitcnt lgkmcnt(0)")
for o in (OFF_PB2, OFF_PB2 + 0x40000, OFF_PB2 + PB_STR, OFF_PB2 + PB_STR + 0x40000):
    q("s_mov_b32 s8, 0x%x" % o)
    q("buffer_store_dwordx4 v[8:11], v1, s[4:7], s8 offen")
for o in (OFF_MB, OFF_MB + 0x40000, OFF_MB + 0x80000):
    q("s_mov_b32 s8, 0x%x" % o)
    q("buffer_store_dwordx4 v[4:7], v1, s[4:7], s8 offen")
q("s_cmp_ge_u32 s2, 16")
q("s_cbranch_scc1 I_DONE")
q("s_mov_b32 s8, 0x%x" % OFF_FLAG)
q("buffer_store_dwordx4 v[8:11], v1, s[4:7], s8 offen")
q.label("I_DONE")
q("s_endpgm")

p = Prog()
p("s_cmp_ge_u32 s2, 256")
p("s_cbranch_scc1 X_DONE")
RC = OFF_FLAG + F_ROLE
wk.srd(p, 12, D_WS, WS_BYTES)
p("s_getreg_b32 s3, hwreg(HW_REG_XCC_ID, 0, 3)")
p("v_lshrrev_b32 v1, 6, v0")
p("v_mov_b32 v2, 1")
p("v_readfirstlane_b32 s20, v1")
p("s_lshl_b32 s21, s3, 7")
p("v_mov_b32 v3, s21")
p("v_mov_b32 v4, 0")
p("s_mov_b32 s22, 2000000")
p("s_mov_b32 s23, 0x%x" % RC)
p("s_waitcnt lgkmcnt(0)")
p("s_cmp_lg_u32 s20, 0")
p("s_cbranch_scc1 ROLE_WAIT")
p("s_mov_b64 exec, 1")
p("buffer_atomic_add v2, v3, s[12:15], s23 offen sc0")
p("s_waitcnt vmcnt(0)")
p("v_readfirstlane_b32 s24, v2")
p("v_mov_b32 v2, 1")
p("buffer_atomic_add v2, v4, s[12:15], s23 offen offset:1024")
p("s_lshl_b32 s21, s3, 5")
p("s_add_u32 s21, s21, s24")
p("s_cmp_lt_u32 s24, %d" % OVF)
p("s_cbranch_scc1 ROLE_SET")
p("v_mov_b32 v5, 1")
p("buffer_atomic_add v5, v4, s[12:15], s23 offen offset:1152 sc0")
p.label("ROLE_P")
p("buffer_load_dword v6, v4, s[12:15], s23 offen offset:1024 sc1")
p("s_waitcnt vmcnt(0)")
p("v_readfirstlane_b32 s24, v6")
p("s_sub_u32 s22, s22, 1")
p("s_cbranch_scc1 ROLE_GIVEUP")
p("s_cmp_lt_u32 s24, 256")
p("s_cbranch_scc1 ROLE_P")
p("v_readfirstlane_b32 s25, v5")
for x in range(8):
    p("buffer_load_dword v6, v4, s[12:15], s23 offen offset:%d sc1" % (128 * x))
    p("s_waitcnt vmcnt(0)")
    p("v_readfirstlane_b32 s24, v6")
    p("s_min_u32 s24, s24, %d" % OVF)
    p("s_sub_u32 s26, 32, s24")
    p("s_add_u32 s21, s24, s25")
    p("s_add_u32 s21, s21, %d" % (32 * x))
    p("s_cmp_lt_u32 s25, s26")
    p("s_cbranch_scc1 ROLE_SET")
    p("s_sub_u32 s25, s25, s26")
p.label("ROLE_GIVEUP")
p("s_mov_b32 s21, 1000")
p.label("ROLE_SET")
p("v_mov_b32 v2, s21")
p("ds_write_b32 v4, v2")
p("s_mov_b64 exec, -1")
p("s_waitcnt lgkmcnt(0)")
p.label("ROLE_WAIT")
p("s_barrier")
p("ds_read_b32 v2, v4")
p("s_waitcnt lgkmcnt(0)")
p("v_readfirstlane_b32 s21, v2")
p("s_barrier")
p("s_cmp_ge_u32 s21, 256")
p("s_cbranch_scc1 X_DONE")
p("s_mov_b32 s96, s21")
if wk.TSTAMP[0]:
    wk.srd(p, 4, D_WS, WS_BYTES)
    p("s_waitcnt lgkmcnt(0)")
    wk.wstamp(p, 1, "s96")
p("s_cmp_ge_u32 s21, 32")
p("s_cbranch_scc1 WORKER")
p("s_mov_b32 %s, s21" % s(rec.S_H))
rec.gen_rec(p, census=OVF, TS=wk.TSTAMP[0], **kw)
p.label("WORKER")
p("s_sub_u32 %s, s21, 32" % s(wk.S_RANK))
wk.worker_setup(p)
p("s_cmp_ge_u32 %s, 160" % s(wk.S_RANK))
p("s_cbranch_scc1 W_BB")
wk.gen_gemm1(p, "W_NEXT")
p.label("W_BB")
wk.gen_bbranch(p, "W_FIN")
p.label("W_NEXT")
wk.wstamp(p, 3, "s96")
p("s_cmp_ge_u32 %s, 128" % s(wk.S_RANK))
p("s_cbranch_scc1 W_FINQ")
wk.gen_attn(p, "REC_DONE")
p.label("W_FINQ")
p("s_add_u32 %s, %s, 96" % (s(wk.S_RANK), s(wk.S_RANK)))
p.label("W_FIN")
wk.wstamp(p, 6, "s96")
p("s_sub_u32 %s, %s, 160" % (s(wk.S_A), s(wk.S_RANK)))
p("s_cmp_ge_u32 %s, %d" % (s(wk.S_A), 18 * NG))
p("s_cbranch_scc1 REC_DONE")
wk.gen_final(p, "REC_DONE", NG)
p.label("REC_FAIL")
p.label("W_FAIL")
p("s_load_dwordx2 s[12:13], s[0:1], %d" % (D_DBG * 8))
p("s_mov_b32 s14, 256")
p("s_mov_b32 s15, 0x20000")
p("v_mov_b32 v0, 0")
p("v_mov_b32 v1, s2")
p("v_add_u32 v1, 0x1000, v1")
p("s_waitcnt lgkmcnt(0)")
p("buffer_store_dword v1, v0, s[12:15], 0 offen offset:64")
p("s_endpgm")
p.label("REC_DONE")
wk.wstamp(p, 7, "s96")
p.label("X_DONE")
p("s_endpgm")
l0 = fix_hazards(q.lines)
l1 = fix_hazards(p.lines, verbose=True)
txt = build_file([("init_kernel", NI, 256, 0), ("main_kernel", 256, 256, 163840)],
                 [("init_kernel", l0, 16, 16, 16), ("main_kernel", l1, 512, 102, 256)])
open(sys.argv[1], "w").write(txt)
print(len(l1), "lines", len(txt), "bytes")
```

```python
import math
import struct
from asmlib import *
from layout import *

L_MEM = 0
L_Q = 9216
L_O = L_Q
L_K = 11264
L_PX = L_K
L_PM = L_K + 512
L_RI = L_K + 1024
L_SX = 13312
L_WL = 16384
LDS_BYTES = 163840

MA = 0
AQ = 36
AK = 44
KXF = 52
QF = 60
VXF = 52
STG0 = 64
IDX = 72
L16 = 73
TRA = 74
QWA = 75
SXR = 76
T0, T1, T2 = 77, 78, 79

SWS = 4
SW = 8
S_H, S_W, S_STEP, S_BUD = 16, 17, 18, 19
S_MB, S_M0, S_KX0, S_KX1, S_VX, S_KM, S_VM, S_PB = 20, 21, 22, 23, 24, 25, 26, 27
S_U, S_RL, S_PUB = 28, 29, 30
S_T0 = 31
S_PUBM = 32
S_PART = 34
S_C = 36
S_W512 = 37
S_T1, S_T2, S_T3 = 38, 39, 40
S_STAMP = 42
S_STO = 44
S_SAFE = 45
S_PAR = 46
SENT = 0xFFBFFFBF
S_SENT = 47
S_HIST = 41
S_TF, S_KVF, S_KVC = 42, 43, 45
S_C2, S_Q2, S_NC = 92, 94, 91
S_PH, S_PMB, S_H288 = 90, 100, 101


def f2u(x):
    return struct.unpack("<I", struct.pack("<f", x))[0]


def wt_reg(mat, j, tt, r, n):
    i = (mat * 9 + j) * 2 + tt
    if i < 32:
        return a(8 * i + r, n)
    return v(80 + 8 * (i - 32) + r, n)


def wt(mat, j, tt):
    return wt_reg(mat, j, tt, 0, 8)


def slot_addr(t, w):
    if t < 16:
        return L_WL + t * 8192 + w * 2048
    return L_WL + 131072 + (t - 16) * 4096 + (w - 2) * 2048


def lref(addr):
    b, off = divmod(addr, 65536)
    if off > 65536 - 2048:
        raise ValueError("tile straddles base")
    return v([L16, T1, T2][b]), off


def smf(acc, A, B):
    return "v_smfmac_f32_16x16x64_bf16 %s, %s, %s, %s" % (v(acc, 4), v(A, 4), B, v(IDX))


def gen_rec(p, nsteps=63, stamps=False, st_flags="", EXP="sc1", NQKL=4, DEP=2, FD0=0, FD1=0, C1=6, RDEP=2,
            R0=0, R1=0, R2=0, Q0=0, Q1=0, Q2=0, hist=1, RT=0, flags=1, census=0, TS=0, KVS=0x40000, EXS=0x20000, PFW=2, NOEXP=0, B3=1, V0=1, V1=0, V2=0, F2E=1, TW=2, SETMID=1, WARM=1):
    VW = [x if x < 9 else -1 for x in (V0, V1, V2)]
    RD0 = [R0, R1, R2]
    RD1 = [Q0, Q1, Q2]
    ST = st_flags

    NSTAMP = 15

    def stamp(k):
        if not stamps or k >= 15:
            return
        p("%s %s" % ("s_memrealtime" if RT else "s_memtime", s(60 + 2 * k, 2)))

    def flush_stamps():
        if not stamps:
            return
        p("s_waitcnt lgkmcnt(0)")
        for k in range(NSTAMP):
            p("v_writelane_b32 %s, %s, %d" % (v(T2), s(60 + 2 * k), k))
        p("v_lshrrev_b32 %s, 2, %s" % (v(T1), v(L16)))
        p("s_mov_b64 exec, 0xfffff")
        p("buffer_store_dword %s, %s, %s, %s offen" % (v(T2), v(T1), s(SWS, 4), s(S_STO)))
        p("s_mov_b64 exec, -1")

    p.c("---- recurrence setup")
    p("s_load_dwordx2 %s, s[0:1], %d" % (s(SWS, 2), D_WS * 8))
    p("s_load_dwordx2 s[48:49], s[0:1], %d" % (A_WQ * 8))
    p("s_load_dwordx2 s[50:51], s[0:1], %d" % (A_WK * 8))
    p("s_load_dwordx2 s[52:53], s[0:1], %d" % (A_WV * 8))
    p("s_load_dwordx2 s[54:55], s[0:1], %d" % (A_WO * 8))
    p("s_load_dwordx2 s[56:57], s[0:1], %d" % (A_MEM0 * 8))
    p("v_lshrrev_b32 v1, 6, v0")
    p("v_and_b32 v0, 63, v0")
    p("v_readfirstlane_b32 %s, v1" % s(S_W))
    p("s_mov_b32 %s, %d" % (s(SWS + 2), WS_BYTES))
    p("s_mov_b32 %s, 0x20000" % s(SWS + 3))
    p("s_mov_b32 %s, %d" % (s(SW + 2), DM * H * DH * 2))
    p("s_mov_b32 %s, 0x20000" % s(SW + 3))
    p("s_mov_b32 %s, 0x00ff00ff" % s(S_PUBM))
    p("s_mov_b32 %s, 0x00ff00ff" % s(S_PUBM + 1))
    p("s_mov_b32 %s, 0xff00ff00" % s(S_PART))
    p("s_mov_b32 %s, 0xff00ff00" % s(S_PART + 1))
    p("s_mov_b32 %s, 0x%x" % (s(S_C), f2u(DH ** -0.5 * math.log2(math.e))))
    p("s_mov_b32 %s, 1000000" % s(S_BUD))
    p("s_mov_b32 %s, %s" % (s(S_C2), s(S_C)))
    p("s_mov_b32 %s, %s" % (s(S_C2 + 1), s(S_C)))
    p("s_mov_b32 %s, 0x3e800000" % s(S_Q2))
    p("s_mov_b32 %s, 0x3e800000" % s(S_Q2 + 1))
    p("s_xor_b32 %s, %s, 0x80000000" % (s(S_NC), s(S_C)))
    p("s_mov_b32 %s, 0x%x" % (s(S_SENT), SENT))
    p("s_lshl_b32 %s, %s, 9" % (s(S_W512), s(S_W)))
    p("v_and_b32 v1, 15, v0")
    p("v_lshrrev_b32 v2, 4, v0")
    p("v_bfe_u32 v3, v0, 2, 2")
    p("v_and_b32 v4, 3, v0")
    p("v_lshlrev_b32 %s, 4, v0" % v(L16))
    p("v_mov_b32 %s, 0x4444" % v(IDX))
    p("v_mov_b32 v5, 0xeeee")
    p("v_cndmask_b32 %s, %s, v5, %s" % (v(IDX), v(IDX), s(S_PART, 2)))
    p("v_lshl_add_u32 v5, v2, 2, v3")
    p("v_lshlrev_b32 v5, 4, v5")
    p("v_and_b32 v6, 1, v4")
    p("v_lshl_add_u32 %s, v6, 3, v5" % v(TRA))
    p("v_lshrrev_b32 v5, 5, v0")
    p("v_lshl_add_u32 v5, v5, 4, v1")
    p("v_lshlrev_b32 v5, 4, v5")
    p("v_and_b32 v6, 1, v2")
    p("v_lshl_add_u32 %s, v6, 3, v5" % v(QWA))
    p("v_and_b32 v5, 7, v0")
    p("v_lshl_add_u32 v5, v2, 3, v5")
    p("v_lshlrev_b32 %s, 4, v5" % v(SXR))
    p("s_waitcnt lgkmcnt(0)")

    p("s_lshl_b32 %s, %s, 2" % (s(S_T0), s(S_H)))
    p("s_add_u32 %s, %s, %s" % (s(S_T0), s(S_T0), s(S_W)))
    p("s_lshl_b32 %s, %s, 13" % (s(S_T0), s(S_T0)))
    p("s_add_u32 %s, %s, 0x%x" % (s(S_STO), s(S_T0), OFF_STAMP))

    p("s_lshl_b32 %s, %s, 5" % (s(S_U), s(S_W)))
    p("s_add_u32 %s, %s, %s" % (s(S_U), s(S_U), s(S_H)))

    lab = p.newlabel("NOPUB0")
    p("s_cmp_ge_u32 %s, 72" % s(S_U))
    p("s_cbranch_scc1 %s" % lab)
    p("s_mov_b32 %s, s56" % s(12))
    p("s_mov_b32 %s, s57" % s(13))
    p("s_mov_b32 %s, 9216" % s(14))
    p("s_mov_b32 %s, 0x20000" % s(15))
    p("v_and_b32 v5, 1, v2")
    p("v_lshlrev_b32 v5, 3, v5")
    p("v_lshrrev_b32 v6, 1, v2")
    p("v_lshl_add_u32 v7, v6, 2, v5")
    p("v_and_b32 v5, 7, v0")
    p("v_mul_u32_u24 v6, 1152, v5")
    p("v_add_u32 v6, v6, v7")
    p("v_lshl_add_u32 v7, v5, 4, v7")
    p("s_lshl_b32 %s, %s, 4" % (s(S_T0), s(S_U)))
    p("s_lshl_b32 %s, %s, 7" % (s(S_T1), s(S_U)))
    p("s_add_u32 %s, %s, 0x%x" % (s(S_T1), s(S_T1), OFF_MB))
    p("s_mov_b64 exec, %s" % s(S_PUBM, 2))
    p("buffer_load_dword v8, v6, s[12:15], %s offen" % s(S_T0))
    p("s_waitcnt vmcnt(0)")
    p("v_cmp_eq_u32 vcc, 0x%x, v8" % SENT)
    p("v_mov_b32 v9, 0xffffffff")
    p("v_cndmask_b32 v8, v8, v9, vcc")
    p("buffer_store_dword v8, v7, %s, %s offen sc1" % (s(SWS, 4), s(S_T1)))
    p("s_mov_b64 exec, -1")
    p("s_waitcnt vmcnt(0)")
    p.label(lab)
    p("s_load_dwordx2 s[12:13], s[0:1], %d" % (D_DBG * 8))
    p("s_mov_b32 s14, 256")
    p("s_mov_b32 s15, 0x20000")
    p("s_waitcnt lgkmcnt(0)")

    p.c("---- weight load through LDS with transposing reads")
    p("v_and_b32 v5, 1, v2")
    p("s_lshl_b32 %s, %s, 1" % (s(S_T0), s(S_W)))
    p("v_or_b32 v5, %s, v5" % s(S_T0))
    p("v_lshlrev_b32 v5, 1, v5")
    p("v_xor_b32 v5, v5, v1")
    p("v_lshlrev_b32 v5, 4, v5")
    p("v_lshl_add_u32 v8, v2, 13, v5")
    p("s_lshl_b32 %s, %s, 15" % (s(S_T0), s(S_W)))
    p("s_lshl_b32 %s, %s, 8" % (s(S_T1), s(S_H)))
    p("s_add_u32 %s, %s, %s" % (s(S_T0), s(S_T0), s(S_T1)))
    p("v_add_u32 v8, %s, v8" % s(S_T0))
    p("v_and_b32 v5, 1, v2")
    p("s_and_b32 %s, %s, 1" % (s(S_T0), s(S_W)))
    p("s_lshl_b32 %s, %s, 1" % (s(S_T0), s(S_T0)))
    p("v_or_b32 v5, %s, v5" % s(S_T0))
    p("v_lshlrev_b32 v5, 2, v5")
    p("v_xor_b32 v5, v5, v1")
    p("v_lshlrev_b32 v5, 4, v5")
    p("v_mul_u32_u24 v6, 1152, v2")
    p("v_add_u32 v9, v5, v6")
    p("s_mul_i32 %s, %s, %d" % (s(S_T0), s(S_W), 16 * 1152))
    p("s_mul_i32 %s, %s, 147456" % (s(S_T1), s(S_H)))
    p("s_add_u32 %s, %s, %s" % (s(S_T0), s(S_T0), s(S_T1)))
    p("v_add_u32 v9, %s, v9" % s(S_T0))
    p("v_and_b32 v5, 7, v0")
    p("v_lshlrev_b32 v5, 4, v5")
    p("v_lshrrev_b32 v6, 3, v0")
    p("v_mul_u32_u24 v6, 1152, v6")
    p("s_mul_i32 %s, %s, %d" % (s(S_T0), s(S_W), 32 * 1152))
    p("s_add_u32 %s, %s, %s" % (s(S_T0), s(S_T0), s(S_T1)))
    p("s_add_u32 %s, %s, 1024" % (s(S_T0), s(S_T0)))
    p("v_add_u32 v6, %s, v6" % s(S_T0))
    p("v_add_u32 v60, v5, v6")
    p("v_xor_b32 v5, 64, v5")
    p("v_add_u32 v61, v5, v6")
    p("v_lshrrev_b32 v5, 1, v2")
    p("v_lshlrev_b32 v5, 4, v5")
    p("v_and_b32 v6, 1, v2")
    p("v_lshl_add_u32 v5, v6, 2, v5")
    p("v_and_b32 v7, 1, v3")
    p("v_add_u32 v5, v5, v7")
    p("v_lshrrev_b32 v10, 1, v3")
    p("v_lshl_add_u32 v5, v10, 3, v5")
    p("v_lshl_or_b32 v11, v6, 1, v7")
    p("v_lshl_or_b32 v11, v10, 2, v11")
    p("s_lshl_b32 %s, %s, 1" % (s(S_T0), s(S_W)))
    p("v_xor_b32 v12, %s, v11" % s(S_T0))
    p("v_lshlrev_b32 v12, 5, v12")
    p("v_lshl_add_u32 v12, v4, 3, v12")
    p("v_lshl_add_u32 v12, v5, 8, v12")
    p("v_add_u32 v12, %d, v12" % L_WL)
    p("v_xor_b32 v13, 32, v12")
    p("v_lshrrev_b32 v5, 1, v2")
    p("v_lshl_add_u32 v5, v5, 2, v7")
    p("v_lshl_add_u32 v5, v6, 4, v5")
    p("v_lshl_or_b32 v14, v6, 1, v7")
    p("v_lshl_or_b32 v14, v14, 1, v10")
    p("s_lshl_b32 %s, %s, 1" % (s(S_T0), s(S_W)))
    p("v_xor_b32 v14, %s, v14" % s(S_T0))
    p("v_lshlrev_b32 v14, 5, v14")
    p("v_lshl_add_u32 v14, v4, 3, v14")
    p("v_lshl_add_u32 v14, v5, 8, v14")
    p("v_add_u32 v14, %d, v14" % L_WL)
    p("v_lshl_or_b32 v62, v6, 1, v10")
    p("v_lshlrev_b32 v62, 5, v62")
    p("v_lshl_add_u32 v62, v4, 3, v62")
    p("v_lshl_add_u32 v62, v5, 7, v62")
    p("s_lshl_b32 %s, %s, 12" % (s(S_T0), s(S_W)))
    p("s_add_u32 %s, %s, %d" % (s(S_T0), s(S_T0), L_WL + 8 * 16384))
    p("v_add_u32 v62, %s, v62" % s(S_T0))
    p("v_xor_b32 v63, 64, v62")
    p("v_add_u32 v64, %s, %s" % (s(S_T0), v(L16)))
    p("s_lshl_b32 %s, %s, 12" % (s(S_T3), s(S_W)))
    p("s_lshl_b32 %s, %s, 11" % (s(S_T0), s(S_W)))
    p("v_add_u32 v15, %s, %s" % (s(S_T0), v(L16)))
    p("v_add_u32 v15, %d, v15" % L_WL)
    p("s_lshl_b32 %s, %s, 10" % (s(S_T2), s(S_W)))

    cur_mat = [None]

    def set_mat(mi):
        if cur_mat[0] != mi:
            p("s_mov_b32 %s, s%d" % (s(SW), 48 + 2 * mi))
            p("s_mov_b32 %s, s%d" % (s(SW + 1), 49 + 2 * mi))
            cur_mat[0] = mi

    def issue_group(G):
        slot = G % 9
        if G < 27:
            mi, j = divmod(G, 9)
            set_mat(mi)
            for qq in range(4):
                p("s_add_u32 m0, %s, %d" % (s(S_T2), L_WL + slot * 16384 + qq * 4096))
                p("s_mov_b32 %s, %d" % (s(S_T0), (64 * j + 16 * qq) * 8192))
                p("buffer_load_dwordx4 v8, %s, %s offen lds" % (s(SW, 4), s(S_T0)))
        else:
            set_mat(3)
            tau, kp = divmod(slot, 2)
            for qq in range(4):
                p("s_add_u32 m0, %s, %d" % (s(S_T3), L_WL + slot * 16384 + qq * 1024))
                if slot < 8:
                    p("s_mov_b32 %s, %d" % (s(S_T0), (64 * kp + 4 * qq) * 1152 + tau * 256))
                    p("buffer_load_dwordx4 v9, %s, %s offen lds" % (s(SW, 4), s(S_T0)))
                else:
                    p("s_mov_b32 %s, %d" % (s(S_T0), 8 * qq * 1152))
                    p("buffer_load_dwordx4 v%d, %s, %s offen lds" % (60 + (qq >> 1), s(SW, 4), s(S_T0)))

    NG = 36
    for G in range(9):
        issue_group(G)
    issued = 9
    for G in range(NG):
        slot = G % 9
        p("s_waitcnt vmcnt(%d) lgkmcnt(0)" % (4 * (issued - G - 1)))
        p("s_barrier")
        if G >= 1 and issued < NG:
            issue_group(issued)
            issued += 1
        if G >= 28:
            pb = 20 + 16 * ((G - 1) & 1)
            ps = (G - 1) % 9
            p("v_add_u32 v18, %d, v15" % (ps * 16384))
            for j2 in range(2):
                for hf in range(2):
                    p("ds_write_b128 v18, %s offset:%d" % (v(pb + 8 * j2 + 4 * hf, 4), j2 * 8192 + hf * 1024))
        if G < 27:
            mi, j = divmod(G, 9)
            p("v_add_u32 v16, %d, v12" % (slot * 16384))
            p("v_add_u32 v17, %d, v13" % (slot * 16384))
            for tt in range(2):
                for rd in range(4):
                    off = (rd & 1) * 512 + (rd >> 1) * 8192
                    p("ds_read_b64_tr_b16 %s, v%d offset:%d" % (wt_reg(mi, j, tt, 2 * rd, 2), 16 + tt, off))
        else:
            b = 20 + 16 * (G & 1)
            if slot < 8:
                p("v_add_u32 v16, %d, v14" % (slot * 16384))
                for j2 in range(2):
                    for rd in range(4):
                        off = j2 * 8192 + (rd & 1) * 512 + (rd >> 1) * 2048
                        p("ds_read_b64_tr_b16 %s, v16 offset:%d" % (v(b + 8 * j2 + 2 * rd, 2), off))
            else:
                for pp in range(2):
                    for rd in range(4):
                        off = (rd & 1) * 256 + (rd >> 1) * 1024
                        p("ds_read_b64_tr_b16 %s, v%d offset:%d" % (v(b + 8 * pp + 2 * rd, 2), 62 + pp, off))
    p("s_waitcnt lgkmcnt(0)")
    p("s_barrier")
    pb = 20 + 16 * ((NG - 1) & 1)
    for pp in range(2):
        for hf in range(2):
            p("ds_write_b128 v64, %s offset:%d" % (v(pb + 8 * pp + 4 * hf, 4), pp * 2048 + hf * 1024))

    p("s_mov_b32 %s, 0" % s(S_STEP))
    p("s_mov_b32 %s, 0x%x" % (s(S_PAR), OFF_PB2))
    p("s_mov_b32 %s, 1" % s(S_PH))
    p("s_mov_b32 %s, 0x%x" % (s(S_MB), OFF_MB))
    p("s_lshl_b32 %s, %s, 13" % (s(S_T0), s(S_H)))
    p("s_add_u32 %s, %s, 0x%x" % (s(S_VX), s(S_T0), OFF_VX))
    p("s_add_u32 %s, %s, 0x%x" % (s(S_M0), s(S_T0), OFF_KX + KVS))
    p("s_add_u32 %s, %s, 0x%x" % (s(S_KX0), s(S_T0), OFF_KX))
    p("s_add_u32 %s, %s, 4096" % (s(S_KX1), s(S_KX0)))
    p("s_lshl_b32 %s, %s, 12" % (s(S_T0), s(S_H)))
    p("s_add_u32 %s, %s, 0x%x" % (s(S_KM), s(S_T0), OFF_KM))
    p("s_add_u32 %s, %s, 0x%x" % (s(S_VM), s(S_T0), OFF_VM))
    p("s_lshl_b32 %s, %s, 7" % (s(S_PUB), s(S_U)))
    p("s_mul_i32 %s, %s, 288" % (s(S_H288), s(S_H)))
    p("s_mov_b32 %s, 0x%x" % (s(S_HIST), OFF_HIST))
    p("s_lshl_b32 %s, %s, 7" % (s(S_TF), s(S_H)))
    p("s_add_u32 %s, %s, 0x%x" % (s(S_TF), s(S_TF), OFF_FLAG + F_TEAM))
    p("s_lshl_b32 %s, %s, 9" % (s(S_KVF), s(S_H)))
    p("s_add_u32 %s, %s, 0x%x" % (s(S_KVF), s(S_KVF), OFF_FLAG + F_G1))
    p("s_mov_b32 %s, 0" % s(S_KVC))
    p("v_add_u32 %s, 65536, %s" % (v(T1), v(L16)))
    p("v_add_u32 %s, 131072, %s" % (v(T2), v(L16)))
    p("s_waitcnt lgkmcnt(0)")
    p("s_barrier")
    for w in range(1, 4):
        p("s_cmp_eq_u32 %s, %d" % (s(S_W), w))
        p("s_cbranch_scc1 REC_W%d" % w)
    MODES = ["", "sc1"] if census else [st_flags]

    def budget():
        p("s_sub_u32 %s, %s, 1" % (s(S_BUD), s(S_BUD)))
        p("s_cbranch_scc1 REC_FAIL")

    def bg(q, n=1):
        for _ in range(n):
            if q:
                x = q.pop(0)
                if callable(x):
                    x()
                else:
                    p(x)

    def combine(acc):
        return ([("v_permlane32_swap_b32 %s, %s" % (v(acc + r), v(acc + 4 + r))) for r in range(4)]
                + [("v_add_f32 %s, %s, %s" % (v(acc + r), v(acc + r), v(acc + 4 + r))) for r in range(4)]
                + ["v_cvt_pk_bf16_f32 %s, %s, %s" % (v(acc), v(acc), v(acc + 1)),
                   "v_cvt_pk_bf16_f32 %s, %s, %s" % (v(acc + 1), v(acc + 2), v(acc + 3))])

    def zero(r, n):
        return ["v_mov_b64 %s, 0" % v(r + i, 2) for i in range(0, n, 2)]

    class LG:
        def __init__(self):
            self.log = []

        def op(self, text, tag):
            p(text)
            self.log.append(tag)

        def wait(self, *tags):
            hit = [i for i, x in enumerate(self.log) if x in tags]
            if hit:
                k = max(hit)
                n = len(self.log) - 1 - k
                assert n <= 15
                p("s_waitcnt lgkmcnt(%d)" % n)
                self.log = self.log[k + 1:]

        def all(self):
            if self.log:
                p("s_waitcnt lgkmcnt(0)")
            self.log = []

    def bases():
        p("v_add_u32 %s, 65536, %s" % (v(T1), v(L16)))
        p("v_add_u32 %s, 131072, %s" % (v(T2), v(L16)))

    MSK = [48, 50, 52, 54]

    def masks(bases_, tmps, half=False):
        for i, b in enumerate(bases_):
            if half:
                p("v_max_u32 %s, %s, %s" % (v(tmps[i]), v(b), v(b + 2)))
            else:
                p("v_max3_u32 %s, %s, %s, %s" % (v(tmps[i]), v(b), v(b + 1), v(b + 2)))
                p("v_max_u32 %s, %s, %s" % (v(tmps[i]), v(tmps[i]), v(b + 3)))
        for i, b in enumerate(bases_):
            p("v_cmp_eq_u32 %s, %s, %s" % (s(MSK[i], 2), s(S_SENT), v(tmps[i])))
        if len(bases_) == 1:
            p("s_or_b64 s[56:57], %s, %s" % (s(MSK[0], 2), s(MSK[0], 2)))
        else:
            p("s_or_b64 s[56:57], %s, %s" % (s(MSK[0], 2), s(MSK[1], 2)))
        for i in range(2, len(bases_)):
            p("s_or_b64 s[56:57], s[56:57], %s" % s(MSK[i], 2))

    def kexport():
        if NOEXP:
            return
        p("s_mov_b64 exec, %s" % s(S_PUBM, 2))
        for ks in range(4):
            p("buffer_store_dwordx4 %s, %s, %s, %s offen offset:%d %s" % (v(52 + 4 * ks, 4), v(SXR), s(SWS, 4), s(S_KM), ks * 512, EXP))
        p("s_mov_b64 exec, -1")
        p("s_add_u32 %s, %s, %d" % (s(S_KM), s(S_KM), EXS))

    def teamflag(sval):
        p("v_mov_b32 %s, %s" % (v(T0), s(sval)))
        p("s_mov_b64 exec, 1")
        p("buffer_store_dword %s, %s, %s, %s offen sc1" % (v(T0), v(L16), s(SWS, 4), s(S_TF)))
        p("s_mov_b64 exec, -1")

    def kv_wait(sseg):
        if not flags:
            return
        ok = p.newlabel("KVOK")
        top = p.newlabel("KVP")
        p("s_cmp_ge_u32 %s, 64" % s(sseg))
        p("s_cbranch_scc1 %s" % ok)
        p.label(top)
        p("s_cmp_gt_u32 %s, %s" % (s(S_KVC), s(sseg)))
        p("s_cbranch_scc1 %s" % ok)
        p("v_lshlrev_b32 %s, 3, %s" % (v(T0), v(L16)))
        p("s_mov_b64 exec, 15")
        p("buffer_load_dword %s, %s, %s, %s offen sc1" % (v(T0), v(T0), s(SWS, 4), s(S_KVF)))
        p("s_mov_b64 exec, -1")
        p("s_waitcnt vmcnt(0)")
        p("v_readlane_b32 s56, %s, 0" % v(T0))
        for i in range(1, 4):
            p("v_readlane_b32 s57, %s, %d" % (v(T0), i))
            p("s_min_u32 s56, s56, s57")
        p("s_lshl_b32 %s, s56, 2" % s(S_KVC))
        budget()
        p("s_branch %s" % top)
        p.label(ok)

    H1 = [0, 1, 2, 3]
    H2 = [4, 5, 6, 7, 8]

    def plan(w):
        own1 = {0: [], 1: [], 2: [0, 1], 3: [2, 3]}[w]
        own2 = {0: [4], 1: [5, 8], 2: [6], 3: [7]}[w]
        h1ord = own1 + [j for j in H1 if j not in own1]
        h2ord = own2 + [j for j in H2 if j not in own2]
        seqA = [(m, j, tt) for j in h1ord for m in range(2) for tt in range(2)]
        seqQ = [(0, j, tt) for j in h2ord for tt in range(2)]
        seqK = [(1, j, tt) for j in h2ord for tt in range(2)]
        seq = seqA + seqQ + seqK
        if w < 3:
            lds_qk = [seq[i] for i in (0, 8, 16, 24)][:NQKL]
            reg_wo = [4, 5, 10, 11][:NQKL]
            swaps = list(zip(lds_qk, reg_wo))
        else:
            lds_qk = []
            reg_wo = list(range(18))
            swaps = [((2, k // 2, k % 2), k) for k in range(18)]
        return own1, own2, h1ord, h2ord, seqA, seqQ, seqK, lds_qk, reg_wo, swaps

    def gen_wave(w):
        own1, own2, h1ord, h2ord, seqA, seqQ, seqK, lds_qk, reg_wo, swaps = plan(w)
        p.label("REC_W%d" % w)
        if WARM:
            p("v_lshlrev_b32 v70, 3, %s" % v(L16))
            p("s_mul_i32 s56, %s, 9216" % s(S_H))
            p("s_add_u32 s56, s56, 0x%x" % (OFF_PB2 + (w & 1) * PB_STR + (w >> 1) * 1024))
            p("buffer_load_dword v64, v70, %s, s56 offen sc1" % s(SWS, 4))
            if w == 0:
                p("s_lshl_b32 s56, %s, 11" % s(S_H))
                p("s_add_u32 s56, s56, 0x%x" % OFF_MB)
                p("s_mov_b64 exec, 0xffff")
                p("buffer_load_dword v65, v70, %s, s56 offen sc1" % s(SWS, 4))
                p("s_mov_b64 exec, -1")
            p("s_getpc_b64 s[56:57]")
            p.label("REC_PC%d" % w)
            p("s_add_u32 s56, s56, W%d%s_PRE-REC_PC%d" % (w, MODES[0], w))
            p("s_addc_u32 s57, s57, 0")
            p("global_load_dword v66, v70, s[56:57]")
        for base in range(0, len(swaps), 4):
            grp = swaps[base:base + 4]
            for i, (tile, t) in enumerate(grp):
                b, off = lref(slot_addr(t, w))
                p("ds_read_b128 %s, %s offset:%d" % (v(8 * i, 4), b, off))
                p("ds_read_b128 %s, %s offset:%d" % (v(8 * i + 4, 4), b, off + 1024))
            p("s_waitcnt lgkmcnt(0)")
            for i, (tile, t) in enumerate(grp):
                b, off = lref(slot_addr(t, w))
                p("ds_write_b128 %s, %s offset:%d" % (b, wt_reg(*tile, 0, 4), off))
                p("ds_write_b128 %s, %s offset:%d" % (b, wt_reg(*tile, 4, 4), off + 1024))
            p("s_waitcnt lgkmcnt(0)")
            for i, (tile, t) in enumerate(grp):
                for r in range(8):
                    d = wt_reg(*tile, r, 1)
                    p("%s %s, %s" % ("v_accvgpr_write_b32" if d[0] == "a" else "v_mov_b32", d, v(8 * i + r)))
        if w == PFW:
            kv_wait(S_STEP)
            if WARM:
                p("s_add_u32 s56, %s, 0x%x" % (s(S_KX0), OFF_VX - OFF_KX))
                p("buffer_load_dword v67, v70, %s, %s offen sc1" % (s(SWS, 4), s(S_KX0)))
                p("buffer_load_dword v68, v70, %s, s56 offen sc1" % s(SWS, 4))
        if WARM:
            p("s_waitcnt vmcnt(0)")
        p("s_barrier")
        if TS:
            p("s_memrealtime s[98:99]")
            p("s_lshl_b32 s97, s96, 8")
            p("s_add_u32 s97, s97, 0x%x" % (OFF_STAMP + 0x200000 + 8))
            p("s_waitcnt lgkmcnt(0)")
            p("v_mov_b32 %s, s98" % v(T0))
            p("s_mov_b64 exec, 1")
            p("buffer_store_dword %s, %s, %s, s97 offen" % (v(T0), v(L16), s(SWS, 4)))
            p("s_mov_b64 exec, -1")
        if census:
            top = p.newlabel("CEN")
            fast = p.newlabel("CENF")
            p("s_mov_b32 s58, 0x%x" % (OFF_FLAG + F_ROLE))
            p.label(top)
            p("s_mov_b64 exec, 1")
            p("buffer_load_dword %s, %s, %s, s58 offen offset:1024 sc1" % (v(T0), v(L16), s(SWS, 4)))
            p("s_waitcnt vmcnt(0)")
            p("buffer_load_dword %s, %s, %s, s58 offen sc1" % (v(QF), v(L16), s(SWS, 4)))
            p("s_mov_b64 exec, -1")
            p("s_waitcnt vmcnt(0)")
            p("v_readfirstlane_b32 s56, %s" % v(T0))
            p("v_readfirstlane_b32 s57, %s" % v(QF))
            p("s_min_u32 s57, s57, %d" % census)
            p("s_cmp_ge_u32 s57, 32")
            p("s_cbranch_scc1 %s" % fast)
            budget()
            p("s_cmp_lt_u32 s56, 256")
            p("s_cbranch_scc1 %s" % top)
            p("s_branch W%dsc1_PRE" % w)
            p.label(fast)
        for ST in MODES:
            gen_loop(w, ST, "W%d%s_" % (w, ST))

    def gen_loop(w, ST, W):
        own1, own2, h1ord, h2ord, seqA, seqQ, seqK, lds_qk, reg_wo, swaps = plan(w)
        wo_reg = {t: tile for tile, t in swaps}
        qk_addr = {tile: slot_addr(t, w) for tile, t in swaps}
        nt = 16 if w < 2 else 20
        lg = LG()

        def rdtile(dst, addr, tag):
            b, off = lref(addr)
            lg.op("ds_read_b128 %s, %s offset:%d" % (v(dst, 4), b, off), tag)
            lg.op("ds_read_b128 %s, %s offset:%d" % (v(dst + 4, 4), b, off + 1024), tag)

        def fetch(own, masked=False):
            for i, j in enumerate(own):
                if masked:
                    p("s_mov_b64 exec, %s" % s(MSK[i], 2))
                so, off = (S_MB, j * 1024) if j < 4 else ((S_T1, (j - 4) * 1024) if j < 8 else (S_T2, 0))
                p("buffer_load_dwordx4 %s, %s, %s, %s offen offset:%d sc1" % (v(MA + 4 * j, 4), v(L16), s(SWS, 4), s(so), off))
            if masked:
                p("s_mov_b64 exec, -1")

        pend = []

        def issue_qk(tile):
            m, j, tt = tile
            lg.wait(("m", j), ("s", tile))
            p(smf((AQ, AK)[m] + 4 * tt, MA + 4 * j, v(STG0, 8) if tile in lds_qk else wt(*tile)))
            if pend:
                t2 = pend.pop()
                rdtile(STG0, qk_addr[t2], ("s", t2))
            if tile in lds_qk:
                i = lds_qk.index(tile)
                if i + 1 < len(lds_qk):
                    pend.append(lds_qk[i + 1])

        vt = {0: [0, 1, 6], 1: [2, 3, 7], 2: [4, 5], 3: []}[w]
        KX = [[52, 56, 60, 64], [68, 0, 4, 8]]

        def ldkx(kt, ks):
            p("buffer_load_dwordx4 %s, %s, %s, %s offen offset:%d sc1" % (v(KX[kt][ks], 4), v(L16), s(SWS, 4), s((S_KX0, S_KX1)[kt]), ks * 1024))

        def ldvx(i):
            et = vt[i]
            so, off = (S_VX, et * 1024) if et < 4 else (S_T0, (et - 4) * 1024)
            p("buffer_load_dwordx4 %s, %s, %s, %s offen offset:%d sc1" % (v(VXF + 4 * i, 4), v(L16), s(SWS, 4), s(so), off))

        def wrmem(j):
            lg.op("ds_write_b128 %s, %s offset:%d" % (v(L16), v(MA + 4 * j, 4), L_MEM + j * 1024), "wm")

        def rdmem(j):
            lg.op("ds_read_b128 %s, %s offset:%d" % (v(MA + 4 * j, 4), v(L16), L_MEM + j * 1024), ("m", j))

        def prefetch():
            p("s_add_u32 %s, %s, 1" % (s(S_T0), s(S_STEP)))
            kv_wait(S_T0)
            p("v_lshlrev_b32 %s, 3, %s" % (v(T0), v(L16)))
            p("s_mov_b32 m0, %d" % L_SX)
            p("s_add_u32 %s, %s, 0x%x" % (s(S_T0), s(S_M0), OFF_VX - OFF_KX))
            p("buffer_load_dword %s, %s, %s offen lds" % (v(T0), s(SWS, 4), s(S_M0)))
            p("buffer_load_dword %s, %s, %s offen lds" % (v(T0), s(SWS, 4), s(S_T0)))
            p("s_add_u32 %s, %s, %d" % (s(S_M0), s(S_M0), KVS))

        p.label(W + "PRE")
        bases()
        p("s_add_u32 %s, %s, 4096" % (s(S_T0), s(S_VX)))
        p("s_add_u32 %s, %s, 4096" % (s(S_T1), s(S_MB)))
        p("s_add_u32 %s, %s, 8192" % (s(S_T2), s(S_MB)))
        stamp(0)
        def prework():
            if w < 3:
                rdtile(STG0, qk_addr[lds_qk[0]], ("s", lds_qk[0]))
            for r in range(16):
                p("v_mov_b32 %s, 0" % v(AQ + r))
        if not (own1 and SETMID):
            prework()
        tm = MA + 4 * h2ord[-1]
        A = list(seqA)
        if B3:
            p("s_barrier")
        if own1:
            for _ in range(FD0):
                p("s_nop 15")
            for d in range(DEP):
                fetch(own1)
                if d == 0 and SETMID:
                    prework()
                if d + 1 < DEP:
                    for _ in range(FD1):
                        p("s_nop 7")
            p.label(W + "CHK1")
            p("s_waitcnt vmcnt(%d)" % (2 * (DEP - 1)))
            masks([MA + 4 * j for j in own1], [tm, tm + 1])
            p("s_cbranch_scc1 %sRETRY1" % W)
            stamp(1)
            for j in own1:
                wrmem(j)
            fetch(own2)
            for _ in range(3):
                issue_qk(A.pop(0))
            lg.wait("wm")
        else:
            if F2E:
                fetch(own2)
            stamp(1)
        p("s_barrier")
        stamp(2)
        for j in h1ord:
            if j not in own1:
                rdmem(j)
        fetch(own2)
        n = 0
        while len(A) > C1:
            issue_qk(A.pop(0))
            n += 1
            if n == 4 or (n == 2 and not own1 and not F2E):
                fetch(own2)
        no = len(own2)
        p.label(W + "CHK2")
        p("s_waitcnt vmcnt(%d)" % (2 * no))
        masks([MA + 4 * j for j in own2], [tm, tm + 1])
        p("s_cbranch_scc1 %sRETRY2" % W)
        stamp(3)
        for j in own2:
            wrmem(j)
        if w == 3:
            for ks in range(4):
                ldkx(0, ks)
            ldkx(1, 0)
        while len(A) > 2:
            issue_qk(A.pop(0))
        lg.wait("wm")
        p("s_barrier")
        for j in h2ord:
            if j not in own2:
                rdmem(j)
        while A:
            issue_qk(A.pop(0))
        stamp(4)
        for i, tile in enumerate(seqQ):
            issue_qk(tile)
            if w == 3 and i < 3:
                ldkx(1, i + 1)
            if w < 3 and 2 <= i < 2 + len(vt):
                ldvx(i - 2)
        if w < 3:
            p("s_add_u32 %s, %s, %d" % (s(S_VX), s(S_VX), KVS))
        if w == 3:
            for r in (S_KX0, S_KX1):
                p("s_add_u32 %s, %s, %d" % (s(r), s(r), KVS))
        stamp(5)
        Kq = [(lambda t=t: issue_qk(t)) for t in seqK]
        bg(Kq, 2)
        cq = combine(AQ)
        for i, x in enumerate(cq):
            p(x)
            if i % 3 == 2:
                bg(Kq)
        lg.op("ds_write_b64 %s, %s offset:%d" % (v(QWA), v(AQ, 2), L_Q + 512 * w), "wq")
        if w < 2:
            rdtile(STG0, slot_addr(w, 3), ("v", 0))
        STG = [8, 16, 24, STG0, VXF]
        NST = len(STG)
        OA = AQ
        ACC = [0, 4, 32, QF, 0] if w < 3 else [0, 4, 32, QF, 24]
        lt = [t for t in range(nt) if t not in reg_wo]

        if w < 3:
            Z = zero(AQ + 2, 6)
            for i in range(3):
                bg(Kq)
                bg(Z, 1)
            lg.wait("wq")
            p("s_barrier")
            bg(Kq)
            p(zero(AQ, 2)[0])
            bg(Kq, 99)
            stamp(6)
            AVs = [AQ, AQ + 4, AK + 4]
            nv = len(vt)

            def vr(j, tt):
                p(smf(AVs[tt], MA + 4 * j, wt(2, j, tt)))

            vr(0, 0)
            vr(0, 1)
            for x in combine(AK):
                p(x)
            lg.op("ds_write_b64 %s, %s offset:%d" % (v(QWA), v(AK, 2), L_K + 512 * w), "wk")
            if nv == 3:
                for x in zero(AVs[2], 4):
                    p(x)
                slots = {0: STG0, 1: STG0, 2: STG0, 3: 0, 4: STG0, 5: 0, 6: 8, 7: STG0, 8: 0}

                def vl(j):
                    lg.wait(("v", j))
                    p(smf(AVs[2], MA + 4 * j, v(slots[j], 8)))

                def req(j):
                    rdtile(slots[j], slot_addr(2 * j + w, 3), ("v", j))
                vr(1, 0); vl(0); vr(1, 1)
                lg.wait("wk")
                p("s_barrier")
                stamp(7)
                req(1); vr(2, 0)
                vr(2, 1); vr(3, 0); vl(1); vr(3, 1); req(2); req(3); vr(4, 0); vr(4, 1); vr(5, 0)
                vl(2); vl(3); vr(5, 1); req(4); req(5); req(6); vr(6, 0); vr(6, 1); vr(7, 0)
                vl(4); vl(5); req(7); vl(6); req(8); vr(7, 1); vr(8, 0); vr(8, 1)
                vl(7); vl(8)
            else:
                vr(1, 0); vr(1, 1); vr(2, 0)
                lg.wait("wk")
                p("s_barrier")
                stamp(7)
                if PFW == 2:
                    prefetch()
                p("v_add_u32 %s, %s, %s" % (v(T0), s(S_H288), v(L16)))
                lg.op("ds_read_b128 %s, %s offset:%d" % (v(STG0, 4), v(T0), L_MEM), "hx")
                vr(2, 1)
                for j in range(3, 9):
                    vr(j, 0)
                    vr(j, 1)
                    if j == 4:
                        lg.wait("hx")
                        p("s_mov_b64 exec, 0x3ffff")
                        p("buffer_store_dwordx4 %s, %s, %s, %s offen sc1" % (v(STG0, 4), v(T0), s(SWS, 4), s(S_HIST)))
                        p("s_mov_b64 exec, -1")
                        p("s_add_u32 %s, %s, 9216" % (s(S_HIST), s(S_HIST)))
            for i in range(2):
                rdtile(STG[i], slot_addr(lt[i], w), ("w", lt[i]))
            for i in range(nv):
                p("v_cvt_pk_bf16_f32 %s, %s, %s" % (v(AVs[i]), v(AVs[i]), v(AVs[i] + 1)))
                p("v_cvt_pk_bf16_f32 %s, %s, %s" % (v(AVs[i] + 1), v(AVs[i] + 2), v(AVs[i] + 3)))
            rdtile(STG[2], slot_addr(lt[2], w), ("w", lt[2]))
            rdtile(STG[3], slot_addr(lt[3], w), ("w", lt[3]))

            def vexport():
                if NOEXP:
                    return
                p("v_lshrrev_b32 %s, 1, %s" % (v(T0), v(L16)))
                for i, et in enumerate(vt):
                    p("buffer_store_dwordx2 %s, %s, %s, %s offen offset:%d %s" % (v(AVs[i], 2), v(T0), s(SWS, 4), s(S_VM), et * 512, EXP))
                p("s_add_u32 %s, %s, %d" % (s(S_VM), s(S_VM), EXS))
            p("v_lshrrev_b32 %s, 1, %s" % (v(T0), v(SXR)))
            p("s_waitcnt vmcnt(%d)" % (3 if w == 2 else 0))
            stamp(8)
            p("s_barrier")
            stamp(9)
            PX, PM = AK, AQ + 2
            lg.op("ds_read_b128 %s, %s offset:%d" % (v(PX, 4), v(SXR), L_PX), "px")
            lg.op("ds_read_b64 %s, %s offset:%d" % (v(PM, 2), v(T0), L_PM), "pm")
            OX = [0, 4, 32]
            lg.wait("px")
            for i in range(nv):
                p("v_mfma_f32_16x16x32_bf16 %s, %s, %s, 0" % (v(OX[i], 4), v(VXF + 4 * i, 4), v(PX, 4)))
            lg.wait("pm")
            for i in range(nv):
                p("v_mfma_f32_16x16x16_bf16 %s, %s, %s, %s" % (v(OX[i], 4), v(AVs[i], 2), v(PM, 2), v(OX[i], 4)))
            p("v_cvt_pk_bf16_f32 %s, %s, %s" % (v(0), v(0), v(1)))
            p("v_cvt_pk_bf16_f32 %s, %s, %s" % (v(1), v(2), v(3)))
            p("v_cvt_pk_bf16_f32 %s, %s, %s" % (v(2), v(4), v(5)))
            p("v_cvt_pk_bf16_f32 %s, %s, %s" % (v(3), v(6), v(7)))
            lg.op("ds_write_b128 %s, %s offset:%d" % (v(SXR), v(0, 4), L_O + 512 * w), "wo")
            if nv == 3:
                p("v_cvt_pk_bf16_f32 %s, %s, %s" % (v(32), v(32), v(33)))
                p("v_cvt_pk_bf16_f32 %s, %s, %s" % (v(33), v(34), v(35)))
                lg.op("ds_write_b64 %s, %s offset:%d" % (v(SXR), v(32, 2), L_O + 512 * 3 + 8 * w), "wo")
            stamp(10)
            for x in zero(ACC[1], 4) + zero(ACC[3], 4):
                p(x)
            npre = 4
        else:
            bg(Kq, 3)
            lg.wait("wq")
            p("s_barrier")
            QFR = [MA + 4 * j for j in h2ord[:4]]
            bg(Kq, 1)
            for ks in range(4):
                if ks == 3:
                    bg(Kq, 1)
                for b in range(2):
                    lg.op("ds_read_b64_tr_b16 %s, %s offset:%d" % (v(QFR[ks] + 2 * b, 2), v(TRA), L_Q + (32 * ks + 16 * b) * 16), ("q", ks))
            assert not Kq
            stamp(6)
            KFR = [52, 56, 60, 64]
            SX = AQ
            SM = AK
            MX, LX, FX, TM = AK + 4, AK + 5, AK + 6, AK + 7
            XS = []
            for ks in range(4):
                for kt in range(2):
                    def xs(ks=ks, kt=kt):
                        lg.wait(("q", ks))
                        p("v_mfma_f32_16x16x32_bf16 %s, %s, %s, %s" % (v(SX + 4 * kt, 4), v(KX[kt][ks], 4), v(QFR[ks], 4), "0" if ks == 0 else v(SX + 4 * kt, 4)))
                    XS.append(xs)
            p("s_waitcnt vmcnt(0)")
            bg(XS, 2)
            CK = combine(AK)
            for i, x in enumerate(CK):
                p(x)
                if i in (3, 7):
                    bg(XS)
            lg.op("ds_write_b64 %s, %s offset:%d" % (v(QWA), v(AK, 2), L_K + 512 * w), "wk")
            bg(XS, 99)
            X = []
            X.append("v_bfe_u32 %s, %s, 7, 1" % (v(T1), v(L16)))
            X.append("v_lshl_add_u32 %s, %s, 3, %s" % (v(T1), v(T1), v(SXR)))
            X.append("v_lshrrev_b32 %s, 1, %s" % (v(T2), v(SXR)))
            for r in range(4):
                X.append("v_cndmask_b32 %s, %s, %s, %s" % (v(SX + r), v(SX + r), v(SX + 4 + r), s(S_PART, 2)))
            X.append("v_max3_f32 %s, %s, %s, %s" % (v(MX), v(SX), v(SX + 1), v(SX + 2)))
            X.append("v_max_f32 %s, %s, %s" % (v(MX), v(MX), v(SX + 3)))
            X.append("v_max_f32_dpp %s, %s, %s row_ror:8 row_mask:0xf bank_mask:0xf" % (v(MX), v(MX), v(MX)))
            X.append("v_mov_b32 %s, %s" % (v(T0), v(MX)))
            X.append("v_permlane32_swap_b32 %s, %s" % (v(MX), v(T0)))
            X.append("v_max_f32 %s, %s, %s" % (v(MX), v(MX), v(T0)))
            lg.wait("wk")
            p("s_barrier")
            stamp(7)
            for ks in range(4):
                for b in range(2):
                    lg.op("ds_read_b64_tr_b16 %s, %s offset:%d" % (v(KFR[ks] + 2 * b, 2), v(TRA), L_K + (32 * ks + 16 * b) * 16), ("k", ks))
            bg(X, 7)
            for ks in range(4):
                lg.wait(("k", ks))
                p("v_mfma_f32_16x16x32_bf16 %s, %s, %s, %s" % (v(SM, 4), v(KFR[ks], 4), v(QFR[ks], 4), "0" if ks == 0 else v(SM, 4)))
                bg(X, 2)
            bg(X, 99)
            p("v_max3_f32 %s, %s, %s, %s" % (v(TM), v(SM), v(SM + 1), v(SM + 2)))
            p("v_max3_f32 %s, %s, %s, %s" % (v(TM), v(TM), v(SM + 3), v(MX)))
            p("v_mov_b32 %s, %s" % (v(MX), v(TM)))
            p("v_permlane16_swap_b32 %s, %s" % (v(TM), v(MX)))
            p("v_max_f32 %s, %s, %s" % (v(TM), v(TM), v(MX)))
            p("v_mul_f32 %s, %s, %s" % (v(FX), s(S_NC), v(TM)))
            p("v_mul_f32 %s, %s, %s" % (v(TM), s(S_NC), v(TM)))
            for b in (SM, SM + 2, SX, SX + 2):
                p("v_pk_fma_f32 %s, %s, %s, %s" % (v(b, 2), v(b, 2), s(S_C2, 2), v(FX, 2)))
            for b in (SM, SX):
                for r in range(4):
                    p("v_exp_f32 %s, %s" % (v(b + r), v(b + r)))
            p("v_pk_add_f32 %s, %s, %s" % (v(MX, 2), v(SM, 2), v(SM + 2, 2)))
            p("v_pk_add_f32 %s, %s, %s" % (v(FX, 2), v(SX, 2), v(SX + 2, 2)))
            p("v_pk_fma_f32 %s, %s, %s, %s" % (v(MX, 2), v(MX, 2), s(S_Q2, 2), v(FX, 2)))
            p("v_add_f32 %s, %s, %s" % (v(LX), v(MX), v(LX)))
            p("v_add_f32_dpp %s, %s, %s row_ror:8 row_mask:0xf bank_mask:0xf" % (v(LX), v(LX), v(LX)))
            p("v_mov_b32 %s, %s" % (v(T0), v(LX)))
            p("v_permlane16_swap_b32 %s, %s" % (v(LX), v(T0)))
            p("v_add_f32 %s, %s, %s" % (v(LX), v(LX), v(T0)))
            p("v_mov_b32 %s, %s" % (v(T0), v(LX)))
            p("v_permlane32_swap_b32 %s, %s" % (v(LX), v(T0)))
            p("v_add_f32 %s, %s, %s" % (v(LX), v(LX), v(T0)))
            p("v_rcp_f32 %s, %s" % (v(MX), v(LX)))
            p("v_rcp_f32 %s, %s" % (v(LX), v(LX)))
            for b in (SM, SM + 2, SX, SX + 2):
                p("v_pk_mul_f32 %s, %s, %s" % (v(b, 2), v(b, 2), v(MX, 2)))
            p("v_cvt_pk_bf16_f32 %s, %s, %s" % (v(SM), v(SM), v(SM + 1)))
            p("v_cvt_pk_bf16_f32 %s, %s, %s" % (v(SM + 1), v(SM + 2), v(SM + 3)))
            lg.op("ds_write_b64 %s, %s offset:%d" % (v(T2), v(SM, 2), L_PM), "wp")
            p("v_cvt_pk_bf16_f32 %s, %s, %s" % (v(SX), v(SX), v(SX + 1)))
            p("v_cvt_pk_bf16_f32 %s, %s, %s" % (v(SX + 1), v(SX + 2), v(SX + 3)))
            lg.op("ds_write_b64 %s, %s offset:%d" % (v(T1), v(SX, 2), L_PX), "wp")
            lg.all()
            stamp(8)
            p("s_barrier")
            stamp(9)
            if PFW == 3:
                prefetch()
            bases()
            for i in range(len(lt)):
                rdtile(STG[i], slot_addr(lt[i], w), ("w", lt[i]))
            stamp(10)
            for t in range(5):
                for x in zero(ACC[t], 4):
                    p(x)
            npre = len(lt)
        p("s_mul_i32 %s, %s, 9216" % (s(S_PB), s(S_H)))
        p("s_add_u32 %s, %s, %s" % (s(S_PB), s(S_PB), s(S_PAR)))
        p("s_add_u32 %s, %s, 4096" % (s(S_T0), s(S_PB)))
        p("s_add_u32 %s, %s, 7168" % (s(S_T1), s(S_PB)))
        lg.wait("wo")
        stamp(11)
        p("s_barrier")
        stamp(12)
        for ks in range(4):
            lg.op("ds_read_b128 %s, %s offset:%d" % (v(OA + 4 * ks, 4), v(SXR), L_O + 512 * ks), ("o", ks))
        slot_of = {t: i for i, t in enumerate(lt[:npre])}
        if w < 3:
            rdtile(STG[4], slot_addr(lt[4], w), ("w", lt[4]))
            slot_of[lt[4]] = 4
            npre = 5
            for x in zero(ACC[0], 4) + zero(ACC[2], 4):
                p(x)
        nxt = npre
        freed = []

        def post(tau):
            A0 = ACC[tau]
            so, off = [(S_PB, 0), (S_PB, 2048), (S_T0, 0), (S_T0, 2048), (S_T1, 0)][tau]
            L = []
            L.append("v_cvt_pk_bf16_f32 %s, %s, %s" % (v(A0), v(A0), v(A0 + 1)))
            L.append("v_cvt_pk_bf16_f32 %s, %s, %s" % (v(A0 + 1), v(A0 + 2), v(A0 + 3)))
            L.append("v_and_or_b32 %s, %s, -2, %s" % (v(A0), v(A0), s(S_PH)))
            L.append("buffer_store_dwordx2 %s, %s, %s, %s offen offset:%d %s" % (v(A0, 2), v(QWA), s(SWS, 4), s(so), off + 512 * w, ST))
            if tau == 0 and w == 2:
                L += zero(A0, 4)
            return L

        PQ = []
        for t in range(nt):
            tau, ks = divmod(t, 4)
            lg.wait(("o", ks), ("w", t))
            if ks == 0 and tau == 4:
                bg(PQ, 99)
            if t in lt:
                p(smf(ACC[tau], OA + 4 * ks, v(STG[slot_of[t]], 8)))
            else:
                p(smf(ACC[tau], OA + 4 * ks, wt(*wo_reg[t])))
            if freed:
                sl = freed.pop()
                if nxt < len(lt):
                    rdtile(STG[sl], slot_addr(lt[nxt], w), ("w", lt[nxt]))
                    slot_of[lt[nxt]] = sl
                    nxt += 1
            if t in lt:
                freed.append(slot_of[t])
            if ks == 2 and tau >= 1:
                bg(PQ, 99)
                PQ = post(tau - 1)
            bg(PQ, 2)
        bg(PQ, 99)
        for x in post(nt // 4 - 1):
            p(x)
        assert not lg.log
        stamp(13)
        p("s_add_u32 %s, %s, 16384" % (s(S_T3), s(S_MB)))
        p("s_and_b32 %s, %s, 0x%x" % (s(S_T3), s(S_T3), OFF_MB | 0xffff))
        if w == TW:
            RD, SEL, RA, RP, RACC = 16, 32, 36, 37, 40
            p("v_lshrrev_b32 %s, 5, %s" % (v(T0), v(L16)))
            p("v_mul_u32_u24 %s, 9216, %s" % (v(T0), v(T0)))
            p("v_and_b32 %s, 16, %s" % (v(RP), v(L16)))
            p("v_add_u32 %s, %s, %s" % (v(RA), v(T0), v(RP)))
            p("s_lshl_b32 %s, %s, 5" % (s(S_T0), s(S_H)))
            p("s_add_u32 %s, %s, %s" % (s(S_RL), s(S_T0), s(S_PAR)))
            p("s_add_u32 %s, %s, 8192" % (s(S_RL), s(S_RL)))
            p("v_bfe_u32 %s, %s, 4, 4" % (v(T0), v(L16)))
            p("v_and_b32 %s, 1, %s" % (v(T1), v(T0)))
            p("v_lshlrev_b32 %s, 4, %s" % (v(T1), v(T1)))
            p("v_mov_b32 %s, 0x3f80" % v(T2))
            p("v_lshlrev_b32 %s, %s, %s" % (v(T1), v(T1), v(T2)))
            p("v_lshrrev_b32 %s, 1, %s" % (v(T0), v(T0)))
            for r in range(4):
                p("v_cmp_eq_u32 vcc, %d, %s" % (r, v(T0)))
                p("v_cndmask_b32 %s, 0, %s, vcc" % (v(SEL + r), v(T1)))
            p("s_lshr_b32 %s, %s, 2" % (s(S_T0), s(S_H)))
            p("s_lshl_b32 %s, %s, 7" % (s(S_T0), s(S_T0)))
            p("s_and_b32 %s, %s, 3" % (s(S_T1), s(S_H)))
            p("s_lshl_b32 %s, %s, 2" % (s(S_T1), s(S_T1)))
            p("s_add_u32 %s, %s, %s" % (s(S_T0), s(S_T0), s(S_T1)))
            p("s_add_u32 %s, %s, 8192" % (s(S_T0), s(S_T0)))
            p("s_add_u32 s58, %s, %s" % (s(S_T3), s(S_T0)))
            p("s_add_u32 %s, %s, %s" % (s(S_PMB), s(S_MB), s(S_T0)))
            p("s_add_u32 s59, %s, 0x%x" % (s(S_T0), OFF_HIST + nsteps * 9216))
            p("v_mov_b32 v8, 0x%x" % SENT)
            p("s_waitcnt vmcnt(0)")
            p.label(W + "TRED")
            p("buffer_load_dwordx4 %s, %s, %s, %s offen sc1" % (v(RD, 4), v(RA), s(SWS, 4), s(S_RL)))
            budget()
            p("s_waitcnt vmcnt(0)")
            p("v_mfma_f32_16x16x32_bf16 %s, %s, %s, 0" % (v(RACC, 4), v(RD, 4), v(SEL, 4)))
            p("v_bitop3_b32 v44, %s, %s, %s bitop3:0x7e" % (v(RD), v(RD + 2), s(S_PH)))
            p("v_and_b32 v44, 1, v44")
            p("v_cmp_ne_u32 vcc, 0, v44")
            p("s_cbranch_vccnz %sTRED" % W)
            stamp(14)
            p("v_pk_add_f32 %s, %s, %s" % (v(RACC, 2), v(RACC, 2), v(RACC + 2, 2)))
            for sw in ("16", "32"):
                p("v_mov_b64 %s, %s" % (v(RACC + 2, 2), v(RACC, 2)))
                p("v_permlane%s_swap_b32 %s, %s" % (sw, v(RACC), v(RACC + 2)))
                p("v_permlane%s_swap_b32 %s, %s" % (sw, v(RACC + 1), v(RACC + 3)))
                p("v_pk_add_f32 %s, %s, %s" % (v(RACC, 2), v(RACC, 2), v(RACC + 2, 2)))
            p("v_cvt_pk_bf16_f32 %s, %s, %s" % (v(RACC), v(RACC), v(RACC + 1)))
            p("s_mov_b64 exec, 0xff")
            p("buffer_store_dword %s, %s, %s, s58 offen %s" % (v(RACC), v(L16), s(SWS, 4), ST))
            p("buffer_store_dword v8, %s, %s, %s offen %s" % (v(L16), s(SWS, 4), s(S_PMB), ST))
            lh = p.newlabel("NOH")
            p("s_cmp_lt_u32 %s, %d" % (s(S_STEP), nsteps - 1))
            p("s_cbranch_scc1 %s" % lh)
            p("buffer_store_dword %s, %s, %s, s59 offen sc1" % (v(RACC), v(L16), s(SWS, 4)))
            p.label(lh)
            p("s_mov_b64 exec, -1")
        if w < 2:
            labn = W + "NORED"
            RD = 16
            SEL = 32
            RA = 36
            RP = 37
            RACC = 40
            p("v_lshrrev_b32 %s, 7, %s" % (v(T0), v(L16)))
            p("v_mul_u32_u24 %s, 9216, %s" % (v(T0), v(T0)))
            p("v_and_b32 %s, 0x70, %s" % (v(RP), v(L16)))
            p("v_add_u32 %s, %s, %s" % (v(RA), v(T0), v(RP)))
            p("s_add_u32 %s, %s, %s" % (s(S_RL), s(S_PUB), s(S_PAR)))
            p("s_add_u32 %s, %s, %d" % (s(S_T0), s(S_RL), 73728))
            p("s_add_u32 %s, %s, %d" % (s(S_T1), s(S_RL), 2 * 73728))
            p("s_add_u32 %s, %s, %d" % (s(S_T2), s(S_RL), 3 * 73728))
            soffs = [S_RL, S_T0, S_T1, S_T2]

            def rload(masked=False):
                for ld in range(4):
                    if masked:
                        p("s_mov_b64 exec, %s" % s(MSK[ld], 2))
                    p("buffer_load_dwordx4 %s, %s, %s, %s offen sc1" % (v(RD + 4 * ld, 4), v(RA), s(SWS, 4), s(soffs[ld])))
                if masked:
                    p("s_mov_b64 exec, -1")

            SET = []
            SET.append("v_bfe_u32 %s, %s, 4, 4" % (v(T0), v(L16)))
            SET.append("v_and_b32 %s, 1, %s" % (v(T1), v(T0)))
            SET.append("v_lshlrev_b32 %s, 4, %s" % (v(T1), v(T1)))
            SET.append("v_mov_b32 %s, 0x3f80" % v(T2))
            SET.append("v_lshlrev_b32 %s, %s, %s" % (v(T1), v(T1), v(T2)))
            SET.append("v_lshrrev_b32 %s, 1, %s" % (v(T0), v(T0)))
            for r in range(4):
                SET.append("v_cmp_eq_u32 vcc, %d, %s" % (r, v(T0)))
                SET.append("v_cndmask_b32 %s, 0, %s, vcc" % (v(SEL + r), v(T1)))
            SET.append("v_bfe_u32 %s, %s, 8, 1" % (v(T2), v(L16)))
            SET.append("v_lshl_add_u32 %s, %s, 3, %s" % (v(RP), v(T2), v(RP)))
            SET.append("v_bfe_u32 %s, %s, 9, 1" % (v(T2), v(L16)))
            SET.append("v_lshl_add_u32 %s, %s, 2, %s" % (v(RP), v(T2), v(RP)))
            SET.append("s_add_u32 s58, %s, %s" % (s(S_T3), s(S_PUB)))
            SET.append("s_add_u32 %s, %s, %s" % (s(S_PMB), s(S_MB), s(S_PUB)))
            SET.append("v_mov_b32 v8, 0x%x" % SENT)

            def unit(tag, d0, d1, first):
                if first and w > 0 and not SETMID:
                    bg(SET, 99)
                for _ in range(d0):
                    p("s_nop 15")
                if VW[w] >= 0:
                    p("s_waitcnt vmcnt(%d)" % VW[w])
                rload()
                bg(SET, 99)
                for d in range(1, RDEP):
                    for _ in range(d1):
                        p("s_nop 7")
                    rload()
                p("s_branch %sRED1%s" % (W, tag))
                p.label(W + "RED" + tag)
                for ld in range(4):
                    p("v_and_b32 %s, 1, %s" % (v(44 + ld), v(44 + ld)))
                    p("v_cmp_ne_u32 %s, 0, %s" % (s(MSK[ld], 2), v(44 + ld)))
                rload(True)
                budget()
                p.label(W + "RED1" + tag)
                p("s_waitcnt vmcnt(%d)" % (4 * (RDEP - 1)))
                for ld in range(4):
                    b = RD + 4 * ld
                    p("v_bitop3_b32 %s, %s, %s, %s bitop3:0x7e" % (v(44 + ld), v(b), v(b + 2), s(S_PH)))
                p("v_or3_b32 v48, v44, v45, v46")
                p("v_or_b32 v48, v48, v47")
                p("v_and_b32 v48, 1, v48")
                p("v_cmp_ne_u32 vcc, 0, v48")
                for ld in range(4):
                    b = RD + 4 * ld
                    p("v_mfma_f32_16x16x32_bf16 %s, %s, %s, %s" % (v(RACC, 4), v(b, 4), v(SEL, 4), "0" if ld == 0 else v(RACC, 4)))
                    if ld == 0:
                        p("s_cbranch_vccnz %sRED%s" % (W, tag))
                if first:
                    stamp(14)
                p("v_permlane32_swap_b32 %s, %s" % (v(RACC), v(RACC + 2)))
                p("v_permlane32_swap_b32 %s, %s" % (v(RACC + 1), v(RACC + 3)))
                p("v_pk_add_f32 %s, %s, %s" % (v(RACC, 2), v(RACC, 2), v(RACC + 2, 2)))
                p("v_cvt_pk_bf16_f32 %s, %s, %s" % (v(RACC), v(RACC), v(RACC + 1)))
                p("s_mov_b64 exec, %s" % s(S_PUBM, 2))
                p("buffer_store_dword %s, %s, %s, s58 offen %s" % (v(RACC), v(RP), s(SWS, 4), ST))
                p("buffer_store_dword v8, %s, %s, %s offen %s" % (v(RP), s(SWS, 4), s(S_PMB), ST))
                lh = p.newlabel("NOH")
                p("s_cmp_lt_u32 %s, %d" % (s(S_STEP), nsteps - 1))
                p("s_cbranch_scc1 %s" % lh)
                p("s_add_u32 s59, %s, 0x%x" % (s(S_PUB), OFF_HIST + nsteps * 9216))
                p("buffer_store_dword %s, %s, %s, s59 offen sc1" % (v(RACC), v(RP), s(SWS, 4)))
                p.label(lh)
                p("s_mov_b64 exec, -1")

            unit("A", RD0[w], RD1[w], True)
            p.label(labn)
        stamp(15)
        p("s_mov_b32 %s, %s" % (s(S_MB), s(S_T3)))
        p("s_xor_b32 %s, %s, 0x%x" % (s(S_PAR), s(S_PAR), PB_STR))
        p("s_and_b32 %s, %s, 1" % (s(S_T0), s(S_STEP)))
        p("s_xor_b32 %s, %s, %s" % (s(S_PH), s(S_PH), s(S_T0)))
        p("s_add_u32 %s, %s, 1" % (s(S_STEP), s(S_STEP)))
        if stamps and w == 3 or stamps == 2:
            flush_stamps()
        if stamps:
            p("s_add_u32 %s, %s, 128" % (s(S_STO), s(S_STO)))
        p("s_cmp_lt_u32 %s, %d" % (s(S_STEP), nsteps))
        p("s_cbranch_scc1 %sPRE" % W)
        p("s_branch REC_DONE")
        if own1:
            p.label(W + "RETRY1")
            fetch(own1, True)
            budget()
            p("s_branch %sCHK1" % W)
        p.label(W + "RETRY2")
        fetch(own2, True)
        budget()
        p("s_branch %sCHK2" % W)

    for w in range(4):
        gen_wave(w)
```

```python
import math
import struct
from asmlib import *
from layout import *

L_MEM = 0
L_Q = 9216
L_O = L_Q
L_K = 11264
L_PX = L_K
L_PM = L_K + 512
L_RI = L_K + 1024
L_SX = 13312
L_WL = 16384
LDS_BYTES = 163840

MA = 0
AQ = 36
AK = 44
KXF = 52
QF = 60
VXF = 52
STG0 = 64
IDX = 72
L16 = 73
TRA = 74
QWA = 75
SXR = 76
T0, T1, T2 = 77, 78, 79

SWS = 4
SW = 8
S_H, S_W, S_STEP, S_BUD = 16, 17, 18, 19
S_MB, S_M0, S_KX0, S_KX1, S_VX, S_KM, S_VM, S_PB = 20, 21, 22, 23, 24, 25, 26, 27
S_U, S_RL, S_PUB = 28, 29, 30
S_T0 = 31
S_PUBM = 32
S_PART = 34
S_C = 36
S_W512 = 37
S_T1, S_T2, S_T3 = 38, 39, 40
S_STAMP = 42
S_STO = 44
S_SAFE = 45
S_PAR = 46
SENT = 0xFFBFFFBF
S_SENT = 47
S_HIST = 41
S_TF, S_KVF, S_KVC = 42, 43, 45
S_C2, S_Q2, S_NC = 92, 94, 91
S_PH, S_PMB, S_H288 = 90, 100, 101


def f2u(x):
    return struct.unpack("<I", struct.pack("<f", x))[0]


def wt_reg(mat, j, tt, r, n):
    i = (mat * 9 + j) * 2 + tt
    if i < 32:
        return a(8 * i + r, n)
    return v(80 + 8 * (i - 32) + r, n)


def wt(mat, j, tt):
    return wt_reg(mat, j, tt, 0, 8)


def slot_addr(t, w):
    if t < 16:
        return L_WL + t * 8192 + w * 2048
    return L_WL + 131072 + (t - 16) * 4096 + (w - 2) * 2048


def lref(addr):
    b, off = divmod(addr, 65536)
    if off > 65536 - 2048:
        raise ValueError("tile straddles base")
    return v([L16, T1, T2][b]), off


def smf(acc, A, B):
    return "v_smfmac_f32_16x16x64_bf16 %s, %s, %s, %s" % (v(acc, 4), v(A, 4), B, v(IDX))


def gen_rec(p, nsteps=63, stamps=False, st_flags="", EXP="sc1", NQKL=4, DEP=2, FD0=0, FD1=0, C1=6, RDEP=2,
            R0=0, R1=0, R2=0, Q0=0, Q1=0, Q2=0, hist=1, RT=0, flags=1, census=0, TS=0, KVS=0x40000, EXS=0x20000, PFW=2, NOEXP=0, B3=1, V0=1, V1=0, V2=0, F2E=1, TW=2, SETMID=1, WARM=0, AW=0):
    VW = [x if x < 9 else -1 for x in (V0, V1, V2)]
    RD0 = [R0, R1, R2]
    RD1 = [Q0, Q1, Q2]
    ST = st_flags

    NSTAMP = 15

    def stamp(k):
        if not stamps or k >= 15:
            return
        p("%s %s" % ("s_memrealtime" if RT else "s_memtime", s(60 + 2 * k, 2)))

    def flush_stamps():
        if not stamps:
            return
        p("s_waitcnt lgkmcnt(0)")
        for k in range(NSTAMP):
            p("v_writelane_b32 %s, %s, %d" % (v(T2), s(60 + 2 * k), k))
        p("v_lshrrev_b32 %s, 2, %s" % (v(T1), v(L16)))
        p("s_mov_b64 exec, 0xfffff")
        p("buffer_store_dword %s, %s, %s, %s offen" % (v(T2), v(T1), s(SWS, 4), s(S_STO)))
        p("s_mov_b64 exec, -1")

    p.c("---- recurrence setup")
    p("s_load_dwordx2 %s, s[0:1], %d" % (s(SWS, 2), D_WS * 8))
    p("s_load_dwordx2 s[48:49], s[0:1], %d" % (A_WQ * 8))
    p("s_load_dwordx2 s[50:51], s[0:1], %d" % (A_WK * 8))
    p("s_load_dwordx2 s[52:53], s[0:1], %d" % (A_WV * 8))
    p("s_load_dwordx2 s[54:55], s[0:1], %d" % (A_WO * 8))
    p("s_load_dwordx2 s[56:57], s[0:1], %d" % (A_MEM0 * 8))
    p("v_lshrrev_b32 v1, 6, v0")
    p("v_and_b32 v0, 63, v0")
    p("v_readfirstlane_b32 %s, v1" % s(S_W))
    p("s_mov_b32 %s, %d" % (s(SWS + 2), WS_BYTES))
    p("s_mov_b32 %s, 0x20000" % s(SWS + 3))
    p("s_mov_b32 %s, %d" % (s(SW + 2), DM * H * DH * 2))
    p("s_mov_b32 %s, 0x20000" % s(SW + 3))
    p("s_mov_b32 %s, 0x00ff00ff" % s(S_PUBM))
    p("s_mov_b32 %s, 0x00ff00ff" % s(S_PUBM + 1))
    p("s_mov_b32 %s, 0xff00ff00" % s(S_PART))
    p("s_mov_b32 %s, 0xff00ff00" % s(S_PART + 1))
    p("s_mov_b32 %s, 0x%x" % (s(S_C), f2u(DH ** -0.5 * math.log2(math.e))))
    p("s_mov_b32 %s, 1000000" % s(S_BUD))
    p("s_mov_b32 %s, %s" % (s(S_C2), s(S_C)))
    p("s_mov_b32 %s, %s" % (s(S_C2 + 1), s(S_C)))
    p("s_mov_b32 %s, 0x3e800000" % s(S_Q2))
    p("s_mov_b32 %s, 0x3e800000" % s(S_Q2 + 1))
    p("s_xor_b32 %s, %s, 0x80000000" % (s(S_NC), s(S_C)))
    p("s_mov_b32 %s, 0x%x" % (s(S_SENT), SENT))
    p("s_lshl_b32 %s, %s, 9" % (s(S_W512), s(S_W)))
    p("v_and_b32 v1, 15, v0")
    p("v_lshrrev_b32 v2, 4, v0")
    p("v_bfe_u32 v3, v0, 2, 2")
    p("v_and_b32 v4, 3, v0")
    p("v_lshlrev_b32 %s, 4, v0" % v(L16))
    p("v_mov_b32 %s, 0x4444" % v(IDX))
    p("v_mov_b32 v5, 0xeeee")
    p("v_cndmask_b32 %s, %s, v5, %s" % (v(IDX), v(IDX), s(S_PART, 2)))
    p("v_lshl_add_u32 v5, v2, 2, v3")
    p("v_lshlrev_b32 v5, 4, v5")
    p("v_and_b32 v6, 1, v4")
    p("v_lshl_add_u32 %s, v6, 3, v5" % v(TRA))
    p("v_lshrrev_b32 v5, 5, v0")
    p("v_lshl_add_u32 v5, v5, 4, v1")
    p("v_lshlrev_b32 v5, 4, v5")
    p("v_and_b32 v6, 1, v2")
    p("v_lshl_add_u32 %s, v6, 3, v5" % v(QWA))
    p("v_and_b32 v5, 7, v0")
    p("v_lshl_add_u32 v5, v2, 3, v5")
    p("v_lshlrev_b32 %s, 4, v5" % v(SXR))
    p("s_waitcnt lgkmcnt(0)")

    p("s_lshl_b32 %s, %s, 2" % (s(S_T0), s(S_H)))
    p("s_add_u32 %s, %s, %s" % (s(S_T0), s(S_T0), s(S_W)))
    p("s_lshl_b32 %s, %s, 13" % (s(S_T0), s(S_T0)))
    p("s_add_u32 %s, %s, 0x%x" % (s(S_STO), s(S_T0), OFF_STAMP))

    p("s_lshl_b32 %s, %s, 5" % (s(S_U), s(S_W)))
    p("s_add_u32 %s, %s, %s" % (s(S_U), s(S_U), s(S_H)))

    lab = p.newlabel("NOPUB0")
    p("s_cmp_ge_u32 %s, 72" % s(S_U))
    p("s_cbranch_scc1 %s" % lab)
    p("s_mov_b32 %s, s56" % s(12))
    p("s_mov_b32 %s, s57" % s(13))
    p("s_mov_b32 %s, 9216" % s(14))
    p("s_mov_b32 %s, 0x20000" % s(15))
    p("v_and_b32 v5, 1, v2")
    p("v_lshlrev_b32 v5, 3, v5")
    p("v_lshrrev_b32 v6, 1, v2")
    p("v_lshl_add_u32 v7, v6, 2, v5")
    p("v_and_b32 v5, 7, v0")
    p("v_mul_u32_u24 v6, 1152, v5")
    p("v_add_u32 v6, v6, v7")
    p("v_lshl_add_u32 v7, v5, 4, v7")
    p("s_lshl_b32 %s, %s, 4" % (s(S_T0), s(S_U)))
    p("s_lshl_b32 %s, %s, 7" % (s(S_T1), s(S_U)))
    p("s_add_u32 %s, %s, 0x%x" % (s(S_T1), s(S_T1), OFF_MB))
    p("s_mov_b64 exec, %s" % s(S_PUBM, 2))
    p("buffer_load_dword v8, v6, s[12:15], %s offen" % s(S_T0))
    p("s_waitcnt vmcnt(0)")
    p("v_cmp_eq_u32 vcc, 0x%x, v8" % SENT)
    p("v_mov_b32 v9, 0xffffffff")
    p("v_cndmask_b32 v8, v8, v9, vcc")
    p("buffer_store_dword v8, v7, %s, %s offen sc1" % (s(SWS, 4), s(S_T1)))
    p("s_mov_b64 exec, -1")
    p("s_waitcnt vmcnt(0)")
    p.label(lab)
    p("s_load_dwordx2 s[12:13], s[0:1], %d" % (D_DBG * 8))
    p("s_mov_b32 s14, 256")
    p("s_mov_b32 s15, 0x20000")
    p("s_waitcnt lgkmcnt(0)")

    p.c("---- weight load through LDS with transposing reads")
    p("v_and_b32 v5, 1, v2")
    p("s_lshl_b32 %s, %s, 1" % (s(S_T0), s(S_W)))
    p("v_or_b32 v5, %s, v5" % s(S_T0))
    p("v_lshlrev_b32 v5, 1, v5")
    p("v_xor_b32 v5, v5, v1")
    p("v_lshlrev_b32 v5, 4, v5")
    p("v_lshl_add_u32 v8, v2, 13, v5")
    p("s_lshl_b32 %s, %s, 15" % (s(S_T0), s(S_W)))
    p("s_lshl_b32 %s, %s, 8" % (s(S_T1), s(S_H)))
    p("s_add_u32 %s, %s, %s" % (s(S_T0), s(S_T0), s(S_T1)))
    p("v_add_u32 v8, %s, v8" % s(S_T0))
    p("v_and_b32 v5, 1, v2")
    p("s_and_b32 %s, %s, 1" % (s(S_T0), s(S_W)))
    p("s_lshl_b32 %s, %s, 1" % (s(S_T0), s(S_T0)))
    p("v_or_b32 v5, %s, v5" % s(S_T0))
    p("v_lshlrev_b32 v5, 2, v5")
    p("v_xor_b32 v5, v5, v1")
    p("v_lshlrev_b32 v5, 4, v5")
    p("v_mul_u32_u24 v6, 1152, v2")
    p("v_add_u32 v9, v5, v6")
    p("s_mul_i32 %s, %s, %d" % (s(S_T0), s(S_W), 16 * 1152))
    p("s_mul_i32 %s, %s, 147456" % (s(S_T1), s(S_H)))
    p("s_add_u32 %s, %s, %s" % (s(S_T0), s(S_T0), s(S_T1)))
    p("v_add_u32 v9, %s, v9" % s(S_T0))
    p("v_and_b32 v5, 7, v0")
    p("v_lshlrev_b32 v5, 4, v5")
    p("v_lshrrev_b32 v6, 3, v0")
    p("v_mul_u32_u24 v6, 1152, v6")
    p("s_mul_i32 %s, %s, %d" % (s(S_T0), s(S_W), 32 * 1152))
    p("s_add_u32 %s, %s, %s" % (s(S_T0), s(S_T0), s(S_T1)))
    p("s_add_u32 %s, %s, 1024" % (s(S_T0), s(S_T0)))
    p("v_add_u32 v6, %s, v6" % s(S_T0))
    p("v_add_u32 v60, v5, v6")
    p("v_xor_b32 v5, 64, v5")
    p("v_add_u32 v61, v5, v6")
    p("v_lshrrev_b32 v5, 1, v2")
    p("v_lshlrev_b32 v5, 4, v5")
    p("v_and_b32 v6, 1, v2")
    p("v_lshl_add_u32 v5, v6, 2, v5")
    p("v_and_b32 v7, 1, v3")
    p("v_add_u32 v5, v5, v7")
    p("v_lshrrev_b32 v10, 1, v3")
    p("v_lshl_add_u32 v5, v10, 3, v5")
    p("v_lshl_or_b32 v11, v6, 1, v7")
    p("v_lshl_or_b32 v11, v10, 2, v11")
    p("s_lshl_b32 %s, %s, 1" % (s(S_T0), s(S_W)))
    p("v_xor_b32 v12, %s, v11" % s(S_T0))
    p("v_lshlrev_b32 v12, 5, v12")
    p("v_lshl_add_u32 v12, v4, 3, v12")
    p("v_lshl_add_u32 v12, v5, 8, v12")
    p("v_add_u32 v12, %d, v12" % L_WL)
    p("v_xor_b32 v13, 32, v12")
    p("v_lshrrev_b32 v5, 1, v2")
    p("v_lshl_add_u32 v5, v5, 2, v7")
    p("v_lshl_add_u32 v5, v6, 4, v5")
    p("v_lshl_or_b32 v14, v6, 1, v7")
    p("v_lshl_or_b32 v14, v14, 1, v10")
    p("s_lshl_b32 %s, %s, 1" % (s(S_T0), s(S_W)))
    p("v_xor_b32 v14, %s, v14" % s(S_T0))
    p("v_lshlrev_b32 v14, 5, v14")
    p("v_lshl_add_u32 v14, v4, 3, v14")
    p("v_lshl_add_u32 v14, v5, 8, v14")
    p("v_add_u32 v14, %d, v14" % L_WL)
    p("v_lshl_or_b32 v62, v6, 1, v10")
    p("v_lshlrev_b32 v62, 5, v62")
    p("v_lshl_add_u32 v62, v4, 3, v62")
    p("v_lshl_add_u32 v62, v5, 7, v62")
    p("s_lshl_b32 %s, %s, 12" % (s(S_T0), s(S_W)))
    p("s_add_u32 %s, %s, %d" % (s(S_T0), s(S_T0), L_WL + 8 * 16384))
    p("v_add_u32 v62, %s, v62" % s(S_T0))
    p("v_xor_b32 v63, 64, v62")
    p("v_add_u32 v64, %s, %s" % (s(S_T0), v(L16)))
    p("s_lshl_b32 %s, %s, 12" % (s(S_T3), s(S_W)))
    p("s_lshl_b32 %s, %s, 11" % (s(S_T0), s(S_W)))
    p("v_add_u32 v15, %s, %s" % (s(S_T0), v(L16)))
    p("v_add_u32 v15, %d, v15" % L_WL)
    p("s_lshl_b32 %s, %s, 10" % (s(S_T2), s(S_W)))

    cur_mat = [None]

    def set_mat(mi):
        if cur_mat[0] != mi:
            p("s_mov_b32 %s, s%d" % (s(SW), 48 + 2 * mi))
            p("s_mov_b32 %s, s%d" % (s(SW + 1), 49 + 2 * mi))
            cur_mat[0] = mi

    def issue_group(G):
        slot = G % 9
        if G < 27:
            mi, j = divmod(G, 9)
            set_mat(mi)
            for qq in range(4):
                p("s_add_u32 m0, %s, %d" % (s(S_T2), L_WL + slot * 16384 + qq * 4096))
                p("s_mov_b32 %s, %d" % (s(S_T0), (64 * j + 16 * qq) * 8192))
                p("buffer_load_dwordx4 v8, %s, %s offen lds" % (s(SW, 4), s(S_T0)))
        else:
            set_mat(3)
            tau, kp = divmod(slot, 2)
            for qq in range(4):
                p("s_add_u32 m0, %s, %d" % (s(S_T3), L_WL + slot * 16384 + qq * 1024))
                if slot < 8:
                    p("s_mov_b32 %s, %d" % (s(S_T0), (64 * kp + 4 * qq) * 1152 + tau * 256))
                    p("buffer_load_dwordx4 v9, %s, %s offen lds" % (s(SW, 4), s(S_T0)))
                else:
                    p("s_mov_b32 %s, %d" % (s(S_T0), 8 * qq * 1152))
                    p("buffer_load_dwordx4 v%d, %s, %s offen lds" % (60 + (qq >> 1), s(SW, 4), s(S_T0)))

    NG = 36
    for G in range(9):
        issue_group(G)
    issued = 9
    for G in range(NG):
        slot = G % 9
        p("s_waitcnt vmcnt(%d) lgkmcnt(0)" % (4 * (issued - G - 1)))
        p("s_barrier")
        if G >= 1 and issued < NG:
            issue_group(issued)
            issued += 1
        if G >= 28:
            pb = 20 + 16 * ((G - 1) & 1)
            ps = (G - 1) % 9
            p("v_add_u32 v18, %d, v15" % (ps * 16384))
            for j2 in range(2):
                for hf in range(2):
                    p("ds_write_b128 v18, %s offset:%d" % (v(pb + 8 * j2 + 4 * hf, 4), j2 * 8192 + hf * 1024))
        if G < 27:
            mi, j = divmod(G, 9)
            p("v_add_u32 v16, %d, v12" % (slot * 16384))
            p("v_add_u32 v17, %d, v13" % (slot * 16384))
            for tt in range(2):
                for rd in range(4):
                    off = (rd & 1) * 512 + (rd >> 1) * 8192
                    p("ds_read_b64_tr_b16 %s, v%d offset:%d" % (wt_reg(mi, j, tt, 2 * rd, 2), 16 + tt, off))
        else:
            b = 20 + 16 * (G & 1)
            if slot < 8:
                p("v_add_u32 v16, %d, v14" % (slot * 16384))
                for j2 in range(2):
                    for rd in range(4):
                        off = j2 * 8192 + (rd & 1) * 512 + (rd >> 1) * 2048
                        p("ds_read_b64_tr_b16 %s, v16 offset:%d" % (v(b + 8 * j2 + 2 * rd, 2), off))
            else:
                for pp in range(2):
                    for rd in range(4):
                        off = (rd & 1) * 256 + (rd >> 1) * 1024
                        p("ds_read_b64_tr_b16 %s, v%d offset:%d" % (v(b + 8 * pp + 2 * rd, 2), 62 + pp, off))
    p("s_waitcnt lgkmcnt(0)")
    p("s_barrier")
    pb = 20 + 16 * ((NG - 1) & 1)
    for pp in range(2):
        for hf in range(2):
            p("ds_write_b128 v64, %s offset:%d" % (v(pb + 8 * pp + 4 * hf, 4), pp * 2048 + hf * 1024))

    p("s_mov_b32 %s, 0" % s(S_STEP))
    p("s_mov_b32 %s, 0x%x" % (s(S_PAR), OFF_PB2))
    p("s_mov_b32 %s, 1" % s(S_PH))
    p("s_mov_b32 %s, 0x%x" % (s(S_MB), OFF_MB))
    p("s_lshl_b32 %s, %s, 13" % (s(S_T0), s(S_H)))
    p("s_add_u32 %s, %s, 0x%x" % (s(S_VX), s(S_T0), OFF_VX))
    p("s_add_u32 %s, %s, 0x%x" % (s(S_M0), s(S_T0), OFF_KX + KVS))
    p("s_add_u32 %s, %s, 0x%x" % (s(S_KX0), s(S_T0), OFF_KX))
    p("s_add_u32 %s, %s, 4096" % (s(S_KX1), s(S_KX0)))
    p("s_lshl_b32 %s, %s, 12" % (s(S_T0), s(S_H)))
    p("s_add_u32 %s, %s, 0x%x" % (s(S_KM), s(S_T0), OFF_KM))
    p("s_add_u32 %s, %s, 0x%x" % (s(S_VM), s(S_T0), OFF_VM))
    p("s_lshl_b32 %s, %s, 7" % (s(S_PUB), s(S_U)))
    p("s_mul_i32 %s, %s, 288" % (s(S_H288), s(S_H)))
    p("s_mov_b32 %s, 0x%x" % (s(S_HIST), OFF_HIST))
    p("s_lshl_b32 %s, %s, 7" % (s(S_TF), s(S_H)))
    p("s_add_u32 %s, %s, 0x%x" % (s(S_TF), s(S_TF), OFF_FLAG + F_TEAM))
    p("s_lshl_b32 %s, %s, 9" % (s(S_KVF), s(S_H)))
    p("s_add_u32 %s, %s, 0x%x" % (s(S_KVF), s(S_KVF), OFF_FLAG + F_G1))
    p("s_mov_b32 %s, 0" % s(S_KVC))
    p("v_add_u32 %s, 65536, %s" % (v(T1), v(L16)))
    p("v_add_u32 %s, 131072, %s" % (v(T2), v(L16)))
    p("s_waitcnt lgkmcnt(0)")
    p("s_barrier")
    for w in range(1, 4):
        p("s_cmp_eq_u32 %s, %d" % (s(S_W), w))
        p("s_cbranch_scc1 REC_W%d" % w)
    MODES = ["", "sc1"] if census else [st_flags]

    def budget():
        p("s_sub_u32 %s, %s, 1" % (s(S_BUD), s(S_BUD)))
        p("s_cbranch_scc1 REC_FAIL")

    def bg(q, n=1):
        for _ in range(n):
            if q:
                x = q.pop(0)
                if callable(x):
                    x()
                else:
                    p(x)

    def combine(acc):
        return ([("v_permlane32_swap_b32 %s, %s" % (v(acc + r), v(acc + 4 + r))) for r in range(4)]
                + [("v_add_f32 %s, %s, %s" % (v(acc + r), v(acc + r), v(acc + 4 + r))) for r in range(4)]
                + ["v_cvt_pk_bf16_f32 %s, %s, %s" % (v(acc), v(acc), v(acc + 1)),
                   "v_cvt_pk_bf16_f32 %s, %s, %s" % (v(acc + 1), v(acc + 2), v(acc + 3))])

    def zero(r, n):
        return ["v_mov_b64 %s, 0" % v(r + i, 2) for i in range(0, n, 2)]

    class LG:
        def __init__(self):
            self.log = []

        def op(self, text, tag):
            p(text)
            self.log.append(tag)

        def wait(self, *tags):
            hit = [i for i, x in enumerate(self.log) if x in tags]
            if hit:
                k = max(hit)
                n = len(self.log) - 1 - k
                assert n <= 15
                p("s_waitcnt lgkmcnt(%d)" % n)
                self.log = self.log[k + 1:]

        def all(self):
            if self.log:
                p("s_waitcnt lgkmcnt(0)")
            self.log = []

    def bases():
        p("v_add_u32 %s, 65536, %s" % (v(T1), v(L16)))
        p("v_add_u32 %s, 131072, %s" % (v(T2), v(L16)))

    MSK = [48, 50, 52, 54]

    def masks(bases_, tmps, half=False):
        for i, b in enumerate(bases_):
            if half:
                p("v_max_u32 %s, %s, %s" % (v(tmps[i]), v(b), v(b + 2)))
            else:
                p("v_max3_u32 %s, %s, %s, %s" % (v(tmps[i]), v(b), v(b + 1), v(b + 2)))
                p("v_max_u32 %s, %s, %s" % (v(tmps[i]), v(tmps[i]), v(b + 3)))
        for i, b in enumerate(bases_):
            p("v_cmp_eq_u32 %s, %s, %s" % (s(MSK[i], 2), s(S_SENT), v(tmps[i])))
        if len(bases_) == 1:
            p("s_or_b64 s[56:57], %s, %s" % (s(MSK[0], 2), s(MSK[0], 2)))
        else:
            p("s_or_b64 s[56:57], %s, %s" % (s(MSK[0], 2), s(MSK[1], 2)))
        for i in range(2, len(bases_)):
            p("s_or_b64 s[56:57], s[56:57], %s" % s(MSK[i], 2))

    def kexport():
        if NOEXP:
            return
        p("s_mov_b64 exec, %s" % s(S_PUBM, 2))
        for ks in range(4):
            p("buffer_store_dwordx4 %s, %s, %s, %s offen offset:%d %s" % (v(52 + 4 * ks, 4), v(SXR), s(SWS, 4), s(S_KM), ks * 512, EXP))
        p("s_mov_b64 exec, -1")
        p("s_add_u32 %s, %s, %d" % (s(S_KM), s(S_KM), EXS))

    def teamflag(sval):
        p("v_mov_b32 %s, %s" % (v(T0), s(sval)))
        p("s_mov_b64 exec, 1")
        p("buffer_store_dword %s, %s, %s, %s offen sc1" % (v(T0), v(L16), s(SWS, 4), s(S_TF)))
        p("s_mov_b64 exec, -1")

    def kv_wait(sseg):
        if not flags:
            return
        ok = p.newlabel("KVOK")
        top = p.newlabel("KVP")
        p("s_cmp_ge_u32 %s, 64" % s(sseg))
        p("s_cbranch_scc1 %s" % ok)
        p.label(top)
        p("s_cmp_gt_u32 %s, %s" % (s(S_KVC), s(sseg)))
        p("s_cbranch_scc1 %s" % ok)
        p("v_lshlrev_b32 %s, 3, %s" % (v(T0), v(L16)))
        p("s_mov_b64 exec, 15")
        p("buffer_load_dword %s, %s, %s, %s offen sc1" % (v(T0), v(T0), s(SWS, 4), s(S_KVF)))
        p("s_mov_b64 exec, -1")
        p("s_waitcnt vmcnt(0)")
        p("v_readlane_b32 s56, %s, 0" % v(T0))
        for i in range(1, 4):
            p("v_readlane_b32 s57, %s, %d" % (v(T0), i))
            p("s_min_u32 s56, s56, s57")
        p("s_lshl_b32 %s, s56, 2" % s(S_KVC))
        budget()
        p("s_branch %s" % top)
        p.label(ok)

    H1 = [0, 1, 2, 3]
    H2 = [4, 5, 6, 7, 8]

    def plan(w):
        own1 = {0: [5, 6], 1: [7, 8], 2: [3, 4], 3: [0, 1, 2]}[w]
        own2 = []
        h1ord = own1
        h2ord = [j for j in range(9) if j not in own1]
        seqA = [(m, j, tt) for m in range(2) for j in h1ord for tt in range(2)]
        seqQ = [(0, j, tt) for j in h2ord for tt in range(2)]
        seqK = [(1, j, tt) for j in h2ord for tt in range(2)]
        seq = seqA + seqQ + seqK
        if w < 3:
            lds_qk = [seq[i] for i in (0, 8, 16, 24)][:NQKL]
            reg_wo = [4, 5, 10, 11][:NQKL]
            swaps = list(zip(lds_qk, reg_wo))
        else:
            lds_qk = []
            reg_wo = list(range(18))
            swaps = [((2, k // 2, k % 2), k) for k in range(18)]
        return own1, own2, h1ord, h2ord, seqA, seqQ, seqK, lds_qk, reg_wo, swaps

    def gen_wave(w):
        own1, own2, h1ord, h2ord, seqA, seqQ, seqK, lds_qk, reg_wo, swaps = plan(w)
        p.label("REC_W%d" % w)
        if WARM:
            p("v_lshlrev_b32 v70, 3, %s" % v(L16))
            p("s_mul_i32 s56, %s, 9216" % s(S_H))
            p("s_add_u32 s56, s56, 0x%x" % (OFF_PB2 + (w & 1) * PB_STR + (w >> 1) * 1024))
            p("buffer_load_dword v64, v70, %s, s56 offen sc1" % s(SWS, 4))
            if w == 0:
                p("s_lshl_b32 s56, %s, 11" % s(S_H))
                p("s_add_u32 s56, s56, 0x%x" % OFF_MB)
                p("s_mov_b64 exec, 0xffff")
                p("buffer_load_dword v65, v70, %s, s56 offen sc1" % s(SWS, 4))
                p("s_mov_b64 exec, -1")
            p("s_getpc_b64 s[56:57]")
            p.label("REC_PC%d" % w)
            p("s_add_u32 s56, s56, W%d%s_PRE-REC_PC%d" % (w, MODES[0], w))
            p("s_addc_u32 s57, s57, 0")
            p("global_load_dword v66, v70, s[56:57]")
        for base in range(0, len(swaps), 4):
            grp = swaps[base:base + 4]
            for i, (tile, t) in enumerate(grp):
                b, off = lref(slot_addr(t, w))
                p("ds_read_b128 %s, %s offset:%d" % (v(8 * i, 4), b, off))
                p("ds_read_b128 %s, %s offset:%d" % (v(8 * i + 4, 4), b, off + 1024))
            p("s_waitcnt lgkmcnt(0)")
            for i, (tile, t) in enumerate(grp):
                b, off = lref(slot_addr(t, w))
                p("ds_write_b128 %s, %s offset:%d" % (b, wt_reg(*tile, 0, 4), off))
                p("ds_write_b128 %s, %s offset:%d" % (b, wt_reg(*tile, 4, 4), off + 1024))
            p("s_waitcnt lgkmcnt(0)")
            for i, (tile, t) in enumerate(grp):
                for r in range(8):
                    d = wt_reg(*tile, r, 1)
                    p("%s %s, %s" % ("v_accvgpr_write_b32" if d[0] == "a" else "v_mov_b32", d, v(8 * i + r)))
        if w == PFW:
            kv_wait(S_STEP)
            if WARM:
                p("s_add_u32 s56, %s, 0x%x" % (s(S_KX0), OFF_VX - OFF_KX))
                p("buffer_load_dword v67, v70, %s, %s offen sc1" % (s(SWS, 4), s(S_KX0)))
                p("buffer_load_dword v68, v70, %s, s56 offen sc1" % s(SWS, 4))
        if WARM:
            p("s_waitcnt vmcnt(0)")
        p("s_barrier")
        if TS:
            p("s_memrealtime s[98:99]")
            p("s_lshl_b32 s97, s96, 8")
            p("s_add_u32 s97, s97, 0x%x" % (OFF_STAMP + 0x200000 + 8))
            p("s_waitcnt lgkmcnt(0)")
            p("v_mov_b32 %s, s98" % v(T0))
            p("s_mov_b64 exec, 1")
            p("buffer_store_dword %s, %s, %s, s97 offen" % (v(T0), v(L16), s(SWS, 4)))
            p("s_mov_b64 exec, -1")
        if census:
            top = p.newlabel("CEN")
            fast = p.newlabel("CENF")
            p("s_mov_b32 s58, 0x%x" % (OFF_FLAG + F_ROLE))
            p.label(top)
            p("s_mov_b64 exec, 1")
            p("buffer_load_dword %s, %s, %s, s58 offen offset:1024 sc1" % (v(T0), v(L16), s(SWS, 4)))
            p("s_waitcnt vmcnt(0)")
            p("buffer_load_dword %s, %s, %s, s58 offen sc1" % (v(QF), v(L16), s(SWS, 4)))
            p("s_mov_b64 exec, -1")
            p("s_waitcnt vmcnt(0)")
            p("v_readfirstlane_b32 s56, %s" % v(T0))
            p("v_readfirstlane_b32 s57, %s" % v(QF))
            p("s_min_u32 s57, s57, %d" % census)
            p("s_cmp_ge_u32 s57, 32")
            p("s_cbranch_scc1 %s" % fast)
            budget()
            p("s_cmp_lt_u32 s56, 256")
            p("s_cbranch_scc1 %s" % top)
            p("s_branch W%dsc1_PRE" % w)
            p.label(fast)
        for ST in MODES:
            gen_loop(w, ST, "W%d%s_" % (w, ST))

    def gen_loop(w, ST, W):
        own1, own2, h1ord, h2ord, seqA, seqQ, seqK, lds_qk, reg_wo, swaps = plan(w)
        wo_reg = {t: tile for tile, t in swaps}
        qk_addr = {tile: slot_addr(t, w) for tile, t in swaps}
        nt = 16 if w < 2 else 20
        lg = LG()

        def rdtile(dst, addr, tag):
            b, off = lref(addr)
            lg.op("ds_read_b128 %s, %s offset:%d" % (v(dst, 4), b, off), tag)
            lg.op("ds_read_b128 %s, %s offset:%d" % (v(dst + 4, 4), b, off + 1024), tag)

        def fetch(own, masked=False):
            for i, j in enumerate(own):
                if masked:
                    p("s_mov_b64 exec, %s" % s(MSK[i], 2))
                so, off = (S_MB, j * 1024) if j < 4 else ((S_T1, (j - 4) * 1024) if j < 8 else (S_T2, 0))
                p("buffer_load_dwordx4 %s, %s, %s, %s offen offset:%d sc1" % (v(MA + 4 * j, 4), v(L16), s(SWS, 4), s(so), off))
            if masked:
                p("s_mov_b64 exec, -1")

        pend = []

        def issue_qk(tile):
            m, j, tt = tile
            lg.wait(("m", j), ("s", tile))
            p(smf((AQ, AK)[m] + 4 * tt, MA + 4 * j, v(STG0, 8) if tile in lds_qk else wt(*tile)))
            if pend:
                t2 = pend.pop()
                rdtile(STG0, qk_addr[t2], ("s", t2))
            if tile in lds_qk:
                i = lds_qk.index(tile)
                if i + 1 < len(lds_qk):
                    pend.append(lds_qk[i + 1])

        vt = {0: [0, 1, 6], 1: [2, 3, 7], 2: [4, 5], 3: []}[w]
        KX = [[52, 56, 60, 64], [68, 0, 4, 8]]

        def ldkx(kt, ks):
            p("buffer_load_dwordx4 %s, %s, %s, %s offen offset:%d sc1" % (v(KX[kt][ks], 4), v(L16), s(SWS, 4), s((S_KX0, S_KX1)[kt]), ks * 1024))

        def ldvx(i):
            et = vt[i]
            so, off = (S_VX, et * 1024) if et < 4 else (S_T0, (et - 4) * 1024)
            p("buffer_load_dwordx4 %s, %s, %s, %s offen offset:%d sc1" % (v(VXF + 4 * i, 4), v(L16), s(SWS, 4), s(so), off))

        def wrmem(j):
            lg.op("ds_write_b128 %s, %s offset:%d" % (v(L16), v(MA + 4 * j, 4), L_MEM + j * 1024), "wm")

        def rdmem(j):
            lg.op("ds_read_b128 %s, %s offset:%d" % (v(MA + 4 * j, 4), v(L16), L_MEM + j * 1024), ("m", j))

        def prefetch():
            p("s_add_u32 %s, %s, 1" % (s(S_T0), s(S_STEP)))
            kv_wait(S_T0)
            p("v_lshlrev_b32 %s, 3, %s" % (v(T0), v(L16)))
            p("s_mov_b32 m0, %d" % L_SX)
            p("s_add_u32 %s, %s, 0x%x" % (s(S_T0), s(S_M0), OFF_VX - OFF_KX))
            p("buffer_load_dword %s, %s, %s offen lds" % (v(T0), s(SWS, 4), s(S_M0)))
            p("buffer_load_dword %s, %s, %s offen lds" % (v(T0), s(SWS, 4), s(S_T0)))
            p("s_add_u32 %s, %s, %d" % (s(S_M0), s(S_M0), KVS))

        p.label(W + "PRE")
        bases()
        p("s_add_u32 %s, %s, 4096" % (s(S_T0), s(S_VX)))
        p("s_add_u32 %s, %s, 4096" % (s(S_T1), s(S_MB)))
        p("s_add_u32 %s, %s, 8192" % (s(S_T2), s(S_MB)))
        stamp(0)
        def prework():
            if w < 3:
                rdtile(STG0, qk_addr[lds_qk[0]], ("s", lds_qk[0]))
            for r in range(16):
                p("v_mov_b32 %s, 0" % v(AQ + r))
        if not (own1 and SETMID):
            prework()
        tm = MA + 4 * h2ord[-1]
        A = list(seqA)
        if B3:
            p("s_barrier")
        no = len(own1)
        if AW and w < 3:
            p("s_waitcnt vmcnt(0)")
        for d in range(DEP):
            fetch(own1)
            if d == 0 and SETMID:
                prework()
        p.label(W + "CHK1")
        p("s_waitcnt vmcnt(%d)" % (no * (DEP - 1)))
        masks([MA + 4 * j for j in own1], [tm, tm + 1, tm + 2])
        p("s_cbranch_scc1 %sRETRY1" % W)
        stamp(1)
        for j in own1:
            wrmem(j)
        if w == 3:
            for ks in range(4):
                ldkx(0, ks)
            ldkx(1, 0)
        for _ in range(4):
            issue_qk(A.pop(0))
        lg.wait("wm")
        p("s_barrier")
        stamp(2)
        for j in h2ord:
            rdmem(j)
        stamp(3)
        while A:
            issue_qk(A.pop(0))
        stamp(4)
        for i, tile in enumerate(seqQ):
            issue_qk(tile)
            if w == 3 and i < 3:
                ldkx(1, i + 1)
            if w < 3 and 2 <= i < 2 + len(vt):
                ldvx(i - 2)
        if w < 3:
            p("s_add_u32 %s, %s, %d" % (s(S_VX), s(S_VX), KVS))
        if w == 3:
            for r in (S_KX0, S_KX1):
                p("s_add_u32 %s, %s, %d" % (s(r), s(r), KVS))
        stamp(5)
        Kq = [(lambda t=t: issue_qk(t)) for t in seqK]
        bg(Kq, 2)
        cq = combine(AQ)
        for i, x in enumerate(cq):
            p(x)
            if i % 3 == 2:
                bg(Kq)
        lg.op("ds_write_b64 %s, %s offset:%d" % (v(QWA), v(AQ, 2), L_Q + 512 * w), "wq")
        if w < 2:
            rdtile(STG0, slot_addr(w, 3), ("v", 0))
        STG = [8, 16, 24, STG0, VXF]
        NST = len(STG)
        OA = AQ
        ACC = [0, 4, 32, QF, 0] if w < 3 else [0, 4, 32, QF, 24]
        lt = [t for t in range(nt) if t not in reg_wo]

        if w < 3:
            Z = zero(AQ + 2, 6)
            for i in range(3):
                bg(Kq)
                bg(Z, 1)
            lg.wait("wq")
            p("s_barrier")
            bg(Kq)
            p(zero(AQ, 2)[0])
            bg(Kq, 99)
            stamp(6)
            AVs = [AQ, AQ + 4, AK + 4]
            nv = len(vt)

            def vr(j, tt):
                p(smf(AVs[tt], MA + 4 * j, wt(2, j, tt)))

            vr(0, 0)
            vr(0, 1)
            for x in combine(AK):
                p(x)
            lg.op("ds_write_b64 %s, %s offset:%d" % (v(QWA), v(AK, 2), L_K + 512 * w), "wk")
            if nv == 3:
                for x in zero(AVs[2], 4):
                    p(x)
                slots = {0: STG0, 1: STG0, 2: STG0, 3: 0, 4: STG0, 5: 0, 6: 8, 7: STG0, 8: 0}

                def vl(j):
                    lg.wait(("v", j))
                    p(smf(AVs[2], MA + 4 * j, v(slots[j], 8)))

                def req(j):
                    rdtile(slots[j], slot_addr(2 * j + w, 3), ("v", j))
                vr(1, 0); vl(0); vr(1, 1)
                lg.wait("wk")
                p("s_barrier")
                stamp(7)
                req(1); vr(2, 0)
                vr(2, 1); vr(3, 0); vl(1); vr(3, 1); req(2); req(3); vr(4, 0); vr(4, 1); vr(5, 0)
                vl(2); vl(3); vr(5, 1); req(4); req(5); req(6); vr(6, 0); vr(6, 1); vr(7, 0)
                vl(4); vl(5); req(7); vl(6); req(8); vr(7, 1); vr(8, 0); vr(8, 1)
                vl(7); vl(8)
            else:
                vr(1, 0); vr(1, 1); vr(2, 0)
                lg.wait("wk")
                p("s_barrier")
                stamp(7)
                if PFW == 2:
                    prefetch()
                p("v_add_u32 %s, %s, %s" % (v(T0), s(S_H288), v(L16)))
                lg.op("ds_read_b128 %s, %s offset:%d" % (v(STG0, 4), v(T0), L_MEM), "hx")
                vr(2, 1)
                for j in range(3, 9):
                    vr(j, 0)
                    vr(j, 1)
                    if j == 4:
                        lg.wait("hx")
                        p("s_mov_b64 exec, 0x3ffff")
                        p("buffer_store_dwordx4 %s, %s, %s, %s offen sc1" % (v(STG0, 4), v(T0), s(SWS, 4), s(S_HIST)))
                        p("s_mov_b64 exec, -1")
                        p("s_add_u32 %s, %s, 9216" % (s(S_HIST), s(S_HIST)))
            for i in range(2):
                rdtile(STG[i], slot_addr(lt[i], w), ("w", lt[i]))
            for i in range(nv):
                p("v_cvt_pk_bf16_f32 %s, %s, %s" % (v(AVs[i]), v(AVs[i]), v(AVs[i] + 1)))
                p("v_cvt_pk_bf16_f32 %s, %s, %s" % (v(AVs[i] + 1), v(AVs[i] + 2), v(AVs[i] + 3)))
            rdtile(STG[2], slot_addr(lt[2], w), ("w", lt[2]))
            rdtile(STG[3], slot_addr(lt[3], w), ("w", lt[3]))

            def vexport():
                if NOEXP:
                    return
                p("v_lshrrev_b32 %s, 1, %s" % (v(T0), v(L16)))
                for i, et in enumerate(vt):
                    p("buffer_store_dwordx2 %s, %s, %s, %s offen offset:%d %s" % (v(AVs[i], 2), v(T0), s(SWS, 4), s(S_VM), et * 512, EXP))
                p("s_add_u32 %s, %s, %d" % (s(S_VM), s(S_VM), EXS))
            p("v_lshrrev_b32 %s, 1, %s" % (v(T0), v(SXR)))
            p("s_waitcnt vmcnt(%d)" % (3 if w == 2 else 0))
            stamp(8)
            p("s_barrier")
            stamp(9)
            PX, PM = AK, AQ + 2
            lg.op("ds_read_b128 %s, %s offset:%d" % (v(PX, 4), v(SXR), L_PX), "px")
            lg.op("ds_read_b64 %s, %s offset:%d" % (v(PM, 2), v(T0), L_PM), "pm")
            OX = [0, 4, 32]
            lg.wait("px")
            for i in range(nv):
                p("v_mfma_f32_16x16x32_bf16 %s, %s, %s, 0" % (v(OX[i], 4), v(VXF + 4 * i, 4), v(PX, 4)))
            lg.wait("pm")
            for i in range(nv):
                p("v_mfma_f32_16x16x16_bf16 %s, %s, %s, %s" % (v(OX[i], 4), v(AVs[i], 2), v(PM, 2), v(OX[i], 4)))
            p("v_cvt_pk_bf16_f32 %s, %s, %s" % (v(0), v(0), v(1)))
            p("v_cvt_pk_bf16_f32 %s, %s, %s" % (v(1), v(2), v(3)))
            p("v_cvt_pk_bf16_f32 %s, %s, %s" % (v(2), v(4), v(5)))
            p("v_cvt_pk_bf16_f32 %s, %s, %s" % (v(3), v(6), v(7)))
            lg.op("ds_write_b128 %s, %s offset:%d" % (v(SXR), v(0, 4), L_O + 512 * w), "wo")
            if nv == 3:
                p("v_cvt_pk_bf16_f32 %s, %s, %s" % (v(32), v(32), v(33)))
                p("v_cvt_pk_bf16_f32 %s, %s, %s" % (v(33), v(34), v(35)))
                lg.op("ds_write_b64 %s, %s offset:%d" % (v(SXR), v(32, 2), L_O + 512 * 3 + 8 * w), "wo")
            stamp(10)
            for x in zero(ACC[1], 4) + zero(ACC[3], 4):
                p(x)
            npre = 4
        else:
            bg(Kq, 3)
            lg.wait("wq")
            p("s_barrier")
            QFR = [MA + 4 * j for j in h2ord[:4]]
            bg(Kq, 1)
            for ks in range(4):
                if ks == 3:
                    bg(Kq, 1)
                for b in range(2):
                    lg.op("ds_read_b64_tr_b16 %s, %s offset:%d" % (v(QFR[ks] + 2 * b, 2), v(TRA), L_Q + (32 * ks + 16 * b) * 16), ("q", ks))
            bg(Kq, 99)
            stamp(6)
            KFR = [52, 56, 60, 64]
            SX = AQ
            SM = AK
            MX, LX, FX, TM = AK + 4, AK + 5, AK + 6, AK + 7
            XS = []
            for ks in range(4):
                for kt in range(2):
                    def xs(ks=ks, kt=kt):
                        lg.wait(("q", ks))
                        p("v_mfma_f32_16x16x32_bf16 %s, %s, %s, %s" % (v(SX + 4 * kt, 4), v(KX[kt][ks], 4), v(QFR[ks], 4), "0" if ks == 0 else v(SX + 4 * kt, 4)))
                    XS.append(xs)
            p("s_waitcnt vmcnt(0)")
            bg(XS, 2)
            CK = combine(AK)
            for i, x in enumerate(CK):
                p(x)
                if i in (3, 7):
                    bg(XS)
            lg.op("ds_write_b64 %s, %s offset:%d" % (v(QWA), v(AK, 2), L_K + 512 * w), "wk")
            bg(XS, 99)
            X = []
            X.append("v_bfe_u32 %s, %s, 7, 1" % (v(T1), v(L16)))
            X.append("v_lshl_add_u32 %s, %s, 3, %s" % (v(T1), v(T1), v(SXR)))
            X.append("v_lshrrev_b32 %s, 1, %s" % (v(T2), v(SXR)))
            for r in range(4):
                X.append("v_cndmask_b32 %s, %s, %s, %s" % (v(SX + r), v(SX + r), v(SX + 4 + r), s(S_PART, 2)))
            X.append("v_max3_f32 %s, %s, %s, %s" % (v(MX), v(SX), v(SX + 1), v(SX + 2)))
            X.append("v_max_f32 %s, %s, %s" % (v(MX), v(MX), v(SX + 3)))
            X.append("v_max_f32_dpp %s, %s, %s row_ror:8 row_mask:0xf bank_mask:0xf" % (v(MX), v(MX), v(MX)))
            X.append("v_mov_b32 %s, %s" % (v(T0), v(MX)))
            X.append("v_permlane32_swap_b32 %s, %s" % (v(MX), v(T0)))
            X.append("v_max_f32 %s, %s, %s" % (v(MX), v(MX), v(T0)))
            lg.wait("wk")
            p("s_barrier")
            stamp(7)
            for ks in range(4):
                for b in range(2):
                    lg.op("ds_read_b64_tr_b16 %s, %s offset:%d" % (v(KFR[ks] + 2 * b, 2), v(TRA), L_K + (32 * ks + 16 * b) * 16), ("k", ks))
            bg(X, 7)
            for ks in range(4):
                lg.wait(("k", ks))
                p("v_mfma_f32_16x16x32_bf16 %s, %s, %s, %s" % (v(SM, 4), v(KFR[ks], 4), v(QFR[ks], 4), "0" if ks == 0 else v(SM, 4)))
                bg(X, 2)
            bg(X, 99)
            p("v_max3_f32 %s, %s, %s, %s" % (v(TM), v(SM), v(SM + 1), v(SM + 2)))
            p("v_max3_f32 %s, %s, %s, %s" % (v(TM), v(TM), v(SM + 3), v(MX)))
            p("v_mov_b32 %s, %s" % (v(MX), v(TM)))
            p("v_permlane16_swap_b32 %s, %s" % (v(TM), v(MX)))
            p("v_max_f32 %s, %s, %s" % (v(TM), v(TM), v(MX)))
            p("v_mul_f32 %s, %s, %s" % (v(FX), s(S_NC), v(TM)))
            p("v_mul_f32 %s, %s, %s" % (v(TM), s(S_NC), v(TM)))
            for b in (SM, SM + 2, SX, SX + 2):
                p("v_pk_fma_f32 %s, %s, %s, %s" % (v(b, 2), v(b, 2), s(S_C2, 2), v(FX, 2)))
            for b in (SM, SX):
                for r in range(4):
                    p("v_exp_f32 %s, %s" % (v(b + r), v(b + r)))
            p("v_pk_add_f32 %s, %s, %s" % (v(MX, 2), v(SM, 2), v(SM + 2, 2)))
            p("v_pk_add_f32 %s, %s, %s" % (v(FX, 2), v(SX, 2), v(SX + 2, 2)))
            p("v_pk_fma_f32 %s, %s, %s, %s" % (v(MX, 2), v(MX, 2), s(S_Q2, 2), v(FX, 2)))
            p("v_add_f32 %s, %s, %s" % (v(LX), v(MX), v(LX)))
            p("v_add_f32_dpp %s, %s, %s row_ror:8 row_mask:0xf bank_mask:0xf" % (v(LX), v(LX), v(LX)))
            p("v_mov_b32 %s, %s" % (v(T0), v(LX)))
            p("v_permlane16_swap_b32 %s, %s" % (v(LX), v(T0)))
            p("v_add_f32 %s, %s, %s" % (v(LX), v(LX), v(T0)))
            p("v_mov_b32 %s, %s" % (v(T0), v(LX)))
            p("v_permlane32_swap_b32 %s, %s" % (v(LX), v(T0)))
            p("v_add_f32 %s, %s, %s" % (v(LX), v(LX), v(T0)))
            p("v_rcp_f32 %s, %s" % (v(MX), v(LX)))
            p("v_rcp_f32 %s, %s" % (v(LX), v(LX)))
            for b in (SM, SM + 2, SX, SX + 2):
                p("v_pk_mul_f32 %s, %s, %s" % (v(b, 2), v(b, 2), v(MX, 2)))
            p("v_cvt_pk_bf16_f32 %s, %s, %s" % (v(SM), v(SM), v(SM + 1)))
            p("v_cvt_pk_bf16_f32 %s, %s, %s" % (v(SM + 1), v(SM + 2), v(SM + 3)))
            lg.op("ds_write_b64 %s, %s offset:%d" % (v(T2), v(SM, 2), L_PM), "wp")
            p("v_cvt_pk_bf16_f32 %s, %s, %s" % (v(SX), v(SX), v(SX + 1)))
            p("v_cvt_pk_bf16_f32 %s, %s, %s" % (v(SX + 1), v(SX + 2), v(SX + 3)))
            lg.op("ds_write_b64 %s, %s offset:%d" % (v(T1), v(SX, 2), L_PX), "wp")
            lg.all()
            stamp(8)
            p("s_barrier")
            stamp(9)
            if PFW == 3:
                prefetch()
            bases()
            for i in range(len(lt)):
                rdtile(STG[i], slot_addr(lt[i], w), ("w", lt[i]))
            stamp(10)
            for t in range(5):
                for x in zero(ACC[t], 4):
                    p(x)
            npre = len(lt)
        p("s_mul_i32 %s, %s, 9216" % (s(S_PB), s(S_H)))
        p("s_add_u32 %s, %s, %s" % (s(S_PB), s(S_PB), s(S_PAR)))
        p("s_add_u32 %s, %s, 4096" % (s(S_T0), s(S_PB)))
        p("s_add_u32 %s, %s, 7168" % (s(S_T1), s(S_PB)))
        lg.wait("wo")
        stamp(11)
        p("s_barrier")
        stamp(12)
        for ks in range(4):
            lg.op("ds_read_b128 %s, %s offset:%d" % (v(OA + 4 * ks, 4), v(SXR), L_O + 512 * ks), ("o", ks))
        slot_of = {t: i for i, t in enumerate(lt[:npre])}
        if w < 3:
            rdtile(STG[4], slot_addr(lt[4], w), ("w", lt[4]))
            slot_of[lt[4]] = 4
            npre = 5
            for x in zero(ACC[0], 4) + zero(ACC[2], 4):
                p(x)
        nxt = npre
        freed = []

        def post(tau):
            A0 = ACC[tau]
            so, off = [(S_PB, 0), (S_PB, 2048), (S_T0, 0), (S_T0, 2048), (S_T1, 0)][tau]
            L = []
            L.append("v_cvt_pk_bf16_f32 %s, %s, %s" % (v(A0), v(A0), v(A0 + 1)))
            L.append("v_cvt_pk_bf16_f32 %s, %s, %s" % (v(A0 + 1), v(A0 + 2), v(A0 + 3)))
            L.append("v_and_or_b32 %s, %s, -2, %s" % (v(A0), v(A0), s(S_PH)))
            L.append("buffer_store_dwordx2 %s, %s, %s, %s offen offset:%d %s" % (v(A0, 2), v(QWA), s(SWS, 4), s(so), off + 512 * w, ST))
            if tau == 0 and w == 2:
                L += zero(A0, 4)
            return L

        PQ = []
        for t in range(nt):
            tau, ks = divmod(t, 4)
            lg.wait(("o", ks), ("w", t))
            if ks == 0 and tau == 4:
                bg(PQ, 99)
            if t in lt:
                p(smf(ACC[tau], OA + 4 * ks, v(STG[slot_of[t]], 8)))
            else:
                p(smf(ACC[tau], OA + 4 * ks, wt(*wo_reg[t])))
            if freed:
                sl = freed.pop()
                if nxt < len(lt):
                    rdtile(STG[sl], slot_addr(lt[nxt], w), ("w", lt[nxt]))
                    slot_of[lt[nxt]] = sl
                    nxt += 1
            if t in lt:
                freed.append(slot_of[t])
            if ks == 2 and tau >= 1:
                bg(PQ, 99)
                PQ = post(tau - 1)
            bg(PQ, 2)
        bg(PQ, 99)
        for x in post(nt // 4 - 1):
            p(x)
        assert not lg.log
        stamp(13)
        p("s_add_u32 %s, %s, 16384" % (s(S_T3), s(S_MB)))
        p("s_and_b32 %s, %s, 0x%x" % (s(S_T3), s(S_T3), OFF_MB | 0xffff))
        if w == TW:
            RD, SEL, RA, RP, RACC = 16, 32, 36, 37, 40
            p("v_lshrrev_b32 %s, 5, %s" % (v(T0), v(L16)))
            p("v_mul_u32_u24 %s, 9216, %s" % (v(T0), v(T0)))
            p("v_and_b32 %s, 16, %s" % (v(RP), v(L16)))
            p("v_add_u32 %s, %s, %s" % (v(RA), v(T0), v(RP)))
            p("s_lshl_b32 %s, %s, 5" % (s(S_T0), s(S_H)))
            p("s_add_u32 %s, %s, %s" % (s(S_RL), s(S_T0), s(S_PAR)))
            p("s_add_u32 %s, %s, 8192" % (s(S_RL), s(S_RL)))
            p("v_bfe_u32 %s, %s, 4, 4" % (v(T0), v(L16)))
            p("v_and_b32 %s, 1, %s" % (v(T1), v(T0)))
            p("v_lshlrev_b32 %s, 4, %s" % (v(T1), v(T1)))
            p("v_mov_b32 %s, 0x3f80" % v(T2))
            p("v_lshlrev_b32 %s, %s, %s" % (v(T1), v(T1), v(T2)))
            p("v_lshrrev_b32 %s, 1, %s" % (v(T0), v(T0)))
            for r in range(4):
                p("v_cmp_eq_u32 vcc, %d, %s" % (r, v(T0)))
                p("v_cndmask_b32 %s, 0, %s, vcc" % (v(SEL + r), v(T1)))
            p("s_lshr_b32 %s, %s, 2" % (s(S_T0), s(S_H)))
            p("s_lshl_b32 %s, %s, 7" % (s(S_T0), s(S_T0)))
            p("s_and_b32 %s, %s, 3" % (s(S_T1), s(S_H)))
            p("s_lshl_b32 %s, %s, 2" % (s(S_T1), s(S_T1)))
            p("s_add_u32 %s, %s, %s" % (s(S_T0), s(S_T0), s(S_T1)))
            p("s_add_u32 %s, %s, 8192" % (s(S_T0), s(S_T0)))
            p("s_add_u32 s58, %s, %s" % (s(S_T3), s(S_T0)))
            p("s_add_u32 %s, %s, %s" % (s(S_PMB), s(S_MB), s(S_T0)))
            p("s_add_u32 s59, %s, 0x%x" % (s(S_T0), OFF_HIST + nsteps * 9216))
            p("v_mov_b32 v8, 0x%x" % SENT)
            p("s_waitcnt vmcnt(0)")
            p.label(W + "TRED")
            p("buffer_load_dwordx4 %s, %s, %s, %s offen sc1" % (v(RD, 4), v(RA), s(SWS, 4), s(S_RL)))
            budget()
            p("s_waitcnt vmcnt(0)")
            p("v_mfma_f32_16x16x32_bf16 %s, %s, %s, 0" % (v(RACC, 4), v(RD, 4), v(SEL, 4)))
            p("v_bitop3_b32 v44, %s, %s, %s bitop3:0x7e" % (v(RD), v(RD + 2), s(S_PH)))
            p("v_and_b32 v44, 1, v44")
            p("v_cmp_ne_u32 vcc, 0, v44")
            p("s_cbranch_vccnz %sTRED" % W)
            stamp(14)
            p("v_pk_add_f32 %s, %s, %s" % (v(RACC, 2), v(RACC, 2), v(RACC + 2, 2)))
            for sw in ("16", "32"):
                p("v_mov_b64 %s, %s" % (v(RACC + 2, 2), v(RACC, 2)))
                p("v_permlane%s_swap_b32 %s, %s" % (sw, v(RACC), v(RACC + 2)))
                p("v_permlane%s_swap_b32 %s, %s" % (sw, v(RACC + 1), v(RACC + 3)))
                p("v_pk_add_f32 %s, %s, %s" % (v(RACC, 2), v(RACC, 2), v(RACC + 2, 2)))
            p("v_cvt_pk_bf16_f32 %s, %s, %s" % (v(RACC), v(RACC), v(RACC + 1)))
            p("s_mov_b64 exec, 0xff")
            p("buffer_store_dword %s, %s, %s, s58 offen %s" % (v(RACC), v(L16), s(SWS, 4), ST))
            p("buffer_store_dword v8, %s, %s, %s offen %s" % (v(L16), s(SWS, 4), s(S_PMB), ST))
            lh = p.newlabel("NOH")
            p("s_cmp_lt_u32 %s, %d" % (s(S_STEP), nsteps - 1))
            p("s_cbranch_scc1 %s" % lh)
            p("buffer_store_dword %s, %s, %s, s59 offen sc1" % (v(RACC), v(L16), s(SWS, 4)))
            p.label(lh)
            p("s_mov_b64 exec, -1")
        if w < 2:
            labn = W + "NORED"
            RD = 16
            SEL = 32
            RA = 36
            RP = 37
            RACC = 40
            p("v_lshrrev_b32 %s, 7, %s" % (v(T0), v(L16)))
            p("v_mul_u32_u24 %s, 9216, %s" % (v(T0), v(T0)))
            p("v_and_b32 %s, 0x70, %s" % (v(RP), v(L16)))
            p("v_add_u32 %s, %s, %s" % (v(RA), v(T0), v(RP)))
            p("s_add_u32 %s, %s, %s" % (s(S_RL), s(S_PUB), s(S_PAR)))
            p("s_add_u32 %s, %s, %d" % (s(S_T0), s(S_RL), 73728))
            p("s_add_u32 %s, %s, %d" % (s(S_T1), s(S_RL), 2 * 73728))
            p("s_add_u32 %s, %s, %d" % (s(S_T2), s(S_RL), 3 * 73728))
            soffs = [S_RL, S_T0, S_T1, S_T2]

            def rload(masked=False):
                for ld in range(4):
                    if masked:
                        p("s_mov_b64 exec, %s" % s(MSK[ld], 2))
                    p("buffer_load_dwordx4 %s, %s, %s, %s offen sc1" % (v(RD + 4 * ld, 4), v(RA), s(SWS, 4), s(soffs[ld])))
                if masked:
                    p("s_mov_b64 exec, -1")

            SET = []
            SET.append("v_bfe_u32 %s, %s, 4, 4" % (v(T0), v(L16)))
            SET.append("v_and_b32 %s, 1, %s" % (v(T1), v(T0)))
            SET.append("v_lshlrev_b32 %s, 4, %s" % (v(T1), v(T1)))
            SET.append("v_mov_b32 %s, 0x3f80" % v(T2))
            SET.append("v_lshlrev_b32 %s, %s, %s" % (v(T1), v(T1), v(T2)))
            SET.append("v_lshrrev_b32 %s, 1, %s" % (v(T0), v(T0)))
            for r in range(4):
                SET.append("v_cmp_eq_u32 vcc, %d, %s" % (r, v(T0)))
                SET.append("v_cndmask_b32 %s, 0, %s, vcc" % (v(SEL + r), v(T1)))
            SET.append("v_bfe_u32 %s, %s, 8, 1" % (v(T2), v(L16)))
            SET.append("v_lshl_add_u32 %s, %s, 3, %s" % (v(RP), v(T2), v(RP)))
            SET.append("v_bfe_u32 %s, %s, 9, 1" % (v(T2), v(L16)))
            SET.append("v_lshl_add_u32 %s, %s, 2, %s" % (v(RP), v(T2), v(RP)))
            SET.append("s_add_u32 s58, %s, %s" % (s(S_T3), s(S_PUB)))
            SET.append("s_add_u32 %s, %s, %s" % (s(S_PMB), s(S_MB), s(S_PUB)))
            SET.append("v_mov_b32 v8, 0x%x" % SENT)

            def unit(tag, d0, d1, first):
                if first and w > 0 and not SETMID:
                    bg(SET, 99)
                for _ in range(d0):
                    p("s_nop 15")
                if VW[w] >= 0:
                    p("s_waitcnt vmcnt(%d)" % VW[w])
                rload()
                bg(SET, 99)
                for d in range(1, RDEP):
                    for _ in range(d1):
                        p("s_nop 7")
                    rload()
                p("s_branch %sRED1%s" % (W, tag))
                p.label(W + "RED" + tag)
                for ld in range(4):
                    p("v_and_b32 %s, 1, %s" % (v(44 + ld), v(44 + ld)))
                    p("v_cmp_ne_u32 %s, 0, %s" % (s(MSK[ld], 2), v(44 + ld)))
                rload(True)
                budget()
                p.label(W + "RED1" + tag)
                p("s_waitcnt vmcnt(%d)" % (4 * (RDEP - 1)))
                for ld in range(4):
                    b = RD + 4 * ld
                    p("v_bitop3_b32 %s, %s, %s, %s bitop3:0x7e" % (v(44 + ld), v(b), v(b + 2), s(S_PH)))
                p("v_or3_b32 v48, v44, v45, v46")
                p("v_or_b32 v48, v48, v47")
                p("v_and_b32 v48, 1, v48")
                p("v_cmp_ne_u32 vcc, 0, v48")
                for ld in range(4):
                    b = RD + 4 * ld
                    p("v_mfma_f32_16x16x32_bf16 %s, %s, %s, %s" % (v(RACC, 4), v(b, 4), v(SEL, 4), "0" if ld == 0 else v(RACC, 4)))
                    if ld == 0:
                        p("s_cbranch_vccnz %sRED%s" % (W, tag))
                if first:
                    stamp(14)
                p("v_permlane32_swap_b32 %s, %s" % (v(RACC), v(RACC + 2)))
                p("v_permlane32_swap_b32 %s, %s" % (v(RACC + 1), v(RACC + 3)))
                p("v_pk_add_f32 %s, %s, %s" % (v(RACC, 2), v(RACC, 2), v(RACC + 2, 2)))
                p("v_cvt_pk_bf16_f32 %s, %s, %s" % (v(RACC), v(RACC), v(RACC + 1)))
                p("s_mov_b64 exec, %s" % s(S_PUBM, 2))
                p("buffer_store_dword %s, %s, %s, s58 offen %s" % (v(RACC), v(RP), s(SWS, 4), ST))
                p("buffer_store_dword v8, %s, %s, %s offen %s" % (v(RP), s(SWS, 4), s(S_PMB), ST))
                lh = p.newlabel("NOH")
                p("s_cmp_lt_u32 %s, %d" % (s(S_STEP), nsteps - 1))
                p("s_cbranch_scc1 %s" % lh)
                p("s_add_u32 s59, %s, 0x%x" % (s(S_PUB), OFF_HIST + nsteps * 9216))
                p("buffer_store_dword %s, %s, %s, s59 offen sc1" % (v(RACC), v(RP), s(SWS, 4)))
                p.label(lh)
                p("s_mov_b64 exec, -1")

            unit("A", RD0[w], RD1[w], True)
            p.label(labn)
        stamp(15)
        p("s_mov_b32 %s, %s" % (s(S_MB), s(S_T3)))
        p("s_xor_b32 %s, %s, 0x%x" % (s(S_PAR), s(S_PAR), PB_STR))
        p("s_and_b32 %s, %s, 1" % (s(S_T0), s(S_STEP)))
        p("s_xor_b32 %s, %s, %s" % (s(S_PH), s(S_PH), s(S_T0)))
        p("s_add_u32 %s, %s, 1" % (s(S_STEP), s(S_STEP)))
        if stamps and w == 3 or stamps == 2:
            flush_stamps()
        if stamps:
            p("s_add_u32 %s, %s, 128" % (s(S_STO), s(S_STO)))
        p("s_cmp_lt_u32 %s, %d" % (s(S_STEP), nsteps))
        p("s_cbranch_scc1 %sPRE" % W)
        p("s_branch REC_DONE")
        if own1:
            p.label(W + "RETRY1")
            fetch(own1, True)
            budget()
            p("s_branch %sCHK1" % W)


    for w in range(4):
        gen_wave(w)
```

```python
import math
import struct
from asmlib import *
from layout import *

L_MEM = 0
L_Q = 9216
L_O = L_Q
L_K = 11264
L_PX = L_K
L_PM = L_K + 512
L_RI = L_K + 1024
L_SX = 13312
L_WL = 16384
LDS_BYTES = 163840

MA = 0
AQ = 36
AK = 44
KXF = 52
QF = 60
VXF = 52
STG0 = 64
IDX = 72
L16 = 73
TRA = 74
QWA = 75
SXR = 76
T0, T1, T2 = 77, 78, 79

SWS = 4
SW = 8
S_H, S_W, S_STEP, S_BUD = 16, 17, 18, 19
S_MB, S_M0, S_KX0, S_KX1, S_VX, S_KM, S_VM, S_PB = 20, 21, 22, 23, 24, 25, 26, 27
S_U, S_RL, S_PUB = 28, 29, 30
S_T0 = 31
S_PUBM = 32
S_PART = 34
S_C = 36
S_W512 = 37
S_T1, S_T2, S_T3 = 38, 39, 40
S_STAMP = 42
S_STO = 44
S_SAFE = 45
S_PAR = 46
SENT = 0xFFBFFFBF
S_SENT = 47
S_HIST = 41
S_TF, S_KVF, S_KVC = 42, 43, 45
S_C2, S_Q2, S_NC = 92, 94, 91
S_PH, S_PMB, S_H288 = 90, 100, 101


def f2u(x):
    return struct.unpack("<I", struct.pack("<f", x))[0]


def wt_reg(mat, j, tt, r, n):
    i = (mat * 9 + j) * 2 + tt
    if i < 32:
        return a(8 * i + r, n)
    return v(80 + 8 * (i - 32) + r, n)


def wt(mat, j, tt):
    return wt_reg(mat, j, tt, 0, 8)


def slot_addr(t, w):
    if t < 16:
        return L_WL + t * 8192 + w * 2048
    return L_WL + 131072 + (t - 16) * 4096 + (w - 2) * 2048


def lref(addr):
    b, off = divmod(addr, 65536)
    if off > 65536 - 2048:
        raise ValueError("tile straddles base")
    return v([L16, T1, T2][b]), off


def smf(acc, A, B):
    return "v_smfmac_f32_16x16x64_bf16 %s, %s, %s, %s" % (v(acc, 4), v(A, 4), B, v(IDX))


def gen_rec(p, nsteps=63, stamps=False, st_flags="", EXP="sc1", NQKL=4, DEP=2, FD0=0, FD1=0, C1=6, RDEP=2,
            R0=0, R1=0, R2=0, Q0=0, Q1=0, Q2=0, hist=1, RT=0, flags=1, census=0, TS=0, KVS=0x40000, EXS=0x20000, PFW=2, NOEXP=0, B3=1, V0=1, V1=0, V2=0, F2E=1, TW=2, SETMID=1, WARM=0, AW=1, ONE=0):
    VW = [x if x < 9 else -1 for x in (V0, V1, V2)]
    RD0 = [R0, R1, R2]
    RD1 = [Q0, Q1, Q2]
    ST = st_flags

    NSTAMP = 15

    def stamp(k):
        if not stamps or k >= 15:
            return
        p("%s %s" % ("s_memrealtime" if RT else "s_memtime", s(60 + 2 * k, 2)))

    def flush_stamps():
        if not stamps:
            return
        p("s_waitcnt lgkmcnt(0)")
        for k in range(NSTAMP):
            p("v_writelane_b32 %s, %s, %d" % (v(T2), s(60 + 2 * k), k))
        p("v_lshrrev_b32 %s, 2, %s" % (v(T1), v(L16)))
        p("s_mov_b64 exec, 0xfffff")
        p("buffer_store_dword %s, %s, %s, %s offen" % (v(T2), v(T1), s(SWS, 4), s(S_STO)))
        p("s_mov_b64 exec, -1")

    p.c("---- recurrence setup")
    p("s_load_dwordx2 %s, s[0:1], %d" % (s(SWS, 2), D_WS * 8))
    p("s_load_dwordx2 s[48:49], s[0:1], %d" % (A_WQ * 8))
    p("s_load_dwordx2 s[50:51], s[0:1], %d" % (A_WK * 8))
    p("s_load_dwordx2 s[52:53], s[0:1], %d" % (A_WV * 8))
    p("s_load_dwordx2 s[54:55], s[0:1], %d" % (A_WO * 8))
    p("s_load_dwordx2 s[56:57], s[0:1], %d" % (A_MEM0 * 8))
    p("v_lshrrev_b32 v1, 6, v0")
    p("v_and_b32 v0, 63, v0")
    p("v_readfirstlane_b32 %s, v1" % s(S_W))
    p("s_mov_b32 %s, %d" % (s(SWS + 2), WS_BYTES))
    p("s_mov_b32 %s, 0x20000" % s(SWS + 3))
    p("s_mov_b32 %s, %d" % (s(SW + 2), DM * H * DH * 2))
    p("s_mov_b32 %s, 0x20000" % s(SW + 3))
    p("s_mov_b32 %s, 0x00ff00ff" % s(S_PUBM))
    p("s_mov_b32 %s, 0x00ff00ff" % s(S_PUBM + 1))
    p("s_mov_b32 %s, 0xff00ff00" % s(S_PART))
    p("s_mov_b32 %s, 0xff00ff00" % s(S_PART + 1))
    p("s_mov_b32 %s, 0x%x" % (s(S_C), f2u(DH ** -0.5 * math.log2(math.e))))
    p("s_mov_b32 %s, 1000000" % s(S_BUD))
    p("s_mov_b32 %s, %s" % (s(S_C2), s(S_C)))
    p("s_mov_b32 %s, %s" % (s(S_C2 + 1), s(S_C)))
    p("s_mov_b32 %s, 0x3e800000" % s(S_Q2))
    p("s_mov_b32 %s, 0x3e800000" % s(S_Q2 + 1))
    p("s_xor_b32 %s, %s, 0x80000000" % (s(S_NC), s(S_C)))
    p("s_mov_b32 %s, 0x%x" % (s(S_SENT), SENT))
    p("s_lshl_b32 %s, %s, 9" % (s(S_W512), s(S_W)))
    p("v_and_b32 v1, 15, v0")
    p("v_lshrrev_b32 v2, 4, v0")
    p("v_bfe_u32 v3, v0, 2, 2")
    p("v_and_b32 v4, 3, v0")
    p("v_lshlrev_b32 %s, 4, v0" % v(L16))
    p("v_mov_b32 %s, 0x4444" % v(IDX))
    p("v_mov_b32 v5, 0xeeee")
    p("v_cndmask_b32 %s, %s, v5, %s" % (v(IDX), v(IDX), s(S_PART, 2)))
    p("v_lshl_add_u32 v5, v2, 2, v3")
    p("v_lshlrev_b32 v5, 4, v5")
    p("v_and_b32 v6, 1, v4")
    p("v_lshl_add_u32 %s, v6, 3, v5" % v(TRA))
    p("v_lshrrev_b32 v5, 5, v0")
    p("v_lshl_add_u32 v5, v5, 4, v1")
    p("v_lshlrev_b32 v5, 4, v5")
    p("v_and_b32 v6, 1, v2")
    p("v_lshl_add_u32 %s, v6, 3, v5" % v(QWA))
    p("v_and_b32 v5, 7, v0")
    p("v_lshl_add_u32 v5, v2, 3, v5")
    p("v_lshlrev_b32 %s, 4, v5" % v(SXR))
    p("s_waitcnt lgkmcnt(0)")

    p("s_lshl_b32 %s, %s, 2" % (s(S_T0), s(S_H)))
    p("s_add_u32 %s, %s, %s" % (s(S_T0), s(S_T0), s(S_W)))
    p("s_lshl_b32 %s, %s, 13" % (s(S_T0), s(S_T0)))
    p("s_add_u32 %s, %s, 0x%x" % (s(S_STO), s(S_T0), OFF_STAMP))

    p("s_lshl_b32 %s, %s, 5" % (s(S_U), s(S_W)))
    p("s_add_u32 %s, %s, %s" % (s(S_U), s(S_U), s(S_H)))

    p("s_load_dwordx2 s[12:13], s[0:1], %d" % (D_DBG * 8))
    p("s_mov_b32 s14, 256")
    p("s_mov_b32 s15, 0x20000")
    p("s_waitcnt lgkmcnt(0)")

    p.c("---- weight load through LDS with transposing reads")
    p("v_and_b32 v5, 1, v2")
    p("s_lshl_b32 %s, %s, 1" % (s(S_T0), s(S_W)))
    p("v_or_b32 v5, %s, v5" % s(S_T0))
    p("v_lshlrev_b32 v5, 1, v5")
    p("v_xor_b32 v5, v5, v1")
    p("v_lshlrev_b32 v5, 4, v5")
    p("v_lshl_add_u32 v8, v2, 13, v5")
    p("s_lshl_b32 %s, %s, 15" % (s(S_T0), s(S_W)))
    p("s_lshl_b32 %s, %s, 8" % (s(S_T1), s(S_H)))
    p("s_add_u32 %s, %s, %s" % (s(S_T0), s(S_T0), s(S_T1)))
    p("v_add_u32 v8, %s, v8" % s(S_T0))
    p("v_and_b32 v5, 1, v2")
    p("s_and_b32 %s, %s, 1" % (s(S_T0), s(S_W)))
    p("s_lshl_b32 %s, %s, 1" % (s(S_T0), s(S_T0)))
    p("v_or_b32 v5, %s, v5" % s(S_T0))
    p("v_lshlrev_b32 v5, 2, v5")
    p("v_xor_b32 v5, v5, v1")
    p("v_lshlrev_b32 v5, 4, v5")
    p("v_mul_u32_u24 v6, 1152, v2")
    p("v_add_u32 v9, v5, v6")
    p("s_mul_i32 %s, %s, %d" % (s(S_T0), s(S_W), 16 * 1152))
    p("s_mul_i32 %s, %s, 147456" % (s(S_T1), s(S_H)))
    p("s_add_u32 %s, %s, %s" % (s(S_T0), s(S_T0), s(S_T1)))
    p("v_add_u32 v9, %s, v9" % s(S_T0))
    p("v_and_b32 v5, 7, v0")
    p("v_lshlrev_b32 v5, 4, v5")
    p("v_lshrrev_b32 v6, 3, v0")
    p("v_mul_u32_u24 v6, 1152, v6")
    p("s_mul_i32 %s, %s, %d" % (s(S_T0), s(S_W), 32 * 1152))
    p("s_add_u32 %s, %s, %s" % (s(S_T0), s(S_T0), s(S_T1)))
    p("s_add_u32 %s, %s, 1024" % (s(S_T0), s(S_T0)))
    p("v_add_u32 v6, %s, v6" % s(S_T0))
    p("v_add_u32 v60, v5, v6")
    p("v_xor_b32 v5, 64, v5")
    p("v_add_u32 v61, v5, v6")
    p("v_lshrrev_b32 v5, 1, v2")
    p("v_lshlrev_b32 v5, 4, v5")
    p("v_and_b32 v6, 1, v2")
    p("v_lshl_add_u32 v5, v6, 2, v5")
    p("v_and_b32 v7, 1, v3")
    p("v_add_u32 v5, v5, v7")
    p("v_lshrrev_b32 v10, 1, v3")
    p("v_lshl_add_u32 v5, v10, 3, v5")
    p("v_lshl_or_b32 v11, v6, 1, v7")
    p("v_lshl_or_b32 v11, v10, 2, v11")
    p("s_lshl_b32 %s, %s, 1" % (s(S_T0), s(S_W)))
    p("v_xor_b32 v12, %s, v11" % s(S_T0))
    p("v_lshlrev_b32 v12, 5, v12")
    p("v_lshl_add_u32 v12, v4, 3, v12")
    p("v_lshl_add_u32 v12, v5, 8, v12")
    p("v_add_u32 v12, %d, v12" % L_WL)
    p("v_xor_b32 v13, 32, v12")
    p("v_lshrrev_b32 v5, 1, v2")
    p("v_lshl_add_u32 v5, v5, 2, v7")
    p("v_lshl_add_u32 v5, v6, 4, v5")
    p("v_lshl_or_b32 v14, v6, 1, v7")
    p("v_lshl_or_b32 v14, v14, 1, v10")
    p("s_lshl_b32 %s, %s, 1" % (s(S_T0), s(S_W)))
    p("v_xor_b32 v14, %s, v14" % s(S_T0))
    p("v_lshlrev_b32 v14, 5, v14")
    p("v_lshl_add_u32 v14, v4, 3, v14")
    p("v_lshl_add_u32 v14, v5, 8, v14")
    p("v_add_u32 v14, %d, v14" % L_WL)
    p("v_lshl_or_b32 v62, v6, 1, v10")
    p("v_lshlrev_b32 v62, 5, v62")
    p("v_lshl_add_u32 v62, v4, 3, v62")
    p("v_lshl_add_u32 v62, v5, 7, v62")
    p("s_lshl_b32 %s, %s, 12" % (s(S_T0), s(S_W)))
    p("s_add_u32 %s, %s, %d" % (s(S_T0), s(S_T0), L_WL + 8 * 16384))
    p("v_add_u32 v62, %s, v62" % s(S_T0))
    p("v_xor_b32 v63, 64, v62")
    p("v_add_u32 v64, %s, %s" % (s(S_T0), v(L16)))
    p("s_lshl_b32 %s, %s, 12" % (s(S_T3), s(S_W)))
    p("s_lshl_b32 %s, %s, 11" % (s(S_T0), s(S_W)))
    p("v_add_u32 v15, %s, %s" % (s(S_T0), v(L16)))
    p("v_add_u32 v15, %d, v15" % L_WL)
    p("s_lshl_b32 %s, %s, 10" % (s(S_T2), s(S_W)))

    cur_mat = [None]

    def set_mat(mi):
        if cur_mat[0] != mi:
            p("s_mov_b32 %s, s%d" % (s(SW), 48 + 2 * mi))
            p("s_mov_b32 %s, s%d" % (s(SW + 1), 49 + 2 * mi))
            cur_mat[0] = mi

    def issue_group(G):
        slot = G % 9
        if G < 27:
            mi, j = divmod(G, 9)
            set_mat(mi)
            for qq in range(4):
                p("s_add_u32 m0, %s, %d" % (s(S_T2), L_WL + slot * 16384 + qq * 4096))
                p("s_mov_b32 %s, %d" % (s(S_T0), (64 * j + 16 * qq) * 8192))
                p("buffer_load_dwordx4 v8, %s, %s offen lds" % (s(SW, 4), s(S_T0)))
        else:
            set_mat(3)
            tau, kp = divmod(slot, 2)
            for qq in range(4):
                p("s_add_u32 m0, %s, %d" % (s(S_T3), L_WL + slot * 16384 + qq * 1024))
                if slot < 8:
                    p("s_mov_b32 %s, %d" % (s(S_T0), (64 * kp + 4 * qq) * 1152 + tau * 256))
                    p("buffer_load_dwordx4 v9, %s, %s offen lds" % (s(SW, 4), s(S_T0)))
                else:
                    p("s_mov_b32 %s, %d" % (s(S_T0), 8 * qq * 1152))
                    p("buffer_load_dwordx4 v%d, %s, %s offen lds" % (60 + (qq >> 1), s(SW, 4), s(S_T0)))

    NG = 36
    for G in range(9):
        issue_group(G)
    issued = 9
    for G in range(NG):
        slot = G % 9
        p("s_waitcnt vmcnt(%d) lgkmcnt(0)" % (4 * (issued - G - 1)))
        p("s_barrier")
        if G >= 1 and issued < NG:
            issue_group(issued)
            issued += 1
        if G >= 28:
            pb = 20 + 16 * ((G - 1) & 1)
            ps = (G - 1) % 9
            p("v_add_u32 v18, %d, v15" % (ps * 16384))
            for j2 in range(2):
                for hf in range(2):
                    p("ds_write_b128 v18, %s offset:%d" % (v(pb + 8 * j2 + 4 * hf, 4), j2 * 8192 + hf * 1024))
        if G < 27:
            mi, j = divmod(G, 9)
            p("v_add_u32 v16, %d, v12" % (slot * 16384))
            p("v_add_u32 v17, %d, v13" % (slot * 16384))
            for tt in range(2):
                for rd in range(4):
                    off = (rd & 1) * 512 + (rd >> 1) * 8192
                    p("ds_read_b64_tr_b16 %s, v%d offset:%d" % (wt_reg(mi, j, tt, 2 * rd, 2), 16 + tt, off))
        else:
            b = 20 + 16 * (G & 1)
            if slot < 8:
                p("v_add_u32 v16, %d, v14" % (slot * 16384))
                for j2 in range(2):
                    for rd in range(4):
                        off = j2 * 8192 + (rd & 1) * 512 + (rd >> 1) * 2048
                        p("ds_read_b64_tr_b16 %s, v16 offset:%d" % (v(b + 8 * j2 + 2 * rd, 2), off))
            else:
                for pp in range(2):
                    for rd in range(4):
                        off = (rd & 1) * 256 + (rd >> 1) * 1024
                        p("ds_read_b64_tr_b16 %s, v%d offset:%d" % (v(b + 8 * pp + 2 * rd, 2), 62 + pp, off))
    p("s_waitcnt lgkmcnt(0)")
    p("s_barrier")
    pb = 20 + 16 * ((NG - 1) & 1)
    for pp in range(2):
        for hf in range(2):
            p("ds_write_b128 v64, %s offset:%d" % (v(pb + 8 * pp + 4 * hf, 4), pp * 2048 + hf * 1024))


    p("s_mov_b32 s60, s56")
    p("s_mov_b32 s61, s57")
    p("s_mov_b32 s62, 9216")
    p("s_mov_b32 s63, 0x20000")
    p("v_and_b32 v5, 1, v2")
    p("v_lshlrev_b32 v5, 3, v5")
    p("v_lshrrev_b32 v6, 1, v2")
    p("v_lshl_add_u32 v7, v6, 2, v5")
    p("v_and_b32 v5, 7, v0")
    p("v_mul_u32_u24 v6, 1152, v5")
    p("v_add_u32 v6, v6, v7")
    p("v_lshl_add_u32 v66, v5, 4, v7")
    p("s_lshl_b32 %s, %s, 4" % (s(S_T0), s(S_U)))
    p("buffer_load_dword v65, v6, s[60:63], %s offen" % s(S_T0))
    p("v_mov_b32 v67, 0")
    if ONE:
        p("buffer_load_dword v68, v67, s[12:15], 0 offen offset:128 sc1")

    p("s_mov_b32 %s, 0" % s(S_STEP))
    p("s_mov_b32 %s, 0x%x" % (s(S_PAR), OFF_PB2))
    p("s_mov_b32 %s, 1" % s(S_PH))
    p("s_mov_b32 %s, 0x%x" % (s(S_MB), OFF_MB))
    p("s_lshl_b32 %s, %s, 13" % (s(S_T0), s(S_H)))
    p("s_add_u32 %s, %s, 0x%x" % (s(S_VX), s(S_T0), OFF_VX))
    p("s_add_u32 %s, %s, 0x%x" % (s(S_M0), s(S_T0), OFF_KX + KVS))
    p("s_add_u32 %s, %s, 0x%x" % (s(S_KX0), s(S_T0), OFF_KX))
    p("s_add_u32 %s, %s, 4096" % (s(S_KX1), s(S_KX0)))
    p("s_lshl_b32 %s, %s, 12" % (s(S_T0), s(S_H)))
    p("s_add_u32 %s, %s, 0x%x" % (s(S_KM), s(S_T0), OFF_KM))
    p("s_add_u32 %s, %s, 0x%x" % (s(S_VM), s(S_T0), OFF_VM))
    p("s_lshl_b32 %s, %s, 7" % (s(S_PUB), s(S_U)))
    p("s_mul_i32 %s, %s, 288" % (s(S_H288), s(S_H)))
    p("s_mov_b32 %s, 0x%x" % (s(S_HIST), OFF_HIST))
    p("s_lshl_b32 %s, %s, 7" % (s(S_TF), s(S_H)))
    p("s_add_u32 %s, %s, 0x%x" % (s(S_TF), s(S_TF), OFF_FLAG + F_TEAM))
    p("s_lshl_b32 %s, %s, 9" % (s(S_KVF), s(S_H)))
    p("s_add_u32 %s, %s, 0x%x" % (s(S_KVF), s(S_KVF), OFF_FLAG + F_G1))
    p("s_mov_b32 %s, 0" % s(S_KVC))
    p("v_add_u32 %s, 65536, %s" % (v(T1), v(L16)))
    p("v_add_u32 %s, 131072, %s" % (v(T2), v(L16)))
    p("s_waitcnt lgkmcnt(0)")
    p("s_barrier")
    for w in range(1, 4):
        p("s_cmp_eq_u32 %s, %d" % (s(S_W), w))
        p("s_cbranch_scc1 REC_W%d" % w)
    MODES = ["", "sc1"] if census else [st_flags]

    def budget():
        p("s_sub_u32 %s, %s, 1" % (s(S_BUD), s(S_BUD)))
        p("s_cbranch_scc1 REC_FAIL")

    def bg(q, n=1):
        for _ in range(n):
            if q:
                x = q.pop(0)
                if callable(x):
                    x()
                else:
                    p(x)

    def combine(acc):
        return ([("v_permlane32_swap_b32 %s, %s" % (v(acc + r), v(acc + 4 + r))) for r in range(4)]
                + [("v_add_f32 %s, %s, %s" % (v(acc + r), v(acc + r), v(acc + 4 + r))) for r in range(4)]
                + ["v_cvt_pk_bf16_f32 %s, %s, %s" % (v(acc), v(acc), v(acc + 1)),
                   "v_cvt_pk_bf16_f32 %s, %s, %s" % (v(acc + 1), v(acc + 2), v(acc + 3))])

    def zero(r, n):
        return ["v_mov_b64 %s, 0" % v(r + i, 2) for i in range(0, n, 2)]

    class LG:
        def __init__(self):
            self.log = []

        def op(self, text, tag):
            p(text)
            self.log.append(tag)

        def wait(self, *tags):
            hit = [i for i, x in enumerate(self.log) if x in tags]
            if hit:
                k = max(hit)
                n = len(self.log) - 1 - k
                assert n <= 15
                p("s_waitcnt lgkmcnt(%d)" % n)
                self.log = self.log[k + 1:]

        def all(self):
            if self.log:
                p("s_waitcnt lgkmcnt(0)")
            self.log = []

    def bases():
        p("v_add_u32 %s, 65536, %s" % (v(T1), v(L16)))
        p("v_add_u32 %s, 131072, %s" % (v(T2), v(L16)))

    MSK = [48, 50, 52, 54]

    def masks(bases_, tmps, half=False):
        for i, b in enumerate(bases_):
            if half:
                p("v_max_u32 %s, %s, %s" % (v(tmps[i]), v(b), v(b + 2)))
            else:
                p("v_max3_u32 %s, %s, %s, %s" % (v(tmps[i]), v(b), v(b + 1), v(b + 2)))
                p("v_max_u32 %s, %s, %s" % (v(tmps[i]), v(tmps[i]), v(b + 3)))
        for i, b in enumerate(bases_):
            p("v_cmp_eq_u32 %s, %s, %s" % (s(MSK[i], 2), s(S_SENT), v(tmps[i])))
        if len(bases_) == 1:
            p("s_or_b64 s[56:57], %s, %s" % (s(MSK[0], 2), s(MSK[0], 2)))
        else:
            p("s_or_b64 s[56:57], %s, %s" % (s(MSK[0], 2), s(MSK[1], 2)))
        for i in range(2, len(bases_)):
            p("s_or_b64 s[56:57], s[56:57], %s" % s(MSK[i], 2))

    def kexport():
        if NOEXP:
            return
        p("s_mov_b64 exec, %s" % s(S_PUBM, 2))
        for ks in range(4):
            p("buffer_store_dwordx4 %s, %s, %s, %s offen offset:%d %s" % (v(52 + 4 * ks, 4), v(SXR), s(SWS, 4), s(S_KM), ks * 512, EXP))
        p("s_mov_b64 exec, -1")
        p("s_add_u32 %s, %s, %d" % (s(S_KM), s(S_KM), EXS))

    def teamflag(sval):
        p("v_mov_b32 %s, %s" % (v(T0), s(sval)))
        p("s_mov_b64 exec, 1")
        p("buffer_store_dword %s, %s, %s, %s offen sc1" % (v(T0), v(L16), s(SWS, 4), s(S_TF)))
        p("s_mov_b64 exec, -1")

    def kv_wait(sseg):
        if not flags:
            return
        ok = p.newlabel("KVOK")
        top = p.newlabel("KVP")
        p("s_cmp_ge_u32 %s, 64" % s(sseg))
        p("s_cbranch_scc1 %s" % ok)
        p.label(top)
        p("s_cmp_gt_u32 %s, %s" % (s(S_KVC), s(sseg)))
        p("s_cbranch_scc1 %s" % ok)
        p("v_lshlrev_b32 %s, 3, %s" % (v(T0), v(L16)))
        p("s_mov_b64 exec, 15")
        p("buffer_load_dword %s, %s, %s, %s offen sc1" % (v(T0), v(T0), s(SWS, 4), s(S_KVF)))
        p("s_mov_b64 exec, -1")
        p("s_waitcnt vmcnt(0)")
        p("v_readlane_b32 s56, %s, 0" % v(T0))
        for i in range(1, 4):
            p("v_readlane_b32 s57, %s, %d" % (v(T0), i))
            p("s_min_u32 s56, s56, s57")
        p("s_lshl_b32 %s, s56, 2" % s(S_KVC))
        budget()
        p("s_branch %s" % top)
        p.label(ok)

    H1 = [0, 1, 2, 3]
    H2 = [4, 5, 6, 7, 8]

    def plan(w):
        own1 = {0: [5, 6], 1: [7, 8], 2: [3, 4], 3: [0, 1, 2]}[w]
        own2 = []
        h1ord = own1
        h2ord = [j for j in range(9) if j not in own1]
        seqA = [(m, j, tt) for m in range(2) for j in h1ord for tt in range(2)]
        seqQ = [(0, j, tt) for j in h2ord for tt in range(2)]
        seqK = [(1, j, tt) for j in h2ord for tt in range(2)]
        seq = seqA + seqQ + seqK
        if w < 3:
            lds_qk = [seq[i] for i in (0, 8, 16, 24)][:NQKL]
            reg_wo = [4, 5, 10, 11][:NQKL]
            swaps = list(zip(lds_qk, reg_wo))
        else:
            lds_qk = []
            reg_wo = list(range(18))
            swaps = [((2, k // 2, k % 2), k) for k in range(18)]
        return own1, own2, h1ord, h2ord, seqA, seqQ, seqK, lds_qk, reg_wo, swaps

    def gen_wave(w):
        own1, own2, h1ord, h2ord, seqA, seqQ, seqK, lds_qk, reg_wo, swaps = plan(w)
        p.label("REC_W%d" % w)
        if WARM:
            p("v_lshlrev_b32 v70, 3, %s" % v(L16))
            p("s_mul_i32 s56, %s, 9216" % s(S_H))
            p("s_add_u32 s56, s56, 0x%x" % (OFF_PB2 + (w & 1) * PB_STR + (w >> 1) * 1024))
            p("buffer_load_dword v64, v70, %s, s56 offen sc1" % s(SWS, 4))
            if w == 0:
                p("s_lshl_b32 s56, %s, 11" % s(S_H))
                p("s_add_u32 s56, s56, 0x%x" % OFF_MB)
                p("s_mov_b64 exec, 0xffff")
                p("buffer_load_dword v65, v70, %s, s56 offen sc1" % s(SWS, 4))
                p("s_mov_b64 exec, -1")
            p("s_getpc_b64 s[56:57]")
            p.label("REC_PC%d" % w)
            p("s_add_u32 s56, s56, W%d%s_PRE-REC_PC%d" % (w, MODES[0], w))
            p("s_addc_u32 s57, s57, 0")
            p("global_load_dword v66, v70, s[56:57]")
        for base in range(0, len(swaps), 4):
            grp = swaps[base:base + 4]
            for i, (tile, t) in enumerate(grp):
                b, off = lref(slot_addr(t, w))
                p("ds_read_b128 %s, %s offset:%d" % (v(8 * i, 4), b, off))
                p("ds_read_b128 %s, %s offset:%d" % (v(8 * i + 4, 4), b, off + 1024))
            p("s_waitcnt lgkmcnt(0)")
            for i, (tile, t) in enumerate(grp):
                b, off = lref(slot_addr(t, w))
                p("ds_write_b128 %s, %s offset:%d" % (b, wt_reg(*tile, 0, 4), off))
                p("ds_write_b128 %s, %s offset:%d" % (b, wt_reg(*tile, 4, 4), off + 1024))
            p("s_waitcnt lgkmcnt(0)")
            for i, (tile, t) in enumerate(grp):
                for r in range(8):
                    d = wt_reg(*tile, r, 1)
                    p("%s %s, %s" % ("v_accvgpr_write_b32" if d[0] == "a" else "v_mov_b32", d, v(8 * i + r)))
        if ONE:
            top = p.newlabel("RWI")
            ok = p.newlabel("RWO")
            p.label(top)
            p("s_waitcnt vmcnt(0)")
            p("v_readfirstlane_b32 s64, v68")
            p("s_cmp_ge_u32 s64, 256")
            p("s_cbranch_scc1 %s" % ok)
            p("buffer_load_dword v68, v67, s[12:15], 0 offen offset:128 sc1")
            budget()
            p("s_branch %s" % top)
            p.label(ok)
        if w < 3:
            lab = p.newlabel("NOPUB0")
            p("s_cmp_ge_u32 %s, 72" % s(S_U))
            p("s_cbranch_scc1 %s" % lab)
            p("s_waitcnt vmcnt(0)")
            p("v_cmp_eq_u32 vcc, 0x%x, v65" % SENT)
            p("v_mov_b32 v67, 0xffffffff")
            p("v_cndmask_b32 v65, v65, v67, vcc")
            p("s_add_u32 s64, %s, 0x%x" % (s(S_PUB), OFF_MB))
            p("s_mov_b64 exec, %s" % s(S_PUBM, 2))
            p("buffer_store_dword v65, v66, %s, s64 offen sc1" % s(SWS, 4))
            p("s_mov_b64 exec, -1")
            p.label(lab)
        if w == PFW:
            kv_wait(S_STEP)
            if WARM:
                p("s_add_u32 s56, %s, 0x%x" % (s(S_KX0), OFF_VX - OFF_KX))
                p("buffer_load_dword v67, v70, %s, %s offen sc1" % (s(SWS, 4), s(S_KX0)))
                p("buffer_load_dword v68, v70, %s, s56 offen sc1" % s(SWS, 4))
        if WARM:
            p("s_waitcnt vmcnt(0)")
        p("s_barrier")
        if TS:
            p("s_memrealtime s[98:99]")
            p("s_lshl_b32 s97, s96, 8")
            p("s_add_u32 s97, s97, 0x%x" % (OFF_STAMP + 0x200000 + 8))
            p("s_waitcnt lgkmcnt(0)")
            p("v_mov_b32 %s, s98" % v(T0))
            p("s_mov_b64 exec, 1")
            p("buffer_store_dword %s, %s, %s, s97 offen" % (v(T0), v(L16), s(SWS, 4)))
            p("s_mov_b64 exec, -1")
        if census:
            top = p.newlabel("CEN")
            fast = p.newlabel("CENF")
            p("s_mov_b32 s58, 0x%x" % (OFF_FLAG + F_ROLE))
            p.label(top)
            p("s_mov_b64 exec, 1")
            if ONE:
                p("v_mov_b32 %s, 256" % v(T0))
                p("buffer_load_dword %s, %s, s[12:15], 0 offen sc1" % (v(QF), v(L16)))
            else:
                p("buffer_load_dword %s, %s, %s, s58 offen offset:1024 sc1" % (v(T0), v(L16), s(SWS, 4)))
                p("s_waitcnt vmcnt(0)")
                p("buffer_load_dword %s, %s, %s, s58 offen sc1" % (v(QF), v(L16), s(SWS, 4)))
            p("s_mov_b64 exec, -1")
            p("s_waitcnt vmcnt(0)")
            p("v_readfirstlane_b32 s56, %s" % v(T0))
            p("v_readfirstlane_b32 s57, %s" % v(QF))
            p("s_min_u32 s57, s57, %d" % census)
            p("s_cmp_ge_u32 s57, 32")
            p("s_cbranch_scc1 %s" % fast)
            budget()
            p("s_cmp_lt_u32 s56, 256")
            p("s_cbranch_scc1 %s" % top)
            p("s_branch W%dsc1_PRE" % w)
            p.label(fast)
        for ST in MODES:
            gen_loop(w, ST, "W%d%s_" % (w, ST))

    def gen_loop(w, ST, W):
        own1, own2, h1ord, h2ord, seqA, seqQ, seqK, lds_qk, reg_wo, swaps = plan(w)
        wo_reg = {t: tile for tile, t in swaps}
        qk_addr = {tile: slot_addr(t, w) for tile, t in swaps}
        nt = 16 if w < 2 else 20
        lg = LG()

        def rdtile(dst, addr, tag):
            b, off = lref(addr)
            lg.op("ds_read_b128 %s, %s offset:%d" % (v(dst, 4), b, off), tag)
            lg.op("ds_read_b128 %s, %s offset:%d" % (v(dst + 4, 4), b, off + 1024), tag)

        def fetch(own, masked=False):
            for i, j in enumerate(own):
                if masked:
                    p("s_mov_b64 exec, %s" % s(MSK[i], 2))
                so, off = (S_MB, j * 1024) if j < 4 else ((S_T1, (j - 4) * 1024) if j < 8 else (S_T2, 0))
                p("buffer_load_dwordx4 %s, %s, %s, %s offen offset:%d sc1" % (v(MA + 4 * j, 4), v(L16), s(SWS, 4), s(so), off))
            if masked:
                p("s_mov_b64 exec, -1")

        pend = []

        def issue_qk(tile):
            m, j, tt = tile
            lg.wait(("m", j), ("s", tile))
            p(smf((AQ, AK)[m] + 4 * tt, MA + 4 * j, v(STG0, 8) if tile in lds_qk else wt(*tile)))
            if pend:
                t2 = pend.pop()
                rdtile(STG0, qk_addr[t2], ("s", t2))
            if tile in lds_qk:
                i = lds_qk.index(tile)
                if i + 1 < len(lds_qk):
                    pend.append(lds_qk[i + 1])

        vt = {0: [0, 1, 6], 1: [2, 3, 7], 2: [4, 5], 3: []}[w]
        KX = [[52, 56, 60, 64], [68, 0, 4, 8]]

        def ldkx(kt, ks):
            p("buffer_load_dwordx4 %s, %s, %s, %s offen offset:%d sc1" % (v(KX[kt][ks], 4), v(L16), s(SWS, 4), s((S_KX0, S_KX1)[kt]), ks * 1024))

        def ldvx(i):
            et = vt[i]
            so, off = (S_VX, et * 1024) if et < 4 else (S_T0, (et - 4) * 1024)
            p("buffer_load_dwordx4 %s, %s, %s, %s offen offset:%d sc1" % (v(VXF + 4 * i, 4), v(L16), s(SWS, 4), s(so), off))

        def wrmem(j):
            lg.op("ds_write_b128 %s, %s offset:%d" % (v(L16), v(MA + 4 * j, 4), L_MEM + j * 1024), "wm")

        def rdmem(j):
            lg.op("ds_read_b128 %s, %s offset:%d" % (v(MA + 4 * j, 4), v(L16), L_MEM + j * 1024), ("m", j))

        def prefetch():
            p("s_add_u32 %s, %s, 1" % (s(S_T0), s(S_STEP)))
            kv_wait(S_T0)
            p("v_lshlrev_b32 %s, 3, %s" % (v(T0), v(L16)))
            p("s_mov_b32 m0, %d" % L_SX)
            p("s_add_u32 %s, %s, 0x%x" % (s(S_T0), s(S_M0), OFF_VX - OFF_KX))
            p("buffer_load_dword %s, %s, %s offen lds" % (v(T0), s(SWS, 4), s(S_M0)))
            p("buffer_load_dword %s, %s, %s offen lds" % (v(T0), s(SWS, 4), s(S_T0)))
            p("s_add_u32 %s, %s, %d" % (s(S_M0), s(S_M0), KVS))

        p.label(W + "PRE")
        bases()
        p("s_add_u32 %s, %s, 4096" % (s(S_T0), s(S_VX)))
        p("s_add_u32 %s, %s, 4096" % (s(S_T1), s(S_MB)))
        p("s_add_u32 %s, %s, 8192" % (s(S_T2), s(S_MB)))
        stamp(0)
        def prework():
            if w < 3:
                rdtile(STG0, qk_addr[lds_qk[0]], ("s", lds_qk[0]))
            for r in range(16):
                p("v_mov_b32 %s, 0" % v(AQ + r))
        if not (own1 and SETMID):
            prework()
        tm = MA + 4 * h2ord[-1]
        A = list(seqA)
        if B3:
            p("s_barrier")
        no = len(own1)
        if AW and w < 3:
            p("s_waitcnt vmcnt(0)")
        for d in range(DEP):
            fetch(own1)
            if d == 0 and SETMID:
                prework()
        p.label(W + "CHK1")
        p("s_waitcnt vmcnt(%d)" % (no * (DEP - 1)))
        masks([MA + 4 * j for j in own1], [tm, tm + 1, tm + 2])
        p("s_cbranch_scc1 %sRETRY1" % W)
        stamp(1)
        for j in own1:
            wrmem(j)
        if w == 3:
            for ks in range(4):
                ldkx(0, ks)
            ldkx(1, 0)
        for _ in range(4):
            issue_qk(A.pop(0))
        lg.wait("wm")
        p("s_barrier")
        stamp(2)
        for j in h2ord:
            rdmem(j)
        stamp(3)
        while A:
            issue_qk(A.pop(0))
        stamp(4)
        for i, tile in enumerate(seqQ):
            issue_qk(tile)
            if w == 3 and i < 3:
                ldkx(1, i + 1)
            if w < 3 and 2 <= i < 2 + len(vt):
                ldvx(i - 2)
        if w < 3:
            p("s_add_u32 %s, %s, %d" % (s(S_VX), s(S_VX), KVS))
        if w == 3:
            for r in (S_KX0, S_KX1):
                p("s_add_u32 %s, %s, %d" % (s(r), s(r), KVS))
        stamp(5)
        Kq = [(lambda t=t: issue_qk(t)) for t in seqK]
        bg(Kq, 2)
        cq = combine(AQ)
        for i, x in enumerate(cq):
            p(x)
            if i % 3 == 2:
                bg(Kq)
        lg.op("ds_write_b64 %s, %s offset:%d" % (v(QWA), v(AQ, 2), L_Q + 512 * w), "wq")
        if w < 2:
            rdtile(STG0, slot_addr(w, 3), ("v", 0))
        STG = [8, 16, 24, STG0, VXF]
        NST = len(STG)
        OA = AQ
        ACC = [0, 4, 32, QF, 0] if w < 3 else [0, 4, 32, QF, 24]
        lt = [t for t in range(nt) if t not in reg_wo]

        if w < 3:
            Z = zero(AQ + 2, 6)
            for i in range(3):
                bg(Kq)
                bg(Z, 1)
            lg.wait("wq")
            p("s_barrier")
            bg(Kq)
            p(zero(AQ, 2)[0])
            bg(Kq, 99)
            stamp(6)
            AVs = [AQ, AQ + 4, AK + 4]
            nv = len(vt)

            def vr(j, tt):
                p(smf(AVs[tt], MA + 4 * j, wt(2, j, tt)))

            vr(0, 0)
            vr(0, 1)
            for x in combine(AK):
                p(x)
            lg.op("ds_write_b64 %s, %s offset:%d" % (v(QWA), v(AK, 2), L_K + 512 * w), "wk")
            if nv == 3:
                for x in zero(AVs[2], 4):
                    p(x)
                slots = {0: STG0, 1: STG0, 2: STG0, 3: 0, 4: STG0, 5: 0, 6: 8, 7: STG0, 8: 0}

                def vl(j):
                    lg.wait(("v", j))
                    p(smf(AVs[2], MA + 4 * j, v(slots[j], 8)))

                def req(j):
                    rdtile(slots[j], slot_addr(2 * j + w, 3), ("v", j))
                vr(1, 0); vl(0); vr(1, 1)
                lg.wait("wk")
                p("s_barrier")
                stamp(7)
                req(1); vr(2, 0)
                vr(2, 1); vr(3, 0); vl(1); vr(3, 1); req(2); req(3); vr(4, 0); vr(4, 1); vr(5, 0)
                vl(2); vl(3); vr(5, 1); req(4); req(5); req(6); vr(6, 0); vr(6, 1); vr(7, 0)
                vl(4); vl(5); req(7); vl(6); req(8); vr(7, 1); vr(8, 0); vr(8, 1)
                vl(7); vl(8)
            else:
                vr(1, 0); vr(1, 1); vr(2, 0)
                lg.wait("wk")
                p("s_barrier")
                stamp(7)
                if PFW == 2:
                    prefetch()
                p("v_add_u32 %s, %s, %s" % (v(T0), s(S_H288), v(L16)))
                lg.op("ds_read_b128 %s, %s offset:%d" % (v(STG0, 4), v(T0), L_MEM), "hx")
                vr(2, 1)
                for j in range(3, 9):
                    vr(j, 0)
                    vr(j, 1)
                    if j == 4:
                        lg.wait("hx")
                        p("s_mov_b64 exec, 0x3ffff")
                        p("buffer_store_dwordx4 %s, %s, %s, %s offen sc1" % (v(STG0, 4), v(T0), s(SWS, 4), s(S_HIST)))
                        p("s_mov_b64 exec, -1")
                        p("s_add_u32 %s, %s, 9216" % (s(S_HIST), s(S_HIST)))
            for i in range(2):
                rdtile(STG[i], slot_addr(lt[i], w), ("w", lt[i]))
            for i in range(nv):
                p("v_cvt_pk_bf16_f32 %s, %s, %s" % (v(AVs[i]), v(AVs[i]), v(AVs[i] + 1)))
                p("v_cvt_pk_bf16_f32 %s, %s, %s" % (v(AVs[i] + 1), v(AVs[i] + 2), v(AVs[i] + 3)))
            rdtile(STG[2], slot_addr(lt[2], w), ("w", lt[2]))
            rdtile(STG[3], slot_addr(lt[3], w), ("w", lt[3]))

            def vexport():
                if NOEXP:
                    return
                p("v_lshrrev_b32 %s, 1, %s" % (v(T0), v(L16)))
                for i, et in enumerate(vt):
                    p("buffer_store_dwordx2 %s, %s, %s, %s offen offset:%d %s" % (v(AVs[i], 2), v(T0), s(SWS, 4), s(S_VM), et * 512, EXP))
                p("s_add_u32 %s, %s, %d" % (s(S_VM), s(S_VM), EXS))
            p("v_lshrrev_b32 %s, 1, %s" % (v(T0), v(SXR)))
            p("s_waitcnt vmcnt(%d)" % (3 if w == 2 else 0))
            stamp(8)
            p("s_barrier")
            stamp(9)
            PX, PM = AK, AQ + 2
            lg.op("ds_read_b128 %s, %s offset:%d" % (v(PX, 4), v(SXR), L_PX), "px")
            lg.op("ds_read_b64 %s, %s offset:%d" % (v(PM, 2), v(T0), L_PM), "pm")
            OX = [0, 4, 32]
            lg.wait("px")
            for i in range(nv):
                p("v_mfma_f32_16x16x32_bf16 %s, %s, %s, 0" % (v(OX[i], 4), v(VXF + 4 * i, 4), v(PX, 4)))
            lg.wait("pm")
            for i in range(nv):
                p("v_mfma_f32_16x16x16_bf16 %s, %s, %s, %s" % (v(OX[i], 4), v(AVs[i], 2), v(PM, 2), v(OX[i], 4)))
            p("v_cvt_pk_bf16_f32 %s, %s, %s" % (v(0), v(0), v(1)))
            p("v_cvt_pk_bf16_f32 %s, %s, %s" % (v(1), v(2), v(3)))
            p("v_cvt_pk_bf16_f32 %s, %s, %s" % (v(2), v(4), v(5)))
            p("v_cvt_pk_bf16_f32 %s, %s, %s" % (v(3), v(6), v(7)))
            lg.op("ds_write_b128 %s, %s offset:%d" % (v(SXR), v(0, 4), L_O + 512 * w), "wo")
            if nv == 3:
                p("v_cvt_pk_bf16_f32 %s, %s, %s" % (v(32), v(32), v(33)))
                p("v_cvt_pk_bf16_f32 %s, %s, %s" % (v(33), v(34), v(35)))
                lg.op("ds_write_b64 %s, %s offset:%d" % (v(SXR), v(32, 2), L_O + 512 * 3 + 8 * w), "wo")
            stamp(10)
            for x in zero(ACC[1], 4) + zero(ACC[3], 4):
                p(x)
            npre = 4
        else:
            bg(Kq, 3)
            lg.wait("wq")
            p("s_barrier")
            QFR = [MA + 4 * j for j in h2ord[:4]]
            bg(Kq, 1)
            for ks in range(4):
                if ks == 3:
                    bg(Kq, 1)
                for b in range(2):
                    lg.op("ds_read_b64_tr_b16 %s, %s offset:%d" % (v(QFR[ks] + 2 * b, 2), v(TRA), L_Q + (32 * ks + 16 * b) * 16), ("q", ks))
            bg(Kq, 99)
            stamp(6)
            KFR = [52, 56, 60, 64]
            SX = AQ
            SM = AK
            MX, LX, FX, TM = AK + 4, AK + 5, AK + 6, AK + 7
            XS = []
            for ks in range(4):
                for kt in range(2):
                    def xs(ks=ks, kt=kt):
                        lg.wait(("q", ks))
                        p("v_mfma_f32_16x16x32_bf16 %s, %s, %s, %s" % (v(SX + 4 * kt, 4), v(KX[kt][ks], 4), v(QFR[ks], 4), "0" if ks == 0 else v(SX + 4 * kt, 4)))
                    XS.append(xs)
            p("s_waitcnt vmcnt(0)")
            bg(XS, 2)
            CK = combine(AK)
            for i, x in enumerate(CK):
                p(x)
                if i in (3, 7):
                    bg(XS)
            lg.op("ds_write_b64 %s, %s offset:%d" % (v(QWA), v(AK, 2), L_K + 512 * w), "wk")
            bg(XS, 99)
            X = []
            X.append("v_bfe_u32 %s, %s, 7, 1" % (v(T1), v(L16)))
            X.append("v_lshl_add_u32 %s, %s, 3, %s" % (v(T1), v(T1), v(SXR)))
            X.append("v_lshrrev_b32 %s, 1, %s" % (v(T2), v(SXR)))
            for r in range(4):
                X.append("v_cndmask_b32 %s, %s, %s, %s" % (v(SX + r), v(SX + r), v(SX + 4 + r), s(S_PART, 2)))
            X.append("v_max3_f32 %s, %s, %s, %s" % (v(MX), v(SX), v(SX + 1), v(SX + 2)))
            X.append("v_max_f32 %s, %s, %s" % (v(MX), v(MX), v(SX + 3)))
            X.append("v_max_f32_dpp %s, %s, %s row_ror:8 row_mask:0xf bank_mask:0xf" % (v(MX), v(MX), v(MX)))
            X.append("v_mov_b32 %s, %s" % (v(T0), v(MX)))
            X.append("v_permlane32_swap_b32 %s, %s" % (v(MX), v(T0)))
            X.append("v_max_f32 %s, %s, %s" % (v(MX), v(MX), v(T0)))
            lg.wait("wk")
            p("s_barrier")
            stamp(7)
            for ks in range(4):
                for b in range(2):
                    lg.op("ds_read_b64_tr_b16 %s, %s offset:%d" % (v(KFR[ks] + 2 * b, 2), v(TRA), L_K + (32 * ks + 16 * b) * 16), ("k", ks))
            bg(X, 7)
            for ks in range(4):
                lg.wait(("k", ks))
                p("v_mfma_f32_16x16x32_bf16 %s, %s, %s, %s" % (v(SM, 4), v(KFR[ks], 4), v(QFR[ks], 4), "0" if ks == 0 else v(SM, 4)))
                bg(X, 2)
            bg(X, 99)
            p("v_max3_f32 %s, %s, %s, %s" % (v(TM), v(SM), v(SM + 1), v(SM + 2)))
            p("v_max3_f32 %s, %s, %s, %s" % (v(TM), v(TM), v(SM + 3), v(MX)))
            p("v_mov_b32 %s, %s" % (v(MX), v(TM)))
            p("v_permlane16_swap_b32 %s, %s" % (v(TM), v(MX)))
            p("v_max_f32 %s, %s, %s" % (v(TM), v(TM), v(MX)))
            p("v_mul_f32 %s, %s, %s" % (v(FX), s(S_NC), v(TM)))
            p("v_mul_f32 %s, %s, %s" % (v(TM), s(S_NC), v(TM)))
            for b in (SM, SM + 2, SX, SX + 2):
                p("v_pk_fma_f32 %s, %s, %s, %s" % (v(b, 2), v(b, 2), s(S_C2, 2), v(FX, 2)))
            for b in (SM, SX):
                for r in range(4):
                    p("v_exp_f32 %s, %s" % (v(b + r), v(b + r)))
            p("v_pk_add_f32 %s, %s, %s" % (v(MX, 2), v(SM, 2), v(SM + 2, 2)))
            p("v_pk_add_f32 %s, %s, %s" % (v(FX, 2), v(SX, 2), v(SX + 2, 2)))
            p("v_pk_fma_f32 %s, %s, %s, %s" % (v(MX, 2), v(MX, 2), s(S_Q2, 2), v(FX, 2)))
            p("v_add_f32 %s, %s, %s" % (v(LX), v(MX), v(LX)))
            p("v_add_f32_dpp %s, %s, %s row_ror:8 row_mask:0xf bank_mask:0xf" % (v(LX), v(LX), v(LX)))
            p("v_mov_b32 %s, %s" % (v(T0), v(LX)))
            p("v_permlane16_swap_b32 %s, %s" % (v(LX), v(T0)))
            p("v_add_f32 %s, %s, %s" % (v(LX), v(LX), v(T0)))
            p("v_mov_b32 %s, %s" % (v(T0), v(LX)))
            p("v_permlane32_swap_b32 %s, %s" % (v(LX), v(T0)))
            p("v_add_f32 %s, %s, %s" % (v(LX), v(LX), v(T0)))
            p("v_rcp_f32 %s, %s" % (v(MX), v(LX)))
            p("v_rcp_f32 %s, %s" % (v(LX), v(LX)))
            for b in (SM, SM + 2, SX, SX + 2):
                p("v_pk_mul_f32 %s, %s, %s" % (v(b, 2), v(b, 2), v(MX, 2)))
            p("v_cvt_pk_bf16_f32 %s, %s, %s" % (v(SM), v(SM), v(SM + 1)))
            p("v_cvt_pk_bf16_f32 %s, %s, %s" % (v(SM + 1), v(SM + 2), v(SM + 3)))
            lg.op("ds_write_b64 %s, %s offset:%d" % (v(T2), v(SM, 2), L_PM), "wp")
            p("v_cvt_pk_bf16_f32 %s, %s, %s" % (v(SX), v(SX), v(SX + 1)))
            p("v_cvt_pk_bf16_f32 %s, %s, %s" % (v(SX + 1), v(SX + 2), v(SX + 3)))
            lg.op("ds_write_b64 %s, %s offset:%d" % (v(T1), v(SX, 2), L_PX), "wp")
            lg.all()
            stamp(8)
            p("s_barrier")
            stamp(9)
            if PFW == 3:
                prefetch()
            bases()
            for i in range(len(lt)):
                rdtile(STG[i], slot_addr(lt[i], w), ("w", lt[i]))
            stamp(10)
            for t in range(5):
                for x in zero(ACC[t], 4):
                    p(x)
            npre = len(lt)
        p("s_mul_i32 %s, %s, 9216" % (s(S_PB), s(S_H)))
        p("s_add_u32 %s, %s, %s" % (s(S_PB), s(S_PB), s(S_PAR)))
        p("s_add_u32 %s, %s, 4096" % (s(S_T0), s(S_PB)))
        p("s_add_u32 %s, %s, 7168" % (s(S_T1), s(S_PB)))
        lg.wait("wo")
        stamp(11)
        p("s_barrier")
        stamp(12)
        for ks in range(4):
            lg.op("ds_read_b128 %s, %s offset:%d" % (v(OA + 4 * ks, 4), v(SXR), L_O + 512 * ks), ("o", ks))
        slot_of = {t: i for i, t in enumerate(lt[:npre])}
        if w < 3:
            rdtile(STG[4], slot_addr(lt[4], w), ("w", lt[4]))
            slot_of[lt[4]] = 4
            npre = 5
            for x in zero(ACC[0], 4) + zero(ACC[2], 4):
                p(x)
        nxt = npre
        freed = []

        def post(tau):
            A0 = ACC[tau]
            so, off = [(S_PB, 0), (S_PB, 2048), (S_T0, 0), (S_T0, 2048), (S_T1, 0)][tau]
            L = []
            L.append("v_cvt_pk_bf16_f32 %s, %s, %s" % (v(A0), v(A0), v(A0 + 1)))
            L.append("v_cvt_pk_bf16_f32 %s, %s, %s" % (v(A0 + 1), v(A0 + 2), v(A0 + 3)))
            L.append("v_and_or_b32 %s, %s, -2, %s" % (v(A0), v(A0), s(S_PH)))
            L.append("buffer_store_dwordx2 %s, %s, %s, %s offen offset:%d %s" % (v(A0, 2), v(QWA), s(SWS, 4), s(so), off + 512 * w, ST))
            if tau == 0 and w == 2:
                L += zero(A0, 4)
            return L

        PQ = []
        for t in range(nt):
            tau, ks = divmod(t, 4)
            lg.wait(("o", ks), ("w", t))
            if ks == 0 and tau == 4:
                bg(PQ, 99)
            if t in lt:
                p(smf(ACC[tau], OA + 4 * ks, v(STG[slot_of[t]], 8)))
            else:
                p(smf(ACC[tau], OA + 4 * ks, wt(*wo_reg[t])))
            if freed:
                sl = freed.pop()
                if nxt < len(lt):
                    rdtile(STG[sl], slot_addr(lt[nxt], w), ("w", lt[nxt]))
                    slot_of[lt[nxt]] = sl
                    nxt += 1
            if t in lt:
                freed.append(slot_of[t])
            if ks == 2 and tau >= 1:
                bg(PQ, 99)
                PQ = post(tau - 1)
            bg(PQ, 2)
        bg(PQ, 99)
        for x in post(nt // 4 - 1):
            p(x)
        assert not lg.log
        stamp(13)
        p("s_add_u32 %s, %s, 16384" % (s(S_T3), s(S_MB)))
        p("s_and_b32 %s, %s, 0x%x" % (s(S_T3), s(S_T3), OFF_MB | 0xffff))
        if w == TW:
            RD, SEL, RA, RP, RACC = 16, 32, 36, 37, 40
            p("v_lshrrev_b32 %s, 5, %s" % (v(T0), v(L16)))
            p("v_mul_u32_u24 %s, 9216, %s" % (v(T0), v(T0)))
            p("v_and_b32 %s, 16, %s" % (v(RP), v(L16)))
            p("v_add_u32 %s, %s, %s" % (v(RA), v(T0), v(RP)))
            p("s_lshl_b32 %s, %s, 5" % (s(S_T0), s(S_H)))
            p("s_add_u32 %s, %s, %s" % (s(S_RL), s(S_T0), s(S_PAR)))
            p("s_add_u32 %s, %s, 8192" % (s(S_RL), s(S_RL)))
            p("v_bfe_u32 %s, %s, 4, 4" % (v(T0), v(L16)))
            p("v_and_b32 %s, 1, %s" % (v(T1), v(T0)))
            p("v_lshlrev_b32 %s, 4, %s" % (v(T1), v(T1)))
            p("v_mov_b32 %s, 0x3f80" % v(T2))
            p("v_lshlrev_b32 %s, %s, %s" % (v(T1), v(T1), v(T2)))
            p("v_lshrrev_b32 %s, 1, %s" % (v(T0), v(T0)))
            for r in range(4):
                p("v_cmp_eq_u32 vcc, %d, %s" % (r, v(T0)))
                p("v_cndmask_b32 %s, 0, %s, vcc" % (v(SEL + r), v(T1)))
            p("s_lshr_b32 %s, %s, 2" % (s(S_T0), s(S_H)))
            p("s_lshl_b32 %s, %s, 7" % (s(S_T0), s(S_T0)))
            p("s_and_b32 %s, %s, 3" % (s(S_T1), s(S_H)))
            p("s_lshl_b32 %s, %s, 2" % (s(S_T1), s(S_T1)))
            p("s_add_u32 %s, %s, %s" % (s(S_T0), s(S_T0), s(S_T1)))
            p("s_add_u32 %s, %s, 8192" % (s(S_T0), s(S_T0)))
            p("s_add_u32 s58, %s, %s" % (s(S_T3), s(S_T0)))
            p("s_add_u32 %s, %s, %s" % (s(S_PMB), s(S_MB), s(S_T0)))
            p("s_add_u32 s59, %s, 0x%x" % (s(S_T0), OFF_HIST + nsteps * 9216))
            p("v_mov_b32 v8, 0x%x" % SENT)
            p("s_waitcnt vmcnt(0)")
            p.label(W + "TRED")
            p("buffer_load_dwordx4 %s, %s, %s, %s offen sc1" % (v(RD, 4), v(RA), s(SWS, 4), s(S_RL)))
            budget()
            p("s_waitcnt vmcnt(0)")
            p("v_mfma_f32_16x16x32_bf16 %s, %s, %s, 0" % (v(RACC, 4), v(RD, 4), v(SEL, 4)))
            p("v_bitop3_b32 v44, %s, %s, %s bitop3:0x7e" % (v(RD), v(RD + 2), s(S_PH)))
            p("v_and_b32 v44, 1, v44")
            p("v_cmp_ne_u32 vcc, 0, v44")
            p("s_cbranch_vccnz %sTRED" % W)
            stamp(14)
            p("v_pk_add_f32 %s, %s, %s" % (v(RACC, 2), v(RACC, 2), v(RACC + 2, 2)))
            for sw in ("16", "32"):
                p("v_mov_b64 %s, %s" % (v(RACC + 2, 2), v(RACC, 2)))
                p("v_permlane%s_swap_b32 %s, %s" % (sw, v(RACC), v(RACC + 2)))
                p("v_permlane%s_swap_b32 %s, %s" % (sw, v(RACC + 1), v(RACC + 3)))
                p("v_pk_add_f32 %s, %s, %s" % (v(RACC, 2), v(RACC, 2), v(RACC + 2, 2)))
            p("v_cvt_pk_bf16_f32 %s, %s, %s" % (v(RACC), v(RACC), v(RACC + 1)))
            p("s_mov_b64 exec, 0xff")
            p("buffer_store_dword %s, %s, %s, s58 offen %s" % (v(RACC), v(L16), s(SWS, 4), ST))
            p("buffer_store_dword v8, %s, %s, %s offen %s" % (v(L16), s(SWS, 4), s(S_PMB), ST))
            lh = p.newlabel("NOH")
            p("s_cmp_lt_u32 %s, %d" % (s(S_STEP), nsteps - 1))
            p("s_cbranch_scc1 %s" % lh)
            p("buffer_store_dword %s, %s, %s, s59 offen sc1" % (v(RACC), v(L16), s(SWS, 4)))
            p.label(lh)
            p("s_mov_b64 exec, -1")
        if w < 2:
            labn = W + "NORED"
            RD = 16
            SEL = 32
            RA = 36
            RP = 37
            RACC = 40
            p("v_lshrrev_b32 %s, 7, %s" % (v(T0), v(L16)))
            p("v_mul_u32_u24 %s, 9216, %s" % (v(T0), v(T0)))
            p("v_and_b32 %s, 0x70, %s" % (v(RP), v(L16)))
            p("v_add_u32 %s, %s, %s" % (v(RA), v(T0), v(RP)))
            p("s_add_u32 %s, %s, %s" % (s(S_RL), s(S_PUB), s(S_PAR)))
            p("s_add_u32 %s, %s, %d" % (s(S_T0), s(S_RL), 73728))
            p("s_add_u32 %s, %s, %d" % (s(S_T1), s(S_RL), 2 * 73728))
            p("s_add_u32 %s, %s, %d" % (s(S_T2), s(S_RL), 3 * 73728))
            soffs = [S_RL, S_T0, S_T1, S_T2]

            def rload(masked=False):
                for ld in range(4):
                    if masked:
                        p("s_mov_b64 exec, %s" % s(MSK[ld], 2))
                    p("buffer_load_dwordx4 %s, %s, %s, %s offen sc1" % (v(RD + 4 * ld, 4), v(RA), s(SWS, 4), s(soffs[ld])))
                if masked:
                    p("s_mov_b64 exec, -1")

            SET = []
            SET.append("v_bfe_u32 %s, %s, 4, 4" % (v(T0), v(L16)))
            SET.append("v_and_b32 %s, 1, %s" % (v(T1), v(T0)))
            SET.append("v_lshlrev_b32 %s, 4, %s" % (v(T1), v(T1)))
            SET.append("v_mov_b32 %s, 0x3f80" % v(T2))
            SET.append("v_lshlrev_b32 %s, %s, %s" % (v(T1), v(T1), v(T2)))
            SET.append("v_lshrrev_b32 %s, 1, %s" % (v(T0), v(T0)))
            for r in range(4):
                SET.append("v_cmp_eq_u32 vcc, %d, %s" % (r, v(T0)))
                SET.append("v_cndmask_b32 %s, 0, %s, vcc" % (v(SEL + r), v(T1)))
            SET.append("v_bfe_u32 %s, %s, 8, 1" % (v(T2), v(L16)))
            SET.append("v_lshl_add_u32 %s, %s, 3, %s" % (v(RP), v(T2), v(RP)))
            SET.append("v_bfe_u32 %s, %s, 9, 1" % (v(T2), v(L16)))
            SET.append("v_lshl_add_u32 %s, %s, 2, %s" % (v(RP), v(T2), v(RP)))
            SET.append("s_add_u32 s58, %s, %s" % (s(S_T3), s(S_PUB)))
            SET.append("s_add_u32 %s, %s, %s" % (s(S_PMB), s(S_MB), s(S_PUB)))
            SET.append("v_mov_b32 v8, 0x%x" % SENT)

            def unit(tag, d0, d1, first):
                if first and w > 0 and not SETMID:
                    bg(SET, 99)
                for _ in range(d0):
                    p("s_nop 15")
                if VW[w] >= 0:
                    p("s_waitcnt vmcnt(%d)" % VW[w])
                rload()
                bg(SET, 99)
                for d in range(1, RDEP):
                    for _ in range(d1):
                        p("s_nop 7")
                    rload()
                p("s_branch %sRED1%s" % (W, tag))
                p.label(W + "RED" + tag)
                for ld in range(4):
                    p("v_and_b32 %s, 1, %s" % (v(44 + ld), v(44 + ld)))
                    p("v_cmp_ne_u32 %s, 0, %s" % (s(MSK[ld], 2), v(44 + ld)))
                rload(True)
                budget()
                p.label(W + "RED1" + tag)
                p("s_waitcnt vmcnt(%d)" % (4 * (RDEP - 1)))
                for ld in range(4):
                    b = RD + 4 * ld
                    p("v_bitop3_b32 %s, %s, %s, %s bitop3:0x7e" % (v(44 + ld), v(b), v(b + 2), s(S_PH)))
                p("v_or3_b32 v48, v44, v45, v46")
                p("v_or_b32 v48, v48, v47")
                p("v_and_b32 v48, 1, v48")
                p("v_cmp_ne_u32 vcc, 0, v48")
                for ld in range(4):
                    b = RD + 4 * ld
                    p("v_mfma_f32_16x16x32_bf16 %s, %s, %s, %s" % (v(RACC, 4), v(b, 4), v(SEL, 4), "0" if ld == 0 else v(RACC, 4)))
                    if ld == 0:
                        p("s_cbranch_vccnz %sRED%s" % (W, tag))
                if first:
                    stamp(14)
                p("v_permlane32_swap_b32 %s, %s" % (v(RACC), v(RACC + 2)))
                p("v_permlane32_swap_b32 %s, %s" % (v(RACC + 1), v(RACC + 3)))
                p("v_pk_add_f32 %s, %s, %s" % (v(RACC, 2), v(RACC, 2), v(RACC + 2, 2)))
                p("v_cvt_pk_bf16_f32 %s, %s, %s" % (v(RACC), v(RACC), v(RACC + 1)))
                p("s_mov_b64 exec, %s" % s(S_PUBM, 2))
                p("buffer_store_dword %s, %s, %s, s58 offen %s" % (v(RACC), v(RP), s(SWS, 4), ST))
                p("buffer_store_dword v8, %s, %s, %s offen %s" % (v(RP), s(SWS, 4), s(S_PMB), ST))
                lh = p.newlabel("NOH")
                p("s_cmp_lt_u32 %s, %d" % (s(S_STEP), nsteps - 1))
                p("s_cbranch_scc1 %s" % lh)
                p("s_add_u32 s59, %s, 0x%x" % (s(S_PUB), OFF_HIST + nsteps * 9216))
                p("buffer_store_dword %s, %s, %s, s59 offen sc1" % (v(RACC), v(RP), s(SWS, 4)))
                p.label(lh)
                p("s_mov_b64 exec, -1")

            unit("A", RD0[w], RD1[w], True)
            p.label(labn)
        stamp(15)
        p("s_mov_b32 %s, %s" % (s(S_MB), s(S_T3)))
        p("s_xor_b32 %s, %s, 0x%x" % (s(S_PAR), s(S_PAR), PB_STR))
        p("s_and_b32 %s, %s, 1" % (s(S_T0), s(S_STEP)))
        p("s_xor_b32 %s, %s, %s" % (s(S_PH), s(S_PH), s(S_T0)))
        p("s_add_u32 %s, %s, 1" % (s(S_STEP), s(S_STEP)))
        if stamps and w == 3 or stamps == 2:
            flush_stamps()
        if stamps:
            p("s_add_u32 %s, %s, 128" % (s(S_STO), s(S_STO)))
        p("s_cmp_lt_u32 %s, %d" % (s(S_STEP), nsteps))
        p("s_cbranch_scc1 %sPRE" % W)
        p("s_branch REC_DONE")
        if own1:
            p.label(W + "RETRY1")
            fetch(own1, True)
            budget()
            p("s_branch %sCHK1" % W)


    for w in range(4):
        gen_wave(w)
```

```python
import math
import struct
from asmlib import *
from layout import *

SWS = 4
SA = 8
SB = 12
SX = 16
S_WV = 20
S_RANK = 21
S_BUDW = 22
S_A, S_B, S_C_, S_D, S_E, S_F, S_G, S_H_ = 24, 25, 26, 27, 28, 29, 30, 31
S_I, S_J, S_K, S_L = 32, 33, 34, 35

V_L16 = 200
V_LANE = 201


def f2u(x):
    return struct.unpack("<I", struct.pack("<f", x))[0]


def srd(p, sreg, slot, nbytes):
    p("s_load_dwordx2 %s, s[0:1], %d" % (s(sreg, 2), slot * 8))
    p("s_mov_b32 %s, %d" % (s(sreg + 2), nbytes))
    p("s_mov_b32 %s, 0x20000" % s(sreg + 3))


def worker_setup(p):
    srd(p, SWS, D_WS, WS_BYTES)
    srd(p, SX, A_X, S * DM * 2)
    p("v_lshrrev_b32 v1, 6, v0")
    p("v_and_b32 %s, 63, v0" % v(V_LANE))
    p("v_readfirstlane_b32 %s, v1" % s(S_WV))
    p("v_lshlrev_b32 %s, 4, %s" % (v(V_L16), v(V_LANE)))
    p("s_mov_b32 %s, 300000" % s(S_BUDW))
    p("s_waitcnt lgkmcnt(0)")


TSTAMP = [False]
ONE = [False]


def wait_init(p, tmp):
    if not ONE[0]:
        return
    top = p.newlabel("WI")
    p("s_load_dwordx2 s[60:61], s[0:1], %d" % (D_DBG * 8))
    p("s_mov_b32 s62, 256")
    p("s_mov_b32 s63, 0x20000")
    p("v_mov_b32 %s, 0" % v(tmp + 1))
    p("s_waitcnt lgkmcnt(0)")
    p.label(top)
    p("buffer_load_dword %s, %s, s[60:63], 0 offen offset:128 sc1" % (v(tmp), v(tmp + 1)))
    p("s_waitcnt vmcnt(0)")
    p("v_readfirstlane_b32 s64, %s" % v(tmp))
    p("s_sub_u32 %s, %s, 1" % (s(S_BUDW), s(S_BUDW)))
    p("s_cbranch_scc1 W_FAIL")
    p("s_cmp_lt_u32 s64, 256")
    p("s_cbranch_scc1 %s" % top)


def wstamp(p, k, role="s21", sws=SWS):
    if not TSTAMP[0]:
        return
    p("s_memrealtime s[98:99]")
    p("s_lshl_b32 s97, %s, 8" % role)
    p("s_add_u32 s97, s97, 0x%x" % (OFF_STAMP + 0x200000 + 4 * k))
    p("s_waitcnt lgkmcnt(0)")
    p("v_mov_b32 v254, s98")
    p("v_mov_b32 v255, 0")
    p("s_mov_b64 exec, 1")
    p("buffer_store_dword v254, v255, %s, s97 offen" % s(sws, 4))
    p("s_mov_b64 exec, -1")


def lane_fields(p, r16, g, r, c):
    p("v_and_b32 %s, 15, %s" % (v(r16), v(V_LANE)))
    p("v_lshrrev_b32 %s, 4, %s" % (v(g), v(V_LANE)))
    p("v_bfe_u32 %s, %s, 2, 2" % (v(r), v(V_LANE)))
    p("v_and_b32 %s, 3, %s" % (v(c), v(V_LANE)))


def bfrag(i, r=0, n=4):
    if i < 64:
        return a(4 * i + r, n)
    return v(208 + 4 * (i - 64) + r, n)


XB0 = 98304
XB1 = 0
V_XA = 202


def x_dma_setup(p):
    p("v_and_b32 v1, 15, %s" % v(V_LANE))
    p("v_mul_u32_u24 v1, 1152, v1")
    p("v_lshrrev_b32 v2, 4, %s" % v(V_LANE))
    p("v_lshl_add_u32 %s, v2, 4, v1" % v(V_XA))


def x_dma(p, srow, sbuf, st0, st1):
    p("s_add_u32 %s, %s, %s" % (s(st0), s(srow), s(S_K)))
    p("s_add_u32 %s, %s, %s" % (s(st1), s(sbuf), s(S_L)))
    for i in range(9):
        p("s_add_u32 m0, %s, %d" % (s(st1), i * 1024))
        if i:
            p("s_add_u32 %s, %s, 64" % (s(st0), s(st0)))
        else:
            p("s_nop 0")
        p("buffer_load_dwordx4 %s, %s, %s offen lds" % (v(V_XA), s(SX, 4), s(st0)))


def x_dma_consts(p):
    p("s_lshr_b32 %s, %s, 1" % (s(S_K), s(S_WV)))
    p("s_mul_i32 %s, %s, %d" % (s(S_K), s(S_K), 16 * 1152))
    p("s_and_b32 %s, %s, 1" % (s(S_L), s(S_WV)))
    p("s_mul_i32 %s, %s, 576" % (s(S_L), s(S_L)))
    p("s_add_u32 %s, %s, %s" % (s(S_K), s(S_K), s(S_L)))
    p("s_mul_i32 %s, %s, 9216" % (s(S_L), s(S_WV)))


def gen_gemm1(p, done_label):
    S_Q, S_ROW, S_OUT, S_FLAG, S_IT, S_BUF, S_VT = S_A, S_B, S_C_, S_D, S_E, S_F, S_G
    S_T0, S_T1 = S_H_, S_I
    NB = DM * H * DH * 2
    p.c("---- projection GEMM role")
    p("s_load_dwordx2 s[40:41], s[0:1], %d" % (A_WQ * 8))
    p("s_load_dwordx2 s[42:43], s[0:1], %d" % (A_WK * 8))
    p("s_load_dwordx2 s[44:45], s[0:1], %d" % (A_WV * 8))
    p("s_mov_b32 %s, %d" % (s(SA + 2), NB))
    p("s_mov_b32 %s, 0x20000" % s(SA + 3))
    p("s_mov_b32 %s, %d" % (s(SB + 2), NB))
    p("s_mov_b32 %s, 0x20000" % s(SB + 3))
    p("s_and_b32 %s, %s, 3" % (s(S_Q), s(S_RANK)))
    p("s_mov_b32 s48, 16")
    p("s_mov_b32 s49, %d" % (4 * 32 * 1152))
    p("s_mov_b32 s50, 0x100000")
    p("s_lshr_b32 %s, %s, 2" % (s(S_T0), s(S_RANK)))
    p("s_lshr_b32 %s, %s, 1" % (s(S_T1), s(S_WV)))
    p("s_waitcnt lgkmcnt(0)")
    lq = p.newlabel("G1Q")
    le = p.newlabel("G1E")
    p("s_cmp_ge_u32 %s, 32" % s(S_T0))
    p("s_cbranch_scc1 %s" % lq)
    p("s_mov_b32 %s, s42" % s(SA))
    p("s_mov_b32 %s, s43" % s(SA + 1))
    p("s_mov_b32 %s, s44" % s(SB))
    p("s_mov_b32 %s, s45" % s(SB + 1))
    p("s_lshl_b32 s46, %s, 8" % s(S_T0))
    p("s_mov_b32 s47, s46")
    p("s_mov_b32 %s, %s" % (s(S_VT), s(S_T1)))
    p("s_lshl_b32 %s, %s, 13" % (s(S_OUT), s(S_T0)))
    p("s_mul_i32 %s, %s, 0x%x" % (s(S_T1), s(S_T1), OFF_VX - OFF_KX))
    p("s_add_u32 %s, %s, %s" % (s(S_OUT), s(S_OUT), s(S_T1)))
    p("s_add_u32 %s, %s, 0x%x" % (s(S_OUT), s(S_OUT), OFF_KX))
    p("s_branch %s" % le)
    p.label(lq)
    p("s_mov_b32 %s, s40" % s(SA))
    p("s_mov_b32 %s, s41" % s(SA + 1))
    p("s_mov_b32 %s, s40" % s(SB))
    p("s_mov_b32 %s, s41" % s(SB + 1))
    p("s_sub_u32 %s, %s, 128" % (s(S_T0), s(S_RANK)))
    p("s_and_b32 %s, %s, 1" % (s(S_Q), s(S_T0)))
    p("s_lshr_b32 %s, %s, 1" % (s(S_T0), s(S_T0)))
    p("s_mov_b32 s48, 32")
    p("s_mov_b32 s49, %d" % (2 * 32 * 1152))
    p("s_mov_b32 s50, 0x80000")
    p("s_lshl_b32 s46, %s, 9" % s(S_T0))
    p("s_add_u32 s47, s46, 256")
    p("s_mov_b32 %s, 0" % s(S_VT))
    p("s_lshl_b32 %s, %s, 1" % (s(S_T0), s(S_T0)))
    p("s_add_u32 %s, %s, %s" % (s(S_T0), s(S_T0), s(S_T1)))
    p("s_lshl_b32 %s, %s, 13" % (s(S_OUT), s(S_T0)))
    p("s_add_u32 %s, %s, 0x%x" % (s(S_OUT), s(S_OUT), OFF_QX))
    p.label(le)
    p("s_lshl_b32 %s, %s, 18" % (s(S_T0), s(S_Q)))
    p("s_add_u32 %s, %s, %s" % (s(S_OUT), s(S_OUT), s(S_T0)))
    p("s_and_b32 %s, %s, 1" % (s(S_T0), s(S_WV)))
    p("s_add_u32 %s, %s, 11" % (s(S_T1), s(S_VT)))
    p("s_lshl_b32 %s, %s, %s" % (s(S_T0), s(S_T0), s(S_T1)))
    p("s_add_u32 %s, %s, %s" % (s(S_OUT), s(S_OUT), s(S_T0)))
    p("s_lshl_b32 %s, %s, 7" % (s(S_FLAG), s(S_RANK)))
    p("s_add_u32 %s, %s, 0x%x" % (s(S_FLAG), s(S_FLAG), OFF_FLAG + F_G1))
    p("s_mul_i32 %s, %s, %d" % (s(S_ROW), s(S_Q), 32 * 1152))
    x_dma_setup(p)
    x_dma_consts(p)
    p("s_mov_b32 %s, %d" % (s(S_BUF), XB0))
    x_dma(p, S_ROW, S_BUF, S_T0, S_T1)
    lane_fields(p, 1, 2, 3, 4)
    p("s_lshr_b32 %s, %s, 1" % (s(S_T0), s(S_WV)))
    p("s_lshl_b32 %s, %s, 2" % (s(S_T0), s(S_T0)))
    p("v_or_b32 v5, %s, v2" % s(S_T0))
    p("v_lshlrev_b32 v5, 1, v5")
    p("v_xor_b32 v5, v5, v1")
    p("v_lshlrev_b32 v5, 4, v5")
    p("v_lshl_add_u32 v5, v2, 13, v5")
    p("s_lshl_b32 %s, %s, 15" % (s(S_T0), s(S_WV)))
    p("v_add_u32 v5, %s, v5" % s(S_T0))
    p("v_add_u32 v8, s46, v5")
    p("v_add_u32 v9, s47, v5")
    p("v_and_b32 v6, 1, v2")
    p("v_lshl_or_b32 v6, v6, 2, v3")
    p("s_and_b32 %s, %s, 1" % (s(S_T0), s(S_WV)))
    p("s_lshl_b32 %s, %s, 2" % (s(S_T0), s(S_T0)))
    p("v_xor_b32 v6, %s, v6" % s(S_T0))
    p("v_lshl_add_u32 v7, v2, 3, v3")
    p("v_lshlrev_b32 v7, 8, v7")
    p("v_lshl_add_u32 v7, v4, 3, v7")
    p("s_lshr_b32 %s, %s, 1" % (s(S_T0), s(S_WV)))
    p("s_lshl_b32 %s, %s, 14" % (s(S_T0), s(S_T0)))
    p("v_add_u32 v7, %s, v7" % s(S_T0))
    for t in range(4):
        p("v_xor_b32 v10, %d, v6" % t)
        p("v_lshl_add_u32 v%d, v10, 5, v7" % (12 + t))
    p("s_lshl_b32 %s, %s, 10" % (s(S_J), s(S_WV)))

    def issue(kb):
        slot = kb % 3
        for grp in range(2):
            for qq in range(4):
                p("s_add_u32 m0, %s, %d" % (s(S_J), slot * 32768 + grp * 16384 + qq * 4096))
                p("s_mov_b32 %s, %d" % (s(S_T0), (64 * kb + 16 * qq) * 8192))
                p("buffer_load_dwordx4 v%d, %s, %s offen lds" % (8 + grp, s((SA, SB)[grp], 4), s(S_T0)))

    for kb in range(3):
        issue(kb)
    issued = 3
    for kb in range(9):
        slot = kb % 3
        p("s_waitcnt vmcnt(%d) lgkmcnt(0)" % (8 * (issued - kb - 1)))
        p("s_barrier")
        if kb >= 1 and issued < 9:
            issue(issued)
            issued += 1
        for t in range(4):
            p("v_add_u32 v%d, %d, v%d" % (16 + t, slot * 32768, 12 + t))
        for k2 in range(2):
            for t in range(4):
                for hf in range(2):
                    i = t * 18 + 2 * kb + k2
                    p("ds_read_b64_tr_b16 %s, v%d offset:%d" % (bfrag(i, 2 * hf, 2), 16 + t, k2 * 8192 + hf * 1024))
    wait_init(p, 20)
    wstamp(p, 2, "s96")
    p("s_mov_b32 %s, 0" % s(S_IT))
    p("v_mov_b32 v203, 0")
    p("s_waitcnt vmcnt(0) lgkmcnt(0)")
    lv = p.newlabel("G1V")
    p("s_cmp_lg_u32 %s, 0" % s(S_VT))
    p("s_cbranch_scc1 %s" % lv)
    for vtype in (0, 1):
        if vtype:
            p.label(lv)
        top = p.newlabel("G1L")
        p.label(top)
        p("s_waitcnt vmcnt(4)")
        p("s_barrier")
        p("s_max_u32 %s, %s, 1" % (s(S_T0), s(S_IT)))
        p("s_sub_u32 %s, %s, 1" % (s(S_T0), s(S_T0)))
        p("v_mov_b32 v204, %s" % s(S_T0))
        p("s_mov_b64 exec, 1")
        p("buffer_store_dword v204, v203, %s, %s offen sc1" % (s(SWS, 4), s(S_FLAG)))
        p("s_mov_b64 exec, -1")
        p("v_add_u32 v205, %s, %s" % (s(S_BUF), v(V_L16)))
        p("s_add_u32 %s, %s, s49" % (s(S_ROW), s(S_ROW)))
        p("s_xor_b32 %s, %s, %d" % (s(S_BUF), s(S_BUF), XB0 ^ XB1))
        x_dma(p, S_ROW, S_BUF, S_T0, S_T1)
        NX = 6
        XR = 40
        for f in range(NX):
            p("ds_read_b128 %s, v205 offset:%d" % (v(XR + 4 * f, 4), f * 1024))
        for f in range(36):
            rt, ks = divmod(f, 18)
            p("s_waitcnt lgkmcnt(%d)" % min(NX - 2, 35 - f) if f else "s_waitcnt lgkmcnt(%d)" % (NX - 1))
            xr = v(XR + 4 * (f % NX), 4)
            for t in range(4):
                acc = v(16 * rt + 4 * t, 4)
                c = "0" if ks == 0 else acc
                if vtype:
                    p("v_mfma_f32_16x16x32_bf16 %s, %s, %s, %s" % (acc, xr, bfrag(t * 18 + ks), c))
                else:
                    p("v_mfma_f32_16x16x32_bf16 %s, %s, %s, %s" % (acc, bfrag(t * 18 + ks), xr, c))
                if t == 0 and f >= 1 and f - 1 + NX < 36:
                    g_ = f - 1 + NX
                    p("ds_read_b128 %s, v205 offset:%d" % (v(XR + 4 * (g_ % NX), 4), g_ * 1024))
        PK = 64
        p("s_add_u32 %s, %s, 4096" % (s(S_T0), s(S_OUT)))
        for o in range(4):
            if vtype:
                src = [4 * o, 16 + 4 * o]
                so, off = S_OUT, o * 1024
            else:
                rt, tp = divmod(o, 2)
                src = [16 * rt + 8 * tp, 16 * rt + 8 * tp + 4]
                so, off = (S_OUT, S_T0)[rt], tp * 1024
            d = PK + 4 * o
            for i, b in enumerate(src):
                p("v_cvt_pk_bf16_f32 %s, %s, %s" % (v(d + 2 * i), v(b), v(b + 1)))
                p("v_cvt_pk_bf16_f32 %s, %s, %s" % (v(d + 2 * i + 1), v(b + 2), v(b + 3)))
            p("buffer_store_dwordx4 %s, %s, %s, %s offen offset:%d sc1" % (v(d, 4), v(V_L16), s(SWS, 4), s(so), off))
        p("s_add_u32 %s, %s, s50" % (s(S_OUT), s(S_OUT)))
        p("s_add_u32 %s, %s, 1" % (s(S_IT), s(S_IT)))
        p("s_cmp_lt_u32 %s, s48" % s(S_IT))
        p("s_cbranch_scc1 %s" % top)
        p("s_waitcnt vmcnt(0)")
        p("s_barrier")
        p("v_mov_b32 v204, s48")
        p("s_mov_b64 exec, 1")
        p("buffer_store_dword v204, v203, %s, %s offen sc1" % (s(SWS, 4), s(S_FLAG)))
        p("s_mov_b64 exec, -1")
        p("s_branch %s" % done_label)


def poll_flags(p, voff, soff, nlanes, target, tmp, fail="W_FAIL", cmp_sgpr=None, cmp_vgpr=None, sleep=8):
    top = p.newlabel("POLL")
    ok = p.newlabel("POLLOK")
    p("s_mov_b32 exec_lo, 0x%x" % (((1 << nlanes) - 1) & 0xffffffff))
    p("s_mov_b32 exec_hi, 0x%x" % (((1 << nlanes) - 1) >> 32))
    p.label(top)
    p("buffer_load_dword %s, %s, %s, %s offen sc1" % (v(tmp), v(voff), s(SWS, 4), s(soff)))
    p("s_waitcnt vmcnt(0)")
    p("v_cmp_gt_u32 vcc, %s, %s" % (v(cmp_vgpr) if cmp_vgpr is not None else (s(cmp_sgpr) if cmp_sgpr is not None else str(target)), v(tmp)))
    p("s_cbranch_vccz %s" % ok)
    p("s_sleep %d" % sleep)
    p("s_sub_u32 %s, %s, 1" % (s(S_BUDW), s(S_BUDW)))
    p("s_cbranch_scc0 %s" % top)
    p("s_mov_b64 exec, -1")
    p("s_branch %s" % fail)
    p.label(ok)
    p("s_mov_b64 exec, -1")


LOG2E = f2u(math.log2(math.e))
EPS6 = f2u(1e-6)


def phi(p, dst, src, t0):
    p("v_min_f32 %s, 0, %s" % (v(t0), v(src)))
    p("v_mul_f32 %s, s36, %s" % (v(t0), v(t0)))
    p("v_exp_f32 %s, %s" % (v(t0), v(t0)))
    p("v_max_f32 %s, 0, %s" % (v(dst), v(src)))
    p("v_add_f32 %s, 0x%x, %s" % (v(dst), EPS6, v(dst)))
    p("v_add_f32 %s, %s, %s" % (v(dst), v(dst), v(t0)))


def gen_bbranch(p, done_label):
    S_Q, S_ROW, S_PQ, S_FLAG, S_IT, S_BUF, S_HD = S_A, S_B, S_C_, S_D, S_E, S_F, S_G
    S_T0, S_T1 = S_H_, S_I
    S_GO, S_ISG, S_OC = 37, 38, 39
    p.c("---- branch B role")
    srd(p, SA, B_WQKV, DM * 3 * DM * 2)
    srd(p, SB, GATE, DM * 2)
    p("s_mov_b32 s36, 0x%x" % LOG2E)
    p("s_sub_u32 %s, %s, 160" % (s(S_T0), s(S_RANK)))
    p("s_and_b32 %s, %s, 7" % (s(S_Q), s(S_T0)))
    p("s_lshr_b32 %s, %s, 3" % (s(S_HD), s(S_T0)))
    p("s_lshl_b32 %s, %s, 2" % (s(S_HD), s(S_HD)))
    p("s_add_u32 %s, %s, %s" % (s(S_HD), s(S_HD), s(S_WV)))
    p("s_lshl_b32 %s, %s, 7" % (s(S_FLAG), s(S_T0)))
    p("s_add_u32 %s, %s, 0x%x" % (s(S_FLAG), s(S_FLAG), OFF_FLAG + F_KV))
    p("s_mul_i32 %s, %s, %d" % (s(S_ROW), s(S_Q), 256 * 1152))
    p("s_lshl_b32 %s, %s, 2" % (s(S_T0), s(S_T0)))
    p("s_add_u32 %s, %s, %s" % (s(S_T0), s(S_T0), s(S_WV)))
    p("s_lshl_b32 %s, %s, 14" % (s(S_PQ), s(S_T0)))
    p("s_add_u32 %s, %s, 0x%x" % (s(S_PQ), s(S_PQ), OFF_PQ))
    p("s_lshl_b32 %s, %s, 10" % (s(S_GO), s(S_Q)))
    p("s_add_u32 %s, %s, 0x%x" % (s(S_GO), s(S_GO), OFF_G))
    x_dma_setup(p)
    x_dma_consts(p)
    p("s_mov_b32 %s, %d" % (s(S_BUF), XB0))
    p("s_waitcnt lgkmcnt(0)")
    x_dma(p, S_ROW, S_BUF, S_T0, S_T1)
    lane_fields(p, 1, 2, 3, 4)
    GF = 128
    p("v_lshlrev_b32 v5, 4, v2")
    for ks in range(18):
        p("buffer_load_dwordx4 %s, v5, %s, 0 offen offset:%d" % (v(GF + 4 * ks, 4), s(SB, 4), ks * 64))
    p("s_mul_i32 %s, %s, 36" % (s(S_T0), s(S_HD)))
    p("v_and_b32 v5, 7, %s" % v(V_LANE))
    p("v_bfe_u32 v6, %s, 3, 2" % v(V_LANE))
    p("v_lshrrev_b32 v7, 5, %s" % v(V_LANE))
    p("v_mul_u32_u24 v7, 3456, v7")
    p("v_add_u32 v7, %s, v7" % s(S_T0))
    p("v_lshlrev_b32 v12, 2, v5")
    p("v_mov_b32 v13, 0x40000000")
    for j, o in ((0, 1184), (1, 2336), (2, 32)):
        p("v_cmp_eq_u32 vcc, %d, v5" % j)
        p("v_mov_b32 v14, %d" % o)
        p("v_cndmask_b32 v13, v13, v14, vcc")
    for f2 in range(4):
        p("v_xor_b32 v14, %d, v6" % f2)
        p("v_add_u32 v15, 1152, v12")
        p("v_add_u32 v16, 2304, v12")
        p("v_cmp_eq_u32 vcc, 1, v14")
        p("v_cndmask_b32 v15, v15, v16, vcc")
        p("v_cmp_eq_u32 vcc, 2, v14")
        p("v_cndmask_b32 v15, v15, v13, vcc")
        p("v_cmp_eq_u32 vcc, 3, v14")
        p("v_cndmask_b32 v15, v15, v12, vcc")
        p("v_add_u32 v%d, v15, v7" % (8 + f2))
    p("v_and_b32 v5, 1, v2")
    p("v_lshrrev_b32 v6, 1, v3")
    p("v_lshl_or_b32 v6, v5, 1, v6")
    p("v_lshl_add_u32 v7, v2, 3, v3")
    p("v_lshlrev_b32 v7, 7, v7")
    p("v_lshl_add_u32 v7, v4, 3, v7")
    p("s_mul_i32 %s, %s, 24576" % (s(S_J), s(S_WV)))
    p("v_add_u32 v7, %s, v7" % s(S_J))
    for t in range(4):
        p("v_xor_b32 v5, %d, v6" % t)
        p("v_lshl_add_u32 v%d, v5, 5, v7" % (12 + t))
    p("s_waitcnt vmcnt(0)")

    def issue(ks):
        slot = ks % 3
        for i in range(16):
            f2 = (i & 1) | (((i >> 2) & 1) << 1)
            p("s_add_u32 m0, %s, %d" % (s(S_J), slot * 4096 + i * 256))
            p("s_mov_b32 %s, %d" % (s(S_T0), (32 * ks + 2 * i) * 3456))
            p("buffer_load_dword v%d, %s, %s offen lds" % (8 + f2, s(SA, 4), s(S_T0)))

    for ks in range(3):
        issue(ks)
    issued = 3
    for ks in range(18):
        slot = ks % 3
        p("s_waitcnt vmcnt(%d)" % (16 * (issued - ks - 1)))
        for t in range(4):
            for hf in range(2):
                p("ds_read_b64_tr_b16 %s, v%d offset:%d" % (bfrag(t * 18 + ks, 2 * hf, 2), 12 + t, slot * 4096 + hf * 512))
        if issued < 18:
            p("s_waitcnt lgkmcnt(0)")
            issue(issued)
            issued += 1
    wait_init(p, 20)
    wstamp(p, 2, "s96")
    KV = 96
    ONE = 120
    for r in range(24):
        p("v_mov_b32 %s, 0" % v(KV + r))
    for r in range(4):
        p("v_mov_b32 %s, 0x3f803f80" % v(ONE + r))
    p("s_mov_b32 %s, 0" % s(S_IT))
    p("v_mov_b32 v203, 0")
    p("s_mov_b32 s40, 0xffff0000")
    p("s_mov_b32 s41, 0")
    p("s_waitcnt vmcnt(0) lgkmcnt(0)")
    top = p.newlabel("BL")
    p.label(top)
    p("s_waitcnt vmcnt(2)")
    p("s_barrier")
    p("v_add_u32 v205, %s, %s" % (s(S_BUF), v(V_L16)))
    p("s_add_u32 %s, %s, %d" % (s(S_ROW), s(S_ROW), 32 * 1152))
    p("s_xor_b32 %s, %s, %d" % (s(S_BUF), s(S_BUF), XB0 ^ XB1))
    x_dma(p, S_ROW, S_BUF, S_T0, S_T1)
    NX = 6
    XR = 40
    for f in range(NX):
        p("ds_read_b128 %s, v205 offset:%d" % (v(XR + 4 * f, 4), f * 1024))
    for f in range(36):
        rt, ks = divmod(f, 18)
        p("s_waitcnt lgkmcnt(%d)" % min(NX - 2, 35 - f) if f else "s_waitcnt lgkmcnt(%d)" % (NX - 1))
        xr = v(XR + 4 * (f % NX), 4)
        for i, (t, tr) in enumerate(((0, 0), (1, 0), (2, 0), (3, 1), (2, 1))):
            acc = v(20 * rt + 4 * i, 4)
            c = "0" if ks == 0 else acc
            if not tr:
                p("v_mfma_f32_16x16x32_bf16 %s, %s, %s, %s" % (acc, xr, bfrag(t * 18 + ks), c))
            else:
                p("v_mfma_f32_16x16x32_bf16 %s, %s, %s, %s" % (acc, bfrag(t * 18 + ks), xr, c))
            if i == 0 and f >= 1 and f - 1 + NX < 36:
                g_ = f - 1 + NX
                p("ds_read_b128 %s, v205 offset:%d" % (v(XR + 4 * (g_ % NX), 4), g_ * 1024))
    ng = p.newlabel("NOG")
    p("s_cmp_lg_u32 %s, 0" % s(S_HD))
    p("s_cbranch_scc1 %s" % ng)
    GA = 64
    for f0 in range(0, 36, 6):
        for f in range(f0, f0 + 6):
            p("ds_read_b128 %s, v205 offset:%d" % (v(XR + 4 * (f % 6), 4), f * 1024))
        p("s_waitcnt lgkmcnt(0)")
        for f in range(f0, f0 + 6):
            rt, ks = divmod(f, 18)
            acc = v(GA + 4 * rt, 4)
            p("v_mfma_f32_16x16x32_bf16 %s, %s, %s, %s" % (acc, v(GF + 4 * ks, 4), v(XR + 4 * (f % 6), 4), "0" if ks == 0 else acc))
    p("v_lshlrev_b32 v72, 2, %s" % v(V_LANE))
    for rt in range(2):
        g = GA + 4 * rt
        p("v_mul_f32 %s, s36, %s" % (v(g), v(g)))
        p("v_exp_f32 %s, -%s" % (v(g), v(g)))
        p("v_add_f32 %s, 1.0, %s" % (v(g), v(g)))
        p("v_rcp_f32 %s, %s" % (v(g), v(g)))
        p("s_mov_b64 exec, 0xffff")
        p("buffer_store_dword %s, v72, %s, %s offen offset:%d sc1" % (v(g), s(SWS, 4), s(S_GO), rt * 64))
        p("s_mov_b64 exec, -1")
    p("s_add_u32 %s, %s, 128" % (s(S_GO), s(S_GO)))
    p.label(ng)
    KA, XA, VB, XB, PQ = 64, 68, 72, 76, 80
    T = 88
    for rt in range(2):
        b = 20 * rt
        p("v_cvt_pk_bf16_f32 %s, %s, %s" % (v(VB + 2 * rt), v(b + 4), v(b + 5)))
        p("v_cvt_pk_bf16_f32 %s, %s, %s" % (v(VB + 2 * rt + 1), v(b + 6), v(b + 7)))
        p("v_cvt_pk_bf16_f32 %s, %s, %s" % (v(XB + 2 * rt), v(b + 8), v(b + 9)))
        p("v_cvt_pk_bf16_f32 %s, %s, %s" % (v(XB + 2 * rt + 1), v(b + 10), v(b + 11)))
        for i, r in enumerate(list(range(0, 4)) + list(range(8, 18))):
            phi(p, b + r, b + r, T + (i & 3))
        p("v_cvt_pk_bf16_f32 %s, %s, %s" % (v(KA + 2 * rt), v(b), v(b + 1)))
        p("v_cvt_pk_bf16_f32 %s, %s, %s" % (v(KA + 2 * rt + 1), v(b + 2), v(b + 3)))
        p("v_cvt_pk_bf16_f32 %s, %s, %s" % (v(XA + 2 * rt), v(b + 8), v(b + 9)))
        p("v_cvt_pk_bf16_f32 %s, %s, %s" % (v(XA + 2 * rt + 1), v(b + 10), v(b + 11)))
        p("v_cvt_pk_bf16_f32 %s, %s, %s" % (v(PQ + 2 * rt), v(b + 12), v(b + 13)))
        p("v_cvt_pk_bf16_f32 %s, %s, %s" % (v(PQ + 2 * rt + 1), v(b + 14), v(b + 15)))
        p("v_cvt_pk_bf16_f32 %s, %s, %s" % (v(T), v(b + 16), v(b + 17)))
        p("v_cndmask_b32 %s, 0, %s, s[40:41]" % (v(PQ + 4 + rt), v(T)))
    for dp, A_ in enumerate((KA, XA)):
        for E, B_ in enumerate((VB, XB, ONE)):
            acc = v(KV + 4 * (3 * dp + E), 4)
            p("v_mfma_f32_16x16x32_bf16 %s, %s, %s, %s" % (acc, v(A_, 4), v(B_, 4), acc))
    p("buffer_store_dwordx4 %s, %s, %s, %s offen" % (v(PQ, 4), v(V_L16), s(SWS, 4), s(S_PQ)))
    p("buffer_store_dwordx2 %s, %s, %s, %s offen offset:1024" % (v(PQ + 4, 2), v(V_L16), s(SWS, 4), s(S_PQ)))
    p("s_add_u32 %s, %s, 2048" % (s(S_PQ), s(S_PQ)))
    p("s_add_u32 %s, %s, 1" % (s(S_IT), s(S_IT)))
    p("s_cmp_lt_u32 %s, 8" % s(S_IT))
    p("s_cbranch_scc1 %s" % top)
    p("s_lshl_b32 %s, %s, 3" % (s(S_T0), s(S_HD)))
    p("s_mul_i32 %s, %s, 6144" % (s(S_OC), s(S_T0)))
    p("s_add_u32 %s, %s, 0x%x" % (s(S_OC), s(S_OC), OFF_KV))
    p("s_mul_i32 %s, %s, 6144" % (s(S_T0), s(S_Q)))
    p("s_add_u32 %s, %s, %s" % (s(S_T0), s(S_T0), s(S_OC)))
    p("s_add_u32 %s, %s, 3072" % (s(S_T1), s(S_T0)))
    for t in range(6):
        p("buffer_store_dwordx4 %s, %s, %s, %s offen offset:%d sc1" % (v(KV + 4 * t, 4), v(V_L16), s(SWS, 4), s((S_T0, S_T1)[t // 3]), (t % 3) * 1024))
    p("s_waitcnt vmcnt(0)")
    p("s_barrier")
    p("v_mov_b32 v204, 1")
    p("s_mov_b64 exec, 1")
    p("buffer_store_dword v204, v203, %s, %s offen sc1" % (s(SWS, 4), s(S_FLAG)))
    p("s_mov_b64 exec, -1")
    wstamp(p, 3, "s96")
    p("v_lshlrev_b32 v1, 3, %s" % v(V_L16))
    p("s_and_b32 %s, %s, 0xfffffc00" % (s(S_T0), s(S_FLAG)))
    poll_flags(p, 1, S_T0, 8, 1, 2, sleep=2)
    p("v_and_b32 v1, 0xf0, %s" % v(V_L16))
    for q in range(8):
        p("s_add_u32 %s, %s, %d" % (s(S_T0), s(S_OC), q * 6144))
        p("s_add_u32 %s, %s, %d" % (s(S_T1), s(S_OC), q * 6144 + 3072))
        for t in range(6):
            p("buffer_load_dwordx4 %s, %s, %s, %s offen offset:%d sc1" % (v(8 + 24 * q + 4 * t, 4), v(V_L16) if t < 3 else "v1", s(SWS, 4), s((S_T0, S_T1)[t // 3]), (t % 3) * 1024))
    p("s_waitcnt vmcnt(0)")
    AK_ = 104
    for r in range(24):
        for q in range(1, 8):
            p("v_add_f32 %s, %s, %s" % (v(8 + r), v(8 + r), v(8 + 24 * q + r)))
    for t in range(6):
        p("v_cvt_pk_bf16_f32 %s, %s, %s" % (v(AK_ + 2 * t), v(8 + 4 * t), v(9 + 4 * t)))
        p("v_cvt_pk_bf16_f32 %s, %s, %s" % (v(AK_ + 2 * t + 1), v(10 + 4 * t), v(11 + 4 * t)))
    wstamp(p, 4, "s96")
    p("s_sub_u32 %s, %s, 16384" % (s(S_PQ), s(S_PQ)))
    p("s_mul_i32 %s, %s, %d" % (s(S_OC), s(S_Q), 16 * 146 * 1024))
    p("s_add_u32 %s, %s, 0x%x" % (s(S_OC), s(S_OC), OFF_OC))
    p("s_lshr_b32 %s, %s, 1" % (s(S_T0), s(S_HD)))
    p("s_lshl_b32 %s, %s, 10" % (s(S_T0), s(S_T0)))
    p("s_and_b32 %s, %s, 1" % (s(S_T1), s(S_HD)))
    p("s_lshl_b32 %s, %s, 3" % (s(S_T1), s(S_T1)))
    p("s_add_u32 s42, %s, %s" % (s(S_T0), s(S_T1)))
    p("s_add_u32 s42, s42, %d" % (128 * 1024))
    p("s_add_u32 s42, s42, %s" % s(S_OC))
    p("s_lshr_b32 %s, %s, 2" % (s(S_T0), s(S_HD)))
    p("s_lshl_b32 %s, %s, 8" % (s(S_T0), s(S_T0)))
    p("s_and_b32 %s, %s, 3" % (s(S_T1), s(S_HD)))
    p("s_lshl_b32 %s, %s, 2" % (s(S_T1), s(S_T1)))
    p("s_add_u32 s43, %s, %s" % (s(S_T0), s(S_T1)))
    p("s_add_u32 s43, s43, %d" % (144 * 1024))
    p("s_add_u32 s43, s43, %s" % s(S_OC))
    p("v_mov_b32 v9, 0")
    p("v_mov_b32 v11, 0")
    PQR = 128
    for it in range(8):
        p("buffer_load_dwordx4 %s, %s, %s, %s offen sc1" % (v(PQR + 6 * it, 4), v(V_L16), s(SWS, 4), s(S_PQ)))
        p("buffer_load_dwordx2 %s, %s, %s, %s offen offset:1024 sc1" % (v(PQR + 6 * it + 4, 2), v(V_L16), s(SWS, 4), s(S_PQ)))
        p("s_add_u32 %s, %s, 2048" % (s(S_PQ), s(S_PQ)))
    p("s_waitcnt vmcnt(0)")
    for it in range(8):
        q0 = PQR + 6 * it
        p("v_mov_b32 v8, %s" % v(q0 + 4))
        p("v_mov_b32 v10, %s" % v(q0 + 5))
        o = 16 + 24 * (it & 1)
        for rt in range(2):
            for E in range(3):
                acc = v(o + 12 * rt + 4 * E, 4)
                p("v_mfma_f32_16x16x16_bf16 %s, %s, %s, 0" % (acc, v(AK_ + 2 * E, 2), v(q0 + 2 * rt, 2)))
                p("v_mfma_f32_16x16x16_bf16 %s, %s, %s, %s" % (acc, v(AK_ + 2 * (3 + E), 2), v(8 + 2 * rt, 2), acc))
        for rt in range(2):
            b = o + 12 * rt
            p("v_add_f32 %s, 0x%x, %s" % (v(b + 8), EPS6, v(b + 8)))
            p("v_rcp_f32 %s, %s" % (v(b + 8), v(b + 8)))
            for r in (0, 1, 2, 3, 6, 7):
                p("v_mul_f32 %s, %s, %s" % (v(b + r), v(b + r), v(b + 8)))
            p("v_cvt_pk_bf16_f32 %s, %s, %s" % (v(b), v(b), v(b + 1)))
            p("v_cvt_pk_bf16_f32 %s, %s, %s" % (v(b + 1), v(b + 2), v(b + 3)))
            p("v_cvt_pk_bf16_f32 %s, %s, %s" % (v(b + 2), v(b + 6), v(b + 7)))
            p("buffer_store_dwordx2 %s, %s, %s, s42 offen sc1" % (v(b, 2), v(V_L16), s(SWS, 4)))
            p("s_mov_b64 exec, 0xffff")
            p("buffer_store_dword %s, %s, %s, s43 offen sc1" % (v(b + 2), v(V_L16), s(SWS, 4)))
            p("s_mov_b64 exec, -1")
            p("s_add_u32 s42, s42, %d" % (146 * 1024))
            p("s_add_u32 s43, s43, %d" % (146 * 1024))
    p("s_waitcnt vmcnt(0)")
    p("s_barrier")
    p("s_add_u32 %s, %s, %d" % (s(S_FLAG), s(S_FLAG), F_B2 - F_KV))
    p("s_mov_b64 exec, 1")
    p("buffer_store_dword v204, v203, %s, %s offen sc1" % (s(SWS, 4), s(S_FLAG)))
    p("s_mov_b64 exec, -1")
    p("s_branch %s" % done_label)


def gen_attn(p, done_label):
    S_SEG, S_HD, S_BASE, S_QT, S_EH = S_B, S_C_, S_D, S_E, S_F
    S_T0, S_T1, S_T2 = S_H_, S_I, S_J
    SENT = 0xFFBFFFBF
    p.c("---- mem projection + x-row attention role")
    p("s_mov_b32 s36, 0x%x" % f2u(DH ** -0.5 * math.log2(math.e)))
    p("s_lshr_b32 %s, %s, 2" % (s(S_HD), s(S_RANK)))
    p("s_and_b32 %s, %s, 3" % (s(S_SEG), s(S_RANK)))
    p("s_and_b32 %s, %s, 1" % (s(S_QT), s(S_WV)))
    p("s_lshr_b32 %s, %s, 1" % (s(S_EH), s(S_WV)))
    MF, QF, KF, VF, KM, VM, SC, PJ = 0, 72, 88, 120, 136, 152, 160, 172
    p("v_and_b32 v1, 15, %s" % v(V_LANE))
    p("s_lshl_b32 %s, %s, 4" % (s(S_T0), s(S_QT)))
    p("v_add_u32 v1, %s, v1" % s(S_T0))
    p("v_lshrrev_b32 v2, 4, %s" % v(V_LANE))
    p("v_lshlrev_b32 v3, 2, v2")
    for kt in range(2):
        for r in range(4):
            p("v_add_u32 v4, %d, v3" % (16 * kt + r))
            p("v_cmp_gt_u32 %s, v4, v1" % s(40 + 8 * kt + 2 * r, 2))
    p("s_mov_b32 s56, 0")
    p("s_mov_b32 s57, -1")
    p("v_mov_b32 v203, 0")
    p("v_lshrrev_b32 v204, 1, %s" % v(V_L16))
    p("v_and_b32 v4, 7, %s" % v(V_LANE))
    p("v_lshl_add_u32 v4, v2, 3, v4")
    p("v_lshlrev_b32 v202, 4, v4")
    p("s_lshl_b32 s58, %s, 9" % s(S_HD))
    p("s_lshr_b32 s59, %s, 1" % s(S_HD))
    p("s_lshl_b32 s59, s59, 8")
    p("s_add_u32 s59, s59, %d" % (128 * 128))
    p("v_mov_b32 v206, 0xff800000")
    p("s_lshl_b32 %s, %s, 11" % (s(S_T0), s(S_WV)))
    p("v_add_u32 v240, %s, %s" % (s(S_T0), v(V_L16)))
    p("s_lshl_b32 %s, %s, 11" % (s(S_T0), s(S_EH)))
    p("v_add_u32 v241, %s, %s" % (s(S_T0), v(V_L16)))
    top = p.newlabel("AL")
    p.label(top)
    p("s_and_b32 %s, %s, 1" % (s(S_T0), s(S_SEG)))
    p("s_lshl_b32 %s, %s, 7" % (s(S_T0), s(S_T0)))
    p("s_add_u32 %s, %s, s59" % (s(S_T0), s(S_T0)))
    p("s_add_u32 %s, %s, 0x%x" % (s(S_T0), s(S_T0), OFF_FLAG + F_G1))
    p("s_lshr_b32 %s, %s, 1" % (s(S_T1), s(S_SEG)))
    p("s_add_u32 %s, %s, 1" % (s(S_T1), s(S_T1)))
    poll_flags(p, 203, S_T0, 1, None, 207, cmp_sgpr=S_T1)
    p("s_lshl_b32 %s, %s, 5" % (s(S_BASE), s(S_SEG)))
    p("s_add_u32 %s, %s, %s" % (s(S_BASE), s(S_BASE), s(S_HD)))
    p("s_lshl_b32 %s, %s, 13" % (s(S_T2), s(S_BASE)))
    p("s_lshl_b32 %s, %s, 12" % (s(S_T0), s(S_QT)))
    p("s_add_u32 %s, %s, %s" % (s(S_T0), s(S_T0), s(S_T2)))
    p("s_add_u32 %s, %s, 0x%x" % (s(S_T0), s(S_T0), OFF_QX))
    for i in range(4):
        p("buffer_load_dwordx4 %s, %s, %s, %s offen offset:%d sc1" % (v(QF + 4 * i, 4), v(V_L16), s(SWS, 4), s(S_T0), i * 1024))
    p("s_add_u32 %s, %s, 0x%x" % (s(S_T0), s(S_T2), OFF_KX))
    p("s_add_u32 %s, %s, 0x%x" % (s(S_T1), s(S_T2), OFF_KX + 4096))
    for i in range(8):
        p("buffer_load_dwordx4 %s, %s, %s, %s offen offset:%d sc1" % (v(KF + 4 * i, 4), v(V_L16), s(SWS, 4), s((S_T0, S_T1)[i // 4]), (i % 4) * 1024))
    p("s_lshl_b32 %s, %s, 12" % (s(S_T0), s(S_EH)))
    p("s_add_u32 %s, %s, %s" % (s(S_T0), s(S_T0), s(S_T2)))
    p("s_add_u32 %s, %s, 0x%x" % (s(S_T0), s(S_T0), OFF_VX))
    for i in range(4):
        p("buffer_load_dwordx4 %s, %s, %s, %s offen offset:%d sc1" % (v(VF + 4 * i, 4), v(V_L16), s(SWS, 4), s(S_T0), i * 1024))
    p("s_waitcnt vmcnt(4)")
    for kt in range(2):
        acc = v(SC + 4 * (1 + kt), 4)
        for ks in range(4):
            p("v_mfma_f32_16x16x32_bf16 %s, %s, %s, %s" % (acc, v(KF + 16 * kt + 4 * ks, 4), v(QF + 4 * ks, 4), "0" if ks == 0 else acc))
    p("s_mul_i32 %s, %s, 9216" % (s(S_T0), s(S_SEG)))
    p("s_add_u32 %s, %s, 0x%x" % (s(S_T0), s(S_T0), OFF_HIST))
    p("s_add_u32 %s, %s, 4096" % (s(S_T1), s(S_T0)))
    p("s_add_u32 %s, %s, 8192" % (s(S_T2), s(S_T0)))
    mp = p.newlabel("MP")
    mok = p.newlabel("MOK")
    pre = p.newlabel("MPRE")
    p.label(pre)
    p("buffer_load_dwordx4 %s, v202, %s, %s offen offset:512 sc1" % (v(MF + 68, 4), s(SWS, 4), s(S_T2)))
    p("s_waitcnt vmcnt(0)")
    p("v_cmp_eq_u32 vcc, 0x%x, %s" % (SENT, v(MF + 68)))
    p("s_cbranch_vccz %s" % mp)
    p("s_sleep 2")
    p("s_sub_u32 %s, %s, 1" % (s(S_BUDW), s(S_BUDW)))
    p("s_cbranch_scc0 %s" % pre)
    p("s_branch W_FAIL")
    p.label(mp)
    for ks in range(18):
        p("buffer_load_dwordx4 %s, v202, %s, %s offen offset:%d sc1" % (v(MF + 4 * ks, 4), s(SWS, 4), s((S_T0, S_T1, S_T2)[ks // 8]), (ks % 8) * 512))
    p("s_sub_u32 %s, %s, 1" % (s(S_BUDW), s(S_BUDW)))
    p("s_cbranch_scc1 W_FAIL")
    p("s_waitcnt vmcnt(0)")
    p("v_max3_u32 v207, %s, %s, %s" % (v(MF), v(MF + 1), v(MF + 2)))
    for k in range(3, 71, 2):
        p("v_max3_u32 v207, v207, %s, %s" % (v(MF + k), v(MF + k + 1)))
    p("v_max_u32 v207, v207, %s" % v(MF + 71))
    p("v_cmp_eq_u32 vcc, 0x%x, v207" % SENT)
    p("s_cbranch_vccnz %s" % mp)
    lv = p.newlabel("APV")
    le = p.newlabel("APE")
    p("s_cmp_lg_u32 %s, 0" % s(S_EH))
    p("s_cbranch_scc1 %s" % lv)
    for vtype in (0, 1):
        if vtype:
            p.label(lv)
        for ks in range(18):
            for t in range(4):
                acc = v(PJ + 4 * t, 4)
                c = "0" if ks == 0 else acc
                if vtype:
                    p("v_mfma_f32_16x16x32_bf16 %s, %s, %s, %s" % (acc, v(MF + 4 * ks, 4), bfrag(t * 18 + ks), c))
                else:
                    p("v_mfma_f32_16x16x32_bf16 %s, %s, %s, %s" % (acc, bfrag(t * 18 + ks), v(MF + 4 * ks, 4), c))
        if not vtype:
            p("s_branch %s" % le)
    p.label(le)
    for kt in range(2):
        for r in range(4):
            d = SC + 4 * (1 + kt) + r
            p("v_cndmask_b32 %s, %s, v206, %s" % (v(d), v(d), s(40 + 8 * kt + 2 * r, 2)))
    for i in range(8):
        p("v_cvt_pk_bf16_f32 %s, %s, %s" % (v(PJ + i), v(PJ + 2 * i), v(PJ + 2 * i + 1)))
    p("ds_write_b128 v240, %s" % v(PJ, 4))
    p("ds_write_b128 v240, %s offset:1024" % v(PJ + 4, 4))
    p("s_waitcnt lgkmcnt(0)")
    p("s_barrier")
    for ks in range(4):
        p("ds_read_b128 %s, %s offset:%d" % (v(KM + 4 * ks, 4), v(V_L16), ks * 1024))
    for i in range(2):
        p("ds_read_b128 %s, v241 offset:%d" % (v(VM + 4 * i, 4), 4096 + i * 1024))
    p("s_waitcnt lgkmcnt(2)")
    acc = v(SC, 4)
    for ks in range(4):
        p("v_mfma_f32_16x16x32_bf16 %s, %s, %s, %s" % (acc, v(KM + 4 * ks, 4), v(QF + 4 * ks, 4), "0" if ks == 0 else acc))
    PXr, PMr, RI, T0, T1 = 188, 192, 194, 195, 196
    b = SC
    n = 12
    for r in range(4):
        p("v_cndmask_b32 %s, %s, v206, s[56:57]" % (v(b + r), v(b + r)))
    M = T0
    p("v_max3_f32 %s, %s, %s, %s" % (v(M), v(b), v(b + 1), v(b + 2)))
    for k in range(3, 11, 2):
        p("v_max3_f32 %s, %s, %s, %s" % (v(M), v(M), v(b + k), v(b + k + 1)))
    p("v_max_f32 %s, %s, %s" % (v(M), v(M), v(b + 11)))
    for sw in ("16", "32"):
        p("v_mov_b32 %s, %s" % (v(T1), v(M)))
        p("v_permlane%s_swap_b32 %s, %s" % (sw, v(M), v(T1)))
        p("v_max_f32 %s, %s, %s" % (v(M), v(M), v(T1)))
    p("v_mul_f32 %s, s36, %s" % (v(M), v(M)))
    for r in range(n):
        p("v_fma_f32 %s, %s, s36, -%s" % (v(b + r), v(b + r), v(M)))
    for r in range(n):
        p("v_exp_f32 %s, %s" % (v(b + r), v(b + r)))
    L = RI
    p("v_add_f32 %s, %s, %s" % (v(L), v(b), v(b + 1)))
    for r in range(2, n):
        p("v_add_f32 %s, %s, %s" % (v(L), v(L), v(b + r)))
    for sw in ("16", "32"):
        p("v_mov_b32 %s, %s" % (v(T1), v(L)))
        p("v_permlane%s_swap_b32 %s, %s" % (sw, v(L), v(T1)))
        p("v_add_f32 %s, %s, %s" % (v(L), v(L), v(T1)))
    p("v_rcp_f32 %s, %s" % (v(L), v(L)))
    p("v_cvt_pk_bf16_f32 %s, %s, %s" % (v(PMr), v(b), v(b + 1)))
    p("v_cvt_pk_bf16_f32 %s, %s, %s" % (v(PMr + 1), v(b + 2), v(b + 3)))
    for i in range(4):
        p("v_cvt_pk_bf16_f32 %s, %s, %s" % (v(PXr + i), v(b + 4 + 2 * i), v(b + 5 + 2 * i)))
    p("s_waitcnt lgkmcnt(0)")
    p("s_lshl_b32 %s, %s, 1" % (s(S_T0), s(S_SEG)))
    p("s_add_u32 %s, %s, %s" % (s(S_T0), s(S_T0), s(S_QT)))
    p("s_mul_i32 %s, %s, %d" % (s(S_T0), s(S_T0), 146 * 1024))
    p("s_lshl_b32 %s, %s, 12" % (s(S_T1), s(S_HD)))
    p("s_add_u32 %s, %s, %s" % (s(S_T0), s(S_T0), s(S_T1)))
    p("s_lshl_b32 %s, %s, 11" % (s(S_T1), s(S_EH)))
    p("s_add_u32 %s, %s, %s" % (s(S_T0), s(S_T0), s(S_T1)))
    p("s_add_u32 %s, %s, 0x%x" % (s(S_T0), s(S_T0), OFF_OC))
    for et in range(4):
        p("v_mfma_f32_16x16x32_bf16 %s, %s, %s, 0" % (v(4 * et, 4), v(VF + 4 * et, 4), v(PXr, 4)))
    for et in range(4):
        p("v_mfma_f32_16x16x16_bf16 %s, %s, %s, %s" % (v(4 * et, 4), v(VM + 2 * et, 2), v(PMr, 2), v(4 * et, 4)))
    for tp in range(2):
        bb = 8 * tp
        for r in range(8):
            p("v_mul_f32 %s, %s, %s" % (v(bb + r), v(bb + r), v(RI)))
        d = 16 + 4 * tp
        for i in range(4):
            p("v_cvt_pk_bf16_f32 %s, %s, %s" % (v(d + i), v(bb + 2 * i), v(bb + 2 * i + 1)))
        p("buffer_store_dwordx4 %s, %s, %s, %s offen offset:%d sc1" % (v(d, 4), v(V_L16), s(SWS, 4), s(S_T0), tp * 1024))
    p("s_lshl_b32 %s, %s, 2" % (s(S_T0), s(S_BASE)))
    p("s_add_u32 %s, %s, 0x%x" % (s(S_T0), s(S_T0), OFF_FLAG + F_O))
    p("v_mov_b32 v207, 1")
    p("s_waitcnt vmcnt(0)")
    p("s_barrier")
    p("s_mov_b64 exec, 1")
    p("buffer_store_dword v207, v203, %s, %s offen sc1" % (s(SWS, 4), s(S_T0)))
    p("s_mov_b64 exec, -1")
    p("s_add_u32 %s, %s, 4" % (s(S_SEG), s(S_SEG)))
    p("s_cmp_lt_u32 %s, 64" % s(S_SEG))
    p("s_cbranch_scc1 %s" % top)
    p("s_branch %s" % done_label)


def gen_final(p, done_label, NG):
    S_U, S_SEG, S_NG, S_AB, S_BB, S_XB, S_PARW = S_A, S_B, S_C_, S_D, S_E, S_F, S_G
    S_T0, S_T1, S_T2 = S_H_, S_I, S_J
    p.c("---- final GEMM role")
    srd(p, SA, A_WO, H * DH * DM * 2)
    srd(p, SB, B_WO, DM * DM * 2)
    srd(p, SX, D_OUT, S * DM * 2)
    p("s_mov_b32 %s, 0" % s(S_SEG))
    p("s_mov_b32 %s, %s" % (s(S_NG), s(S_U)))
    for _ in range(NG - 1):
        p("s_cmp_ge_u32 %s, 18" % s(S_NG))
        p("s_cselect_b32 %s, 18, 0" % s(S_T0))
        p("s_cselect_b32 %s, 1, 0" % s(S_T1))
        p("s_sub_u32 %s, %s, %s" % (s(S_NG), s(S_NG), s(S_T0)))
        p("s_add_u32 %s, %s, %s" % (s(S_SEG), s(S_SEG), s(S_T1)))
    lane_fields(p, 1, 2, 3, 4)
    p("v_lshrrev_b32 v5, 2, %s" % v(V_LANE))
    p("v_mul_u32_u24 v6, 1152, v5")
    p("v_lshl_add_u32 v8, v4, 4, v6")
    p("s_lshl_b32 %s, %s, 6" % (s(S_T0), s(S_NG)))
    p("v_add_u32 v8, %s, v8" % s(S_T0))
    p("v_lshrrev_b32 v6, 1, v5")
    p("v_mul_u32_u24 v6, 18, v6")
    p("v_and_b32 v7, 1, v5")
    p("v_add3_u32 v6, v6, v7, 16")
    p("v_mul_u32_u24 v6, 1152, v6")
    p("v_lshl_add_u32 v9, v4, 4, v6")
    p("v_add_u32 v9, %s, v9" % s(S_T0))
    p("v_lshl_add_u32 v5, v2, 2, v3")
    p("v_lshlrev_b32 v5, 6, v5")
    p("v_lshl_add_u32 v5, v4, 3, v5")
    p("s_mul_i32 %s, %s, 36864" % (s(S_K), s(S_WV)))
    p("v_add_u32 v10, %s, v5" % s(S_K))
    p("v_lshl_add_u32 v5, v2, 3, v3")
    p("v_lshlrev_b32 v5, 6, v5")
    p("v_lshl_add_u32 v5, v4, 3, v5")
    p("v_add_u32 v11, %s, v5" % s(S_K))
    p("s_mul_i32 %s, %s, %d" % (s(S_L), s(S_WV), 1024 * 1152))
    p("s_waitcnt lgkmcnt(0)")

    SL = 9216

    def issue(c):
        slot = c % 4
        if c < 8:
            for i in range(8):
                p("s_add_u32 m0, %s, %d" % (s(S_K), slot * SL + i * 1024))
                p("s_add_u32 %s, %s, %d" % (s(S_T0), s(S_L), (128 * c + 16 * i) * 1152))
                p("buffer_load_dwordx4 v8, %s, %s offen lds" % (s(SA, 4), s(S_T0)))
            return 8
        if c == 8:
            p("s_mul_i32 %s, %s, %d" % (s(S_T1), s(S_WV), 144 * 1152))
            for i in range(9):
                p("s_add_u32 m0, %s, %d" % (s(S_K), slot * SL + i * 1024))
                p("s_add_u32 %s, %s, %d" % (s(S_T0), s(S_T1), 16 * i * 1152))
                p("buffer_load_dwordx4 v8, %s, %s offen lds" % (s(SB, 4), s(S_T0)))
            return 9
        p("s_mul_i32 %s, %s, %d" % (s(S_T1), s(S_WV), 16 * 18 * 1152))
        for i in range(2):
            p("s_add_u32 m0, %s, %d" % (s(S_K), slot * SL + i * 1024))
            p("s_add_u32 %s, %s, %d" % (s(S_T0), s(S_T1), 8 * 18 * 1152 * i))
            p("buffer_load_dwordx4 v9, %s, %s offen lds" % (s(SB, 4), s(S_T0)))
        return 2

    cnt = []
    for c in range(4):
        cnt.append(issue(c))
    for c in range(10):
        slot = c % 4
        p("s_waitcnt vmcnt(%d)" % sum(cnt[c + 1:]))
        if c < 8:
            for tp in range(4):
                for nt in range(2):
                    for hf in range(2):
                        p("ds_read_b64_tr_b16 %s, v10 offset:%d" % (bfrag((4 * c + tp) * 2 + nt, 2 * hf, 2), slot * SL + (32 * tp + 16 * hf) * 64 + nt * 32))
        elif c == 8:
            for i in range(4):
                for nt in range(2):
                    for hf in range(2):
                        p("ds_read_b64_tr_b16 %s, v10 offset:%d" % (bfrag((32 + i) * 2 + nt, 2 * hf, 2), slot * SL + (36 * i + 18 * hf) * 64 + nt * 32))
        else:
            for nt in range(2):
                for hf in range(2):
                    p("ds_read_b64_tr_b16 %s, v11 offset:%d" % (bfrag(36 * 2 + nt, 2 * hf, 2), slot * SL + 4 * hf * 64 + nt * 32))
        if len(cnt) < 10:
            p("s_waitcnt lgkmcnt(0)")
            cnt.append(issue(len(cnt)))
    p("s_waitcnt lgkmcnt(0)")
    p("s_barrier")
    wstamp(p, 4, "s96")
    p("v_lshlrev_b32 v1, 3, %s" % v(V_L16))
    p("s_mov_b32 %s, 0x%x" % (s(S_T0), OFF_FLAG + F_B2))
    poll_flags(p, 1, S_T0, 64, 1, 2)
    wstamp(p, 5, "s96")
    p("v_lshlrev_b32 v203, 2, %s" % v(V_LANE))
    p("v_and_b32 v204, 60, v203")
    p("v_and_b32 v1, 15, %s" % v(V_LANE))
    p("v_mul_u32_u24 v1, 1152, v1")
    p("v_lshrrev_b32 v2, 4, %s" % v(V_LANE))
    p("v_lshl_add_u32 v205, v2, 3, v1")
    p("s_and_b32 %s, %s, 1" % (s(S_T1), s(S_WV)))
    p("s_lshl_b32 %s, %s, 5" % (s(S_T0), s(S_T1)))
    p("s_lshl_b32 %s, %s, 6" % (s(S_T2), s(S_NG)))
    p("s_add_u32 %s, %s, %s" % (s(S_T0), s(S_T0), s(S_T2)))
    p("v_add_u32 v205, %s, v205" % s(S_T0))
    p("s_lshl_b32 %s, %s, 11" % (s(S_T0), s(S_WV)))
    p("v_add_u32 v206, %s, %s" % (s(S_T0), v(V_L16)))
    p("s_lshl_b32 %s, %s, 10" % (s(S_T0), s(S_T1)))
    p("v_add_u32 v207, %s, %s" % (s(S_T0), v(V_L16)))
    RING = 40
    ACA, ACB, GV = 0, 16, 32
    top = p.newlabel("FL")
    p.label(top)
    p("s_mul_i32 %s, %s, %d" % (s(S_T0), s(S_SEG), 146 * 1024))
    p("s_add_u32 %s, %s, 0x%x" % (s(S_T0), s(S_T0), OFF_OC))
    p("s_lshl_b32 %s, %s, 15" % (s(S_T1), s(S_WV)))
    p("s_add_u32 %s, %s, %s" % (s(S_AB), s(S_T0), s(S_T1)))
    p("s_lshl_b32 %s, %s, 12" % (s(S_T1), s(S_WV)))
    p("s_add_u32 %s, %s, %s" % (s(S_BB), s(S_T0), s(S_T1)))
    p("s_add_u32 %s, %s, %d" % (s(S_BB), s(S_BB), 128 * 1024))
    p("s_and_b32 %s, %s, 1" % (s(S_T1), s(S_WV)))
    p("s_lshl_b32 %s, %s, 10" % (s(S_T1), s(S_T1)))
    p("s_add_u32 %s, %s, %s" % (s(S_XB), s(S_T0), s(S_T1)))
    p("s_add_u32 %s, %s, %d" % (s(S_XB), s(S_XB), 144 * 1024))
    BR = RING + 128
    for i in range(4):
        p("buffer_load_dwordx4 %s, %s, %s, %s offen offset:%d sc1" % (v(BR + 4 * i, 4), v(V_L16), s(SWS, 4), s(S_BB), i * 1024))
    p("buffer_load_dwordx4 %s, %s, %s, %s offen sc1" % (v(BR + 16, 4), v(V_L16), s(SWS, 4), s(S_XB)))
    p("s_lshl_b32 %s, %s, 6" % (s(S_T0), s(S_SEG)))
    p("s_add_u32 %s, %s, 0x%x" % (s(S_T1), s(S_T0), OFF_G))
    p("buffer_load_dword %s, v204, %s, %s offen sc1" % (v(GV), s(SWS, 4), s(S_T1)))
    p("s_lshr_b32 %s, %s, 1" % (s(S_T0), s(S_SEG)))
    p("s_lshl_b32 %s, %s, 7" % (s(S_T0), s(S_T0)))
    p("s_lshl_b32 %s, %s, 5" % (s(S_T1), s(S_WV)))
    p("s_add_u32 %s, %s, %s" % (s(S_T0), s(S_T0), s(S_T1)))
    p("s_add_u32 %s, %s, 0x%x" % (s(S_T0), s(S_T0), OFF_FLAG + F_O))
    poll_flags(p, 203, S_T0, 8, 1, 34, sleep=1)
    for f in range(32):
        if f % 4 == 0:
            p("s_add_u32 %s, %s, %d" % (s(S_T2), s(S_AB), f * 1024))
        p("buffer_load_dwordx4 %s, %s, %s, %s offen offset:%d sc1" % (v(RING + 4 * f, 4), v(V_L16), s(SWS, 4), s(S_T2), (f % 4) * 1024))
    for i in range(5):
        for nt in range(2):
            acc = v(ACB + 4 * nt, 4)
            p("v_mfma_f32_16x16x32_bf16 %s, %s, %s, %s" % (acc, bfrag((32 + i) * 2 + nt), v(BR + 4 * i, 4), "0" if i == 0 else acc))
    for f in range(32):
        p("s_waitcnt vmcnt(%d)" % (31 - f))
        for nt in range(2):
            acc = v(ACA + 4 * nt, 4)
            p("v_mfma_f32_16x16x32_bf16 %s, %s, %s, %s" % (acc, bfrag(f * 2 + nt), v(RING + 4 * f, 4), "0" if f == 0 else acc))
    for i in range(8):
        p("v_sub_f32 %s, %s, %s" % (v(ACA + i), v(ACA + i), v(ACB + i)))
        p("v_fma_f32 %s, %s, %s, %s" % (v(ACA + i), v(ACA + i), v(GV), v(ACB + i)))
    for t in range(2):
        p("ds_write_b128 v206, %s offset:%d" % (v(ACA + 4 * t, 4), t * 1024))
    p("s_waitcnt lgkmcnt(0)")
    p("s_barrier")
    skip = p.newlabel("FSK")
    p("s_cmp_ge_u32 %s, 2" % s(S_WV))
    p("s_cbranch_scc1 %s" % skip)
    for ww in range(4):
        p("ds_read_b128 %s, v207 offset:%d" % (v(ACB + 4 * ww, 4), ww * 2048))
    p("s_mul_i32 %s, %s, %d" % (s(S_T0), s(S_SEG), 16 * 1152))
    p("s_waitcnt lgkmcnt(0)")
    for r in range(4):
        p("v_add_f32 %s, %s, %s" % (v(ACB + r), v(ACB + r), v(ACB + 4 + r)))
        p("v_add_f32 %s, %s, %s" % (v(ACB + 8 + r), v(ACB + 8 + r), v(ACB + 12 + r)))
        p("v_add_f32 %s, %s, %s" % (v(ACB + r), v(ACB + r), v(ACB + 8 + r)))
    p("v_cvt_pk_bf16_f32 v36, %s, %s" % (v(ACB), v(ACB + 1)))
    p("v_cvt_pk_bf16_f32 v37, %s, %s" % (v(ACB + 2), v(ACB + 3)))
    p("buffer_store_dwordx2 v[36:37], v205, %s, %s offen" % (s(SX, 4), s(S_T0)))
    p.label(skip)
    p("v_xor_b32 v206, 8192, v206")
    p("v_xor_b32 v207, 8192, v207")
    p("s_add_u32 %s, %s, %d" % (s(S_SEG), s(S_SEG), NG))
    p("s_cmp_lt_u32 %s, 128" % s(S_SEG))
    p("s_cbranch_scc1 %s" % top)
    p("s_branch %s" % done_label)
```

```python
import sys
from asmlib import *
from layout import *
import rec
import worker as wk

kw = dict(a.split("=") for a in sys.argv[2:] if "=" in a)
kw = {k: (int(x) if x.isdigit() else x) for k, x in kw.items()}
NP = kw.pop("NP", 2)
NG = kw.pop("NG", 5)
OVF = kw.pop("OVF", 32)
wk.TSTAMP[0] = bool(kw.pop("TS", 0))
NAME = "gated_mix__memory_aug_recurrent_mem_tr__linear_attn_block__prompt"

q = Prog()
NI = 64
q("s_cmp_ge_u32 s2, %d" % NI)
q("s_cbranch_scc1 I_DONE")
wk.srd(q, 4, D_WS, WS_BYTES)
q("s_lshl_b32 s3, s2, 12")
q("v_lshlrev_b32 v1, 4, v0")
q("v_add_u32 v1, s3, v1")
for r in range(4):
    q("v_mov_b32 v%d, 0x%x" % (4 + r, rec.SENT))
    q("v_mov_b32 v%d, 0" % (8 + r))
q("s_waitcnt lgkmcnt(0)")
for o in (OFF_PB2, OFF_PB2 + 0x40000, OFF_PB2 + PB_STR, OFF_PB2 + PB_STR + 0x40000):
    q("s_mov_b32 s8, 0x%x" % o)
    q("buffer_store_dwordx4 v[8:11], v1, s[4:7], s8 offen")
for o in (OFF_MB, OFF_MB + 0x40000, OFF_MB + 0x80000):
    q("s_mov_b32 s8, 0x%x" % o)
    q("buffer_store_dwordx4 v[4:7], v1, s[4:7], s8 offen")
q("s_cmp_ge_u32 s2, 16")
q("s_cbranch_scc1 I_DONE")
q("s_mov_b32 s8, 0x%x" % OFF_FLAG)
q("buffer_store_dwordx4 v[8:11], v1, s[4:7], s8 offen")
q.label("I_DONE")
q("s_endpgm")

p = Prog()
p("s_cmp_ge_u32 s2, 256")
p("s_cbranch_scc1 X_DONE")
wk.srd(p, 4, D_WS, WS_BYTES)
p("s_load_dwordx2 s[12:13], s[0:1], %d" % (D_DBG * 8))
p("s_mov_b32 s14, 256")
p("s_mov_b32 s15, 0x20000")
p("s_getreg_b32 s3, hwreg(HW_REG_XCC_ID, 0, 3)")
p("v_lshrrev_b32 v1, 6, v0")
p("v_mov_b32 v2, 1")
p("v_readfirstlane_b32 s20, v1")
p("s_lshl_b32 s21, s3, 4")
p("v_mov_b32 v3, s21")
p("v_mov_b32 v4, 0")
p("s_mov_b32 s22, 2000000")
p("s_mov_b32 s23, 0")
p("s_lshl_b32 s24, s2, 12")
p("v_lshlrev_b32 v5, 4, v0")
p("v_add_u32 v5, s24, v5")
for r in range(4):
    p("v_mov_b32 v%d, 0x%x" % (8 + r, rec.SENT))
    p("v_mov_b32 v%d, 0" % (12 + r))
p("s_mov_b32 s25, 0x%x" % OFF_PB2)
p("s_mov_b32 s26, 0x%x" % OFF_MB)
p("s_mov_b32 s27, 0x%x" % OFF_FLAG)
p("s_waitcnt lgkmcnt(0)")
p("s_cmp_lg_u32 s20, 0")
p("s_cbranch_scc1 ROLE_I")
p("s_mov_b64 exec, 1")
p("buffer_atomic_add v2, v3, s[12:15], 0 offen sc0")
p("s_mov_b64 exec, -1")
p.label("ROLE_I")
p("buffer_store_dwordx4 v[12:15], v5, s[4:7], s25 offen sc1")
p("s_cmp_ge_u32 s2, 160")
p("s_cbranch_scc1 ROLE_I2")
p("buffer_store_dwordx4 v[8:11], v5, s[4:7], s26 offen sc1")
p("s_cmp_ge_u32 s2, 16")
p("s_cbranch_scc1 ROLE_I2")
p("buffer_store_dwordx4 v[12:15], v5, s[4:7], s27 offen sc1")
p.label("ROLE_I2")
p("s_waitcnt vmcnt(0)")
p("s_barrier")
p("s_cmp_lg_u32 s20, 0")
p("s_cbranch_scc1 ROLE_WAIT")
p("s_mov_b64 exec, 1")
p("v_readfirstlane_b32 s24, v2")
p("v_mov_b32 v2, 1")
p("buffer_atomic_add v2, v4, s[12:15], s23 offen offset:128")
p("s_lshl_b32 s21, s3, 5")
p("s_add_u32 s21, s21, s24")
p("s_cmp_lt_u32 s24, %d" % OVF)
p("s_cbranch_scc1 ROLE_SET")
p("v_mov_b32 v5, 1")
p("buffer_atomic_add v5, v4, s[12:15], s23 offen offset:192 sc0")
p.label("ROLE_P")
p("buffer_load_dword v6, v4, s[12:15], s23 offen offset:128 sc1")
p("s_waitcnt vmcnt(0)")
p("v_readfirstlane_b32 s24, v6")
p("s_sub_u32 s22, s22, 1")
p("s_cbranch_scc1 ROLE_GIVEUP")
p("s_cmp_lt_u32 s24, 256")
p("s_cbranch_scc1 ROLE_P")
p("v_readfirstlane_b32 s25, v5")
for x in range(8):
    p("buffer_load_dword v6, v4, s[12:15], s23 offen offset:%d sc1" % (16 * x))
    p("s_waitcnt vmcnt(0)")
    p("v_readfirstlane_b32 s24, v6")
    p("s_min_u32 s24, s24, %d" % OVF)
    p("s_sub_u32 s26, 32, s24")
    p("s_add_u32 s21, s24, s25")
    p("s_add_u32 s21, s21, %d" % (32 * x))
    p("s_cmp_lt_u32 s25, s26")
    p("s_cbranch_scc1 ROLE_SET")
    p("s_sub_u32 s25, s25, s26")
p.label("ROLE_GIVEUP")
p("s_mov_b32 s21, 1000")
p.label("ROLE_SET")
p("v_mov_b32 v2, s21")
p("ds_write_b32 v4, v2")
p("s_mov_b64 exec, -1")
p("s_waitcnt lgkmcnt(0)")
p.label("ROLE_WAIT")
p("s_barrier")
p("ds_read_b32 v2, v4")
p("s_waitcnt lgkmcnt(0)")
p("v_readfirstlane_b32 s21, v2")
p("s_barrier")
p("s_cmp_ge_u32 s21, 256")
p("s_cbranch_scc1 X_DONE")
p("s_mov_b32 s96, s21")
if wk.TSTAMP[0]:
    wk.srd(p, 4, D_WS, WS_BYTES)
    p("s_waitcnt lgkmcnt(0)")
    wk.wstamp(p, 1, "s96")
p("s_cmp_ge_u32 s21, 32")
p("s_cbranch_scc1 WORKER")
p("s_mov_b32 %s, s21" % s(rec.S_H))
rec.gen_rec(p, census=OVF, ONE=1, TS=wk.TSTAMP[0], **kw)
p.label("WORKER")
p("s_sub_u32 %s, s21, 32" % s(wk.S_RANK))
wk.ONE[0] = True
wk.worker_setup(p)
p("s_cmp_ge_u32 %s, 160" % s(wk.S_RANK))
p("s_cbranch_scc1 W_BB")
wk.gen_gemm1(p, "W_NEXT")
p.label("W_BB")
wk.gen_bbranch(p, "W_FIN")
p.label("W_NEXT")
wk.wstamp(p, 3, "s96")
p("s_cmp_ge_u32 %s, 128" % s(wk.S_RANK))
p("s_cbranch_scc1 W_FINQ")
wk.gen_attn(p, "REC_DONE")
p.label("W_FINQ")
p("s_add_u32 %s, %s, 96" % (s(wk.S_RANK), s(wk.S_RANK)))
p.label("W_FIN")
wk.wstamp(p, 6, "s96")
p("s_sub_u32 %s, %s, 160" % (s(wk.S_A), s(wk.S_RANK)))
p("s_cmp_ge_u32 %s, %d" % (s(wk.S_A), 18 * NG))
p("s_cbranch_scc1 REC_DONE")
wk.gen_final(p, "REC_DONE", NG)
p.label("REC_FAIL")
p.label("W_FAIL")
p("s_load_dwordx2 s[12:13], s[0:1], %d" % (D_DBG * 8))
p("s_mov_b32 s14, 256")
p("s_mov_b32 s15, 0x20000")
p("v_mov_b32 v0, 0")
p("v_mov_b32 v1, s2")
p("v_add_u32 v1, 0x1000, v1")
p("s_waitcnt lgkmcnt(0)")
p("buffer_store_dword v1, v0, s[12:15], 0 offen offset:252")
p("s_endpgm")
p.label("REC_DONE")
wk.wstamp(p, 7, "s96")
p.label("X_DONE")
p("s_endpgm")
l0 = fix_hazards(q.lines)
l1 = fix_hazards(p.lines, verbose=True)
txt = build_file([("main_kernel", 256, 256, 163840)],
                 [("main_kernel", l1, 512, 102, 256)])
open(sys.argv[1], "w").write(txt)
print(len(l1), "lines", len(txt), "bytes")
```

```python
import math
import struct
from asmlib import *
from layout import *

L_MEM = 0
L_Q = 9216
L_O = L_Q
L_K = 11264
L_PX = L_K
L_PM = L_K + 512
L_RI = L_K + 1024
L_SX = 13312
L_WL = 16384
LDS_BYTES = 163840

MA = 0
AQ = 36
AK = 44
KXF = 52
QF = 60
VXF = 52
STG0 = 64
IDX = 72
L16 = 73
TRA = 74
QWA = 75
SXR = 76
T0, T1, T2 = 77, 78, 79

SWS = 4
SW = 8
S_H, S_W, S_STEP, S_BUD = 16, 17, 18, 19
S_MB, S_M0, S_KX0, S_KX1, S_VX, S_KM, S_VM, S_PB = 20, 21, 22, 23, 24, 25, 26, 27
S_U, S_RL, S_PUB = 28, 29, 30
S_T0 = 31
S_PUBM = 32
S_PART = 34
S_C = 36
S_W512 = 37
S_T1, S_T2, S_T3 = 38, 39, 40
S_STAMP = 42
S_STO = 44
S_SAFE = 45
S_PAR = 46
SENT = 0xFFBFFFBF
S_SENT = 47
S_HIST = 41
S_TF, S_KVF, S_KVC = 42, 43, 45
S_C2, S_Q2, S_NC = 92, 94, 91
S_PH, S_PMB, S_H288 = 90, 100, 101


def f2u(x):
    return struct.unpack("<I", struct.pack("<f", x))[0]


def wt_reg(mat, j, tt, r, n):
    i = (mat * 9 + j) * 2 + tt
    if i < 32:
        return a(8 * i + r, n)
    return v(80 + 8 * (i - 32) + r, n)


def wt(mat, j, tt):
    return wt_reg(mat, j, tt, 0, 8)


def slot_addr(t, w):
    if t < 16:
        return L_WL + t * 8192 + w * 2048
    return L_WL + 131072 + (t - 16) * 4096 + (w - 2) * 2048


def lref(addr):
    b, off = divmod(addr, 65536)
    if off > 65536 - 2048:
        raise ValueError("tile straddles base")
    return v([L16, T1, T2][b]), off


def smf(acc, A, B):
    return "v_smfmac_f32_16x16x64_bf16 %s, %s, %s, %s" % (v(acc, 4), v(A, 4), B, v(IDX))


def gen_rec(p, nsteps=63, stamps=False, st_flags="", EXP="sc1", NQKL=4, DEP=2, FD0=0, FD1=0, C1=6, RDEP=2,
            R0=0, R1=0, R2=0, Q0=0, Q1=0, Q2=0, hist=1, RT=0, flags=1, census=0, TS=0, KVS=0x40000, EXS=0x20000, PFW=2, NOEXP=0, B3=1, V0=1, V1=0, V2=0, F2E=1, TW=2, SETMID=1, WARM=0, AW=1, ONE=0, DBGT=0):
    VW = [x if x < 9 else -1 for x in (V0, V1, V2)]
    RD0 = [R0, R1, R2]
    RD1 = [Q0, Q1, Q2]
    ST = st_flags

    NSTAMP = 15

    def stamp(k):
        if not stamps or k >= 15:
            return
        p("%s %s" % ("s_memrealtime" if RT else "s_memtime", s(60 + 2 * k, 2)))

    def flush_stamps():
        if not stamps:
            return
        p("s_waitcnt lgkmcnt(0)")
        for k in range(NSTAMP):
            p("v_writelane_b32 %s, %s, %d" % (v(T2), s(60 + 2 * k), k))
        p("v_lshrrev_b32 %s, 2, %s" % (v(T1), v(L16)))
        p("s_mov_b64 exec, 0xfffff")
        p("buffer_store_dword %s, %s, %s, %s offen" % (v(T2), v(T1), s(SWS, 4), s(S_STO)))
        p("s_mov_b64 exec, -1")

    p.c("---- recurrence setup")
    p("s_load_dwordx2 %s, s[0:1], %d" % (s(SWS, 2), D_WS * 8))
    p("s_load_dwordx2 s[48:49], s[0:1], %d" % (A_WQ * 8))
    p("s_load_dwordx2 s[50:51], s[0:1], %d" % (A_WK * 8))
    p("s_load_dwordx2 s[52:53], s[0:1], %d" % (A_WV * 8))
    p("s_load_dwordx2 s[54:55], s[0:1], %d" % (A_WO * 8))
    p("s_load_dwordx2 s[56:57], s[0:1], %d" % (A_MEM0 * 8))
    p("v_lshrrev_b32 v1, 6, v0")
    p("v_and_b32 v0, 63, v0")
    p("v_readfirstlane_b32 %s, v1" % s(S_W))
    p("s_mov_b32 %s, %d" % (s(SWS + 2), WS_BYTES))
    p("s_mov_b32 %s, 0x20000" % s(SWS + 3))
    p("s_mov_b32 %s, %d" % (s(SW + 2), DM * H * DH * 2))
    p("s_mov_b32 %s, 0x20000" % s(SW + 3))
    p("s_mov_b32 %s, 0x00ff00ff" % s(S_PUBM))
    p("s_mov_b32 %s, 0x00ff00ff" % s(S_PUBM + 1))
    p("s_mov_b32 %s, 0xff00ff00" % s(S_PART))
    p("s_mov_b32 %s, 0xff00ff00" % s(S_PART + 1))
    p("s_mov_b32 %s, 0x%x" % (s(S_C), f2u(DH ** -0.5 * math.log2(math.e))))
    p("s_mov_b32 %s, 1000000" % s(S_BUD))
    p("s_mov_b32 %s, %s" % (s(S_C2), s(S_C)))
    p("s_mov_b32 %s, %s" % (s(S_C2 + 1), s(S_C)))
    p("s_mov_b32 %s, 0x3e800000" % s(S_Q2))
    p("s_mov_b32 %s, 0x3e800000" % s(S_Q2 + 1))
    p("s_xor_b32 %s, %s, 0x80000000" % (s(S_NC), s(S_C)))
    p("s_mov_b32 %s, 0x%x" % (s(S_SENT), SENT))
    p("s_lshl_b32 %s, %s, 9" % (s(S_W512), s(S_W)))
    p("v_and_b32 v1, 15, v0")
    p("v_lshrrev_b32 v2, 4, v0")
    p("v_bfe_u32 v3, v0, 2, 2")
    p("v_and_b32 v4, 3, v0")
    p("v_lshlrev_b32 %s, 4, v0" % v(L16))
    p("v_mov_b32 %s, 0x4444" % v(IDX))
    p("v_mov_b32 v5, 0xeeee")
    p("v_cndmask_b32 %s, %s, v5, %s" % (v(IDX), v(IDX), s(S_PART, 2)))
    p("v_lshl_add_u32 v5, v2, 2, v3")
    p("v_lshlrev_b32 v5, 4, v5")
    p("v_and_b32 v6, 1, v4")
    p("v_lshl_add_u32 %s, v6, 3, v5" % v(TRA))
    p("v_lshrrev_b32 v5, 5, v0")
    p("v_lshl_add_u32 v5, v5, 4, v1")
    p("v_lshlrev_b32 v5, 4, v5")
    p("v_and_b32 v6, 1, v2")
    p("v_lshl_add_u32 %s, v6, 3, v5" % v(QWA))
    p("v_and_b32 v5, 7, v0")
    p("v_lshl_add_u32 v5, v2, 3, v5")
    p("v_lshlrev_b32 %s, 4, v5" % v(SXR))
    p("s_waitcnt lgkmcnt(0)")

    p("s_lshl_b32 %s, %s, 2" % (s(S_T0), s(S_H)))
    p("s_add_u32 %s, %s, %s" % (s(S_T0), s(S_T0), s(S_W)))
    p("s_lshl_b32 %s, %s, 13" % (s(S_T0), s(S_T0)))
    p("s_add_u32 %s, %s, 0x%x" % (s(S_STO), s(S_T0), OFF_STAMP))

    p("s_lshl_b32 %s, %s, 5" % (s(S_U), s(S_W)))
    p("s_add_u32 %s, %s, %s" % (s(S_U), s(S_U), s(S_H)))

    p("s_load_dwordx2 s[12:13], s[0:1], %d" % (D_DBG * 8))
    p("s_mov_b32 s14, 256")
    p("s_mov_b32 s15, 0x20000")
    p("s_waitcnt lgkmcnt(0)")

    p.c("---- weight load through LDS with transposing reads")
    p("v_and_b32 v5, 1, v2")
    p("s_lshl_b32 %s, %s, 1" % (s(S_T0), s(S_W)))
    p("v_or_b32 v5, %s, v5" % s(S_T0))
    p("v_lshlrev_b32 v5, 1, v5")
    p("v_xor_b32 v5, v5, v1")
    p("v_lshlrev_b32 v5, 4, v5")
    p("v_lshl_add_u32 v8, v2, 13, v5")
    p("s_lshl_b32 %s, %s, 15" % (s(S_T0), s(S_W)))
    p("s_lshl_b32 %s, %s, 8" % (s(S_T1), s(S_H)))
    p("s_add_u32 %s, %s, %s" % (s(S_T0), s(S_T0), s(S_T1)))
    p("v_add_u32 v8, %s, v8" % s(S_T0))
    p("v_and_b32 v5, 1, v2")
    p("s_and_b32 %s, %s, 1" % (s(S_T0), s(S_W)))
    p("s_lshl_b32 %s, %s, 1" % (s(S_T0), s(S_T0)))
    p("v_or_b32 v5, %s, v5" % s(S_T0))
    p("v_lshlrev_b32 v5, 2, v5")
    p("v_xor_b32 v5, v5, v1")
    p("v_lshlrev_b32 v5, 4, v5")
    p("v_mul_u32_u24 v6, 1152, v2")
    p("v_add_u32 v9, v5, v6")
    p("s_mul_i32 %s, %s, %d" % (s(S_T0), s(S_W), 16 * 1152))
    p("s_mul_i32 %s, %s, 147456" % (s(S_T1), s(S_H)))
    p("s_add_u32 %s, %s, %s" % (s(S_T0), s(S_T0), s(S_T1)))
    p("v_add_u32 v9, %s, v9" % s(S_T0))
    p("v_and_b32 v5, 7, v0")
    p("v_lshlrev_b32 v5, 4, v5")
    p("v_lshrrev_b32 v6, 3, v0")
    p("v_mul_u32_u24 v6, 1152, v6")
    p("s_mul_i32 %s, %s, %d" % (s(S_T0), s(S_W), 32 * 1152))
    p("s_add_u32 %s, %s, %s" % (s(S_T0), s(S_T0), s(S_T1)))
    p("s_add_u32 %s, %s, 1024" % (s(S_T0), s(S_T0)))
    p("v_add_u32 v6, %s, v6" % s(S_T0))
    p("v_add_u32 v60, v5, v6")
    p("v_xor_b32 v5, 64, v5")
    p("v_add_u32 v61, v5, v6")
    p("v_lshrrev_b32 v5, 1, v2")
    p("v_lshlrev_b32 v5, 4, v5")
    p("v_and_b32 v6, 1, v2")
    p("v_lshl_add_u32 v5, v6, 2, v5")
    p("v_and_b32 v7, 1, v3")
    p("v_add_u32 v5, v5, v7")
    p("v_lshrrev_b32 v10, 1, v3")
    p("v_lshl_add_u32 v5, v10, 3, v5")
    p("v_lshl_or_b32 v11, v6, 1, v7")
    p("v_lshl_or_b32 v11, v10, 2, v11")
    p("s_lshl_b32 %s, %s, 1" % (s(S_T0), s(S_W)))
    p("v_xor_b32 v12, %s, v11" % s(S_T0))
    p("v_lshlrev_b32 v12, 5, v12")
    p("v_lshl_add_u32 v12, v4, 3, v12")
    p("v_lshl_add_u32 v12, v5, 8, v12")
    p("v_add_u32 v12, %d, v12" % L_WL)
    p("v_xor_b32 v13, 32, v12")
    p("v_lshrrev_b32 v5, 1, v2")
    p("v_lshl_add_u32 v5, v5, 2, v7")
    p("v_lshl_add_u32 v5, v6, 4, v5")
    p("v_lshl_or_b32 v14, v6, 1, v7")
    p("v_lshl_or_b32 v14, v14, 1, v10")
    p("s_lshl_b32 %s, %s, 1" % (s(S_T0), s(S_W)))
    p("v_xor_b32 v14, %s, v14" % s(S_T0))
    p("v_lshlrev_b32 v14, 5, v14")
    p("v_lshl_add_u32 v14, v4, 3, v14")
    p("v_lshl_add_u32 v14, v5, 8, v14")
    p("v_add_u32 v14, %d, v14" % L_WL)
    p("v_lshl_or_b32 v62, v6, 1, v10")
    p("v_lshlrev_b32 v62, 5, v62")
    p("v_lshl_add_u32 v62, v4, 3, v62")
    p("v_lshl_add_u32 v62, v5, 7, v62")
    p("s_lshl_b32 %s, %s, 12" % (s(S_T0), s(S_W)))
    p("s_add_u32 %s, %s, %d" % (s(S_T0), s(S_T0), L_WL + 8 * 16384))
    p("v_add_u32 v62, %s, v62" % s(S_T0))
    p("v_xor_b32 v63, 64, v62")
    p("v_add_u32 v64, %s, %s" % (s(S_T0), v(L16)))
    p("s_lshl_b32 %s, %s, 12" % (s(S_T3), s(S_W)))
    p("s_lshl_b32 %s, %s, 11" % (s(S_T0), s(S_W)))
    p("v_add_u32 v15, %s, %s" % (s(S_T0), v(L16)))
    p("v_add_u32 v15, %d, v15" % L_WL)
    p("s_lshl_b32 %s, %s, 10" % (s(S_T2), s(S_W)))

    cur_mat = [None]

    def set_mat(mi):
        if cur_mat[0] != mi:
            p("s_mov_b32 %s, s%d" % (s(SW), 48 + 2 * mi))
            p("s_mov_b32 %s, s%d" % (s(SW + 1), 49 + 2 * mi))
            cur_mat[0] = mi

    def issue_group(G):
        slot = G % 9
        if G < 27:
            mi, j = divmod(G, 9)
            set_mat(mi)
            for qq in range(4):
                p("s_add_u32 m0, %s, %d" % (s(S_T2), L_WL + slot * 16384 + qq * 4096))
                p("s_mov_b32 %s, %d" % (s(S_T0), (64 * j + 16 * qq) * 8192))
                p("buffer_load_dwordx4 v8, %s, %s offen lds" % (s(SW, 4), s(S_T0)))
        else:
            set_mat(3)
            tau, kp = divmod(slot, 2)
            for qq in range(4):
                p("s_add_u32 m0, %s, %d" % (s(S_T3), L_WL + slot * 16384 + qq * 1024))
                if slot < 8:
                    p("s_mov_b32 %s, %d" % (s(S_T0), (64 * kp + 4 * qq) * 1152 + tau * 256))
                    p("buffer_load_dwordx4 v9, %s, %s offen lds" % (s(SW, 4), s(S_T0)))
                else:
                    p("s_mov_b32 %s, %d" % (s(S_T0), 8 * qq * 1152))
                    p("buffer_load_dwordx4 v%d, %s, %s offen lds" % (60 + (qq >> 1), s(SW, 4), s(S_T0)))

    NG = 36
    for G in range(9):
        issue_group(G)
    issued = 9
    for G in range(NG):
        slot = G % 9
        p("s_waitcnt vmcnt(%d) lgkmcnt(0)" % (4 * (issued - G - 1)))
        p("s_barrier")
        if G >= 1 and issued < NG:
            issue_group(issued)
            issued += 1
        if G >= 28:
            pb = 20 + 16 * ((G - 1) & 1)
            ps = (G - 1) % 9
            p("v_add_u32 v18, %d, v15" % (ps * 16384))
            for j2 in range(2):
                for hf in range(2):
                    p("ds_write_b128 v18, %s offset:%d" % (v(pb + 8 * j2 + 4 * hf, 4), j2 * 8192 + hf * 1024))
        if G < 27:
            mi, j = divmod(G, 9)
            p("v_add_u32 v16, %d, v12" % (slot * 16384))
            p("v_add_u32 v17, %d, v13" % (slot * 16384))
            for tt in range(2):
                for rd in range(4):
                    off = (rd & 1) * 512 + (rd >> 1) * 8192
                    p("ds_read_b64_tr_b16 %s, v%d offset:%d" % (wt_reg(mi, j, tt, 2 * rd, 2), 16 + tt, off))
        else:
            b = 20 + 16 * (G & 1)
            if slot < 8:
                p("v_add_u32 v16, %d, v14" % (slot * 16384))
                for j2 in range(2):
                    for rd in range(4):
                        off = j2 * 8192 + (rd & 1) * 512 + (rd >> 1) * 2048
                        p("ds_read_b64_tr_b16 %s, v16 offset:%d" % (v(b + 8 * j2 + 2 * rd, 2), off))
            else:
                for pp in range(2):
                    for rd in range(4):
                        off = (rd & 1) * 256 + (rd >> 1) * 1024
                        p("ds_read_b64_tr_b16 %s, v%d offset:%d" % (v(b + 8 * pp + 2 * rd, 2), 62 + pp, off))
    p("s_waitcnt lgkmcnt(0)")
    p("s_barrier")
    pb = 20 + 16 * ((NG - 1) & 1)
    for pp in range(2):
        for hf in range(2):
            p("ds_write_b128 v64, %s offset:%d" % (v(pb + 8 * pp + 4 * hf, 4), pp * 2048 + hf * 1024))


    p("s_mov_b32 s60, s56")
    p("s_mov_b32 s61, s57")
    p("s_mov_b32 s62, 9216")
    p("s_mov_b32 s63, 0x20000")
    p("v_and_b32 v5, 1, v2")
    p("v_lshlrev_b32 v5, 3, v5")
    p("v_lshrrev_b32 v6, 1, v2")
    p("v_lshl_add_u32 v7, v6, 2, v5")
    p("v_and_b32 v5, 7, v0")
    p("v_mul_u32_u24 v6, 1152, v5")
    p("v_add_u32 v6, v6, v7")
    p("v_lshl_add_u32 v66, v5, 4, v7")
    p("s_lshl_b32 %s, %s, 4" % (s(S_T0), s(S_U)))
    p("buffer_load_dword v65, v6, s[60:63], %s offen" % s(S_T0))
    p("v_mov_b32 v67, 0")
    if ONE:
        p("buffer_load_dword v68, v67, s[12:15], 0 offen offset:128 sc1")

    p("s_mov_b32 %s, 0" % s(S_STEP))
    p("s_mov_b32 %s, 0x%x" % (s(S_PAR), OFF_PB2))
    p("s_mov_b32 %s, 1" % s(S_PH))
    p("s_mov_b32 %s, 0x%x" % (s(S_MB), OFF_MB))
    p("s_lshl_b32 %s, %s, 13" % (s(S_T0), s(S_H)))
    p("s_add_u32 %s, %s, 0x%x" % (s(S_VX), s(S_T0), OFF_VX))
    p("s_add_u32 %s, %s, 0x%x" % (s(S_M0), s(S_T0), OFF_KX + KVS))
    p("s_add_u32 %s, %s, 0x%x" % (s(S_KX0), s(S_T0), OFF_KX))
    p("s_add_u32 %s, %s, 4096" % (s(S_KX1), s(S_KX0)))
    p("s_lshl_b32 %s, %s, 12" % (s(S_T0), s(S_H)))
    p("s_add_u32 %s, %s, 0x%x" % (s(S_KM), s(S_T0), OFF_KM))
    p("s_add_u32 %s, %s, 0x%x" % (s(S_VM), s(S_T0), OFF_VM))
    p("s_lshl_b32 %s, %s, 7" % (s(S_PUB), s(S_U)))
    p("s_mul_i32 %s, %s, 288" % (s(S_H288), s(S_H)))
    p("s_mov_b32 %s, 0x%x" % (s(S_HIST), OFF_HIST))
    p("s_lshl_b32 %s, %s, 7" % (s(S_TF), s(S_H)))
    p("s_add_u32 %s, %s, 0x%x" % (s(S_TF), s(S_TF), OFF_FLAG + F_TEAM))
    p("s_lshl_b32 %s, %s, 9" % (s(S_KVF), s(S_H)))
    p("s_add_u32 %s, %s, 0x%x" % (s(S_KVF), s(S_KVF), OFF_FLAG + F_G1))
    p("s_mov_b32 %s, 0" % s(S_KVC))
    p("v_add_u32 %s, 65536, %s" % (v(T1), v(L16)))
    p("v_add_u32 %s, 131072, %s" % (v(T2), v(L16)))
    p("s_waitcnt lgkmcnt(0)")
    p("s_barrier")
    for w in range(1, 4):
        p("s_cmp_eq_u32 %s, %d" % (s(S_W), w))
        p("s_cbranch_scc1 REC_W%d" % w)
    MODES = ["", "sc1"] if census else [st_flags]

    def budget():
        p("s_sub_u32 %s, %s, 1" % (s(S_BUD), s(S_BUD)))
        p("s_cbranch_scc1 REC_FAIL")

    def bg(q, n=1):
        for _ in range(n):
            if q:
                x = q.pop(0)
                if callable(x):
                    x()
                else:
                    p(x)

    def combine(acc):
        return ([("v_permlane32_swap_b32 %s, %s" % (v(acc + r), v(acc + 4 + r))) for r in range(4)]
                + [("v_add_f32 %s, %s, %s" % (v(acc + r), v(acc + r), v(acc + 4 + r))) for r in range(4)]
                + ["v_cvt_pk_bf16_f32 %s, %s, %s" % (v(acc), v(acc), v(acc + 1)),
                   "v_cvt_pk_bf16_f32 %s, %s, %s" % (v(acc + 1), v(acc + 2), v(acc + 3))])

    def zero(r, n):
        return ["v_mov_b64 %s, 0" % v(r + i, 2) for i in range(0, n, 2)]

    class LG:
        def __init__(self):
            self.log = []

        def op(self, text, tag):
            p(text)
            self.log.append(tag)

        def wait(self, *tags):
            hit = [i for i, x in enumerate(self.log) if x in tags]
            if hit:
                k = max(hit)
                n = len(self.log) - 1 - k
                assert n <= 15
                p("s_waitcnt lgkmcnt(%d)" % n)
                self.log = self.log[k + 1:]

        def all(self):
            if self.log:
                p("s_waitcnt lgkmcnt(0)")
            self.log = []

    def bases():
        p("v_add_u32 %s, 65536, %s" % (v(T1), v(L16)))
        p("v_add_u32 %s, 131072, %s" % (v(T2), v(L16)))

    MSK = [48, 50, 52, 54]

    def masks(bases_, tmps, half=False):
        for i, b in enumerate(bases_):
            if half:
                p("v_max_u32 %s, %s, %s" % (v(tmps[i]), v(b), v(b + 2)))
            else:
                p("v_max3_u32 %s, %s, %s, %s" % (v(tmps[i]), v(b), v(b + 1), v(b + 2)))
                p("v_max_u32 %s, %s, %s" % (v(tmps[i]), v(tmps[i]), v(b + 3)))
        for i, b in enumerate(bases_):
            p("v_cmp_eq_u32 %s, %s, %s" % (s(MSK[i], 2), s(S_SENT), v(tmps[i])))
        if len(bases_) == 1:
            p("s_or_b64 s[56:57], %s, %s" % (s(MSK[0], 2), s(MSK[0], 2)))
        else:
            p("s_or_b64 s[56:57], %s, %s" % (s(MSK[0], 2), s(MSK[1], 2)))
        for i in range(2, len(bases_)):
            p("s_or_b64 s[56:57], s[56:57], %s" % s(MSK[i], 2))

    def kexport():
        if NOEXP:
            return
        p("s_mov_b64 exec, %s" % s(S_PUBM, 2))
        for ks in range(4):
            p("buffer_store_dwordx4 %s, %s, %s, %s offen offset:%d %s" % (v(52 + 4 * ks, 4), v(SXR), s(SWS, 4), s(S_KM), ks * 512, EXP))
        p("s_mov_b64 exec, -1")
        p("s_add_u32 %s, %s, %d" % (s(S_KM), s(S_KM), EXS))

    def teamflag(sval):
        p("v_mov_b32 %s, %s" % (v(T0), s(sval)))
        p("s_mov_b64 exec, 1")
        p("buffer_store_dword %s, %s, %s, %s offen sc1" % (v(T0), v(L16), s(SWS, 4), s(S_TF)))
        p("s_mov_b64 exec, -1")

    def kv_wait(sseg):
        if not flags:
            return
        ok = p.newlabel("KVOK")
        top = p.newlabel("KVP")
        p("s_cmp_ge_u32 %s, 64" % s(sseg))
        p("s_cbranch_scc1 %s" % ok)
        p.label(top)
        p("s_cmp_gt_u32 %s, %s" % (s(S_KVC), s(sseg)))
        p("s_cbranch_scc1 %s" % ok)
        p("v_lshlrev_b32 %s, 3, %s" % (v(T0), v(L16)))
        p("s_mov_b64 exec, 15")
        p("buffer_load_dword %s, %s, %s, %s offen sc1" % (v(T0), v(T0), s(SWS, 4), s(S_KVF)))
        p("s_mov_b64 exec, -1")
        p("s_waitcnt vmcnt(0)")
        p("v_readlane_b32 s56, %s, 0" % v(T0))
        for i in range(1, 4):
            p("v_readlane_b32 s57, %s, %d" % (v(T0), i))
            p("s_min_u32 s56, s56, s57")
        p("s_lshl_b32 %s, s56, 2" % s(S_KVC))
        budget()
        p("s_branch %s" % top)
        p.label(ok)

    H1 = [0, 1, 2, 3]
    H2 = [4, 5, 6, 7, 8]

    def plan(w):
        own1 = {0: [5, 6], 1: [7, 8], 2: [3, 4], 3: [0, 1, 2]}[w]
        own2 = []
        h1ord = own1
        h2ord = [j for j in range(9) if j not in own1]
        seqA = [(m, j, tt) for m in range(2) for j in h1ord for tt in range(2)]
        seqQ = [(0, j, tt) for j in h2ord for tt in range(2)]
        seqK = [(1, j, tt) for j in h2ord for tt in range(2)]
        seq = seqA + seqQ + seqK
        if w < 3:
            lds_qk = [seq[i] for i in (0, 8, 16, 24)][:NQKL]
            reg_wo = [4, 5, 10, 11][:NQKL]
            swaps = list(zip(lds_qk, reg_wo))
        else:
            lds_qk = []
            reg_wo = list(range(18))
            swaps = [((2, k // 2, k % 2), k) for k in range(18)]
        return own1, own2, h1ord, h2ord, seqA, seqQ, seqK, lds_qk, reg_wo, swaps

    def gen_wave(w):
        own1, own2, h1ord, h2ord, seqA, seqQ, seqK, lds_qk, reg_wo, swaps = plan(w)
        p.label("REC_W%d" % w)
        if WARM:
            p("v_lshlrev_b32 v70, 3, %s" % v(L16))
            p("s_mul_i32 s56, %s, 9216" % s(S_H))
            p("s_add_u32 s56, s56, 0x%x" % (OFF_PB2 + (w & 1) * PB_STR + (w >> 1) * 1024))
            p("buffer_load_dword v64, v70, %s, s56 offen sc1" % s(SWS, 4))
            if w == 0:
                p("s_lshl_b32 s56, %s, 11" % s(S_H))
                p("s_add_u32 s56, s56, 0x%x" % OFF_MB)
                p("s_mov_b64 exec, 0xffff")
                p("buffer_load_dword v65, v70, %s, s56 offen sc1" % s(SWS, 4))
                p("s_mov_b64 exec, -1")
            p("s_getpc_b64 s[56:57]")
            p.label("REC_PC%d" % w)
            p("s_add_u32 s56, s56, W%d%s_PRE-REC_PC%d" % (w, MODES[0], w))
            p("s_addc_u32 s57, s57, 0")
            p("global_load_dword v66, v70, s[56:57]")
        for base in range(0, len(swaps), 4):
            grp = swaps[base:base + 4]
            for i, (tile, t) in enumerate(grp):
                b, off = lref(slot_addr(t, w))
                p("ds_read_b128 %s, %s offset:%d" % (v(8 * i, 4), b, off))
                p("ds_read_b128 %s, %s offset:%d" % (v(8 * i + 4, 4), b, off + 1024))
            p("s_waitcnt lgkmcnt(0)")
            for i, (tile, t) in enumerate(grp):
                b, off = lref(slot_addr(t, w))
                p("ds_write_b128 %s, %s offset:%d" % (b, wt_reg(*tile, 0, 4), off))
                p("ds_write_b128 %s, %s offset:%d" % (b, wt_reg(*tile, 4, 4), off + 1024))
            p("s_waitcnt lgkmcnt(0)")
            for i, (tile, t) in enumerate(grp):
                for r in range(8):
                    d = wt_reg(*tile, r, 1)
                    p("%s %s, %s" % ("v_accvgpr_write_b32" if d[0] == "a" else "v_mov_b32", d, v(8 * i + r)))
        if ONE:
            top = p.newlabel("RWI")
            ok = p.newlabel("RWO")
            p.label(top)
            p("s_waitcnt vmcnt(0)")
            p("v_readfirstlane_b32 s64, v68")
            p("s_cmp_ge_u32 s64, 256")
            p("s_cbranch_scc1 %s" % ok)
            p("buffer_load_dword v68, v67, s[12:15], 0 offen offset:128 sc1")
            budget()
            p("s_branch %s" % top)
            p.label(ok)
        if w < 3:
            lab = p.newlabel("NOPUB0")
            p("s_cmp_ge_u32 %s, 72" % s(S_U))
            p("s_cbranch_scc1 %s" % lab)
            p("s_waitcnt vmcnt(0)")
            p("v_cmp_eq_u32 vcc, 0x%x, v65" % SENT)
            p("v_mov_b32 v67, 0xffffffff")
            p("v_cndmask_b32 v65, v65, v67, vcc")
            p("s_add_u32 s64, %s, 0x%x" % (s(S_PUB), OFF_MB))
            p("s_mov_b64 exec, %s" % s(S_PUBM, 2))
            p("buffer_store_dword v65, v66, %s, s64 offen sc1" % s(SWS, 4))
            p("s_mov_b64 exec, -1")
            p.label(lab)
        if w == PFW:
            kv_wait(S_STEP)
            if WARM:
                p("s_add_u32 s56, %s, 0x%x" % (s(S_KX0), OFF_VX - OFF_KX))
                p("buffer_load_dword v67, v70, %s, %s offen sc1" % (s(SWS, 4), s(S_KX0)))
                p("buffer_load_dword v68, v70, %s, s56 offen sc1" % s(SWS, 4))
        if WARM:
            p("s_waitcnt vmcnt(0)")
        p("s_barrier")
        if DBGT:
            p("s_memrealtime s[98:99]")
            p("s_waitcnt lgkmcnt(0)")
            p("s_mov_b32 s65, s98")
        if TS:
            p("s_memrealtime s[98:99]")
            p("s_lshl_b32 s97, s96, 8")
            p("s_add_u32 s97, s97, 0x%x" % (OFF_STAMP + 0x200000 + 8))
            p("s_waitcnt lgkmcnt(0)")
            p("v_mov_b32 %s, s98" % v(T0))
            p("s_mov_b64 exec, 1")
            p("buffer_store_dword %s, %s, %s, s97 offen" % (v(T0), v(L16), s(SWS, 4)))
            p("s_mov_b64 exec, -1")
        if census:
            top = p.newlabel("CEN")
            fast = p.newlabel("CENF")
            p("s_mov_b32 s58, 0x%x" % (OFF_FLAG + F_ROLE))
            p.label(top)
            p("s_mov_b64 exec, 1")
            if ONE:
                p("v_mov_b32 %s, 256" % v(T0))
                p("buffer_load_dword %s, %s, s[12:15], 0 offen sc1" % (v(QF), v(L16)))
            else:
                p("buffer_load_dword %s, %s, %s, s58 offen offset:1024 sc1" % (v(T0), v(L16), s(SWS, 4)))
                p("s_waitcnt vmcnt(0)")
                p("buffer_load_dword %s, %s, %s, s58 offen sc1" % (v(QF), v(L16), s(SWS, 4)))
            p("s_mov_b64 exec, -1")
            p("s_waitcnt vmcnt(0)")
            p("v_readfirstlane_b32 s56, %s" % v(T0))
            p("v_readfirstlane_b32 s57, %s" % v(QF))
            p("s_min_u32 s57, s57, %d" % census)
            p("s_cmp_ge_u32 s57, 32")
            p("s_cbranch_scc1 %s" % fast)
            budget()
            p("s_cmp_lt_u32 s56, 256")
            p("s_cbranch_scc1 %s" % top)
            p("s_branch W%dsc1_PRE" % w)
            p.label(fast)
        for ST in MODES:
            gen_loop(w, ST, "W%d%s_" % (w, ST))

    def gen_loop(w, ST, W):
        own1, own2, h1ord, h2ord, seqA, seqQ, seqK, lds_qk, reg_wo, swaps = plan(w)
        wo_reg = {t: tile for tile, t in swaps}
        qk_addr = {tile: slot_addr(t, w) for tile, t in swaps}
        nt = 16 if w < 2 else 20
        lg = LG()

        def rdtile(dst, addr, tag):
            b, off = lref(addr)
            lg.op("ds_read_b128 %s, %s offset:%d" % (v(dst, 4), b, off), tag)
            lg.op("ds_read_b128 %s, %s offset:%d" % (v(dst + 4, 4), b, off + 1024), tag)

        def fetch(own, masked=False):
            for i, j in enumerate(own):
                if masked:
                    p("s_mov_b64 exec, %s" % s(MSK[i], 2))
                so, off = (S_MB, j * 1024) if j < 4 else ((S_T1, (j - 4) * 1024) if j < 8 else (S_T2, 0))
                p("buffer_load_dwordx4 %s, %s, %s, %s offen offset:%d sc1" % (v(MA + 4 * j, 4), v(L16), s(SWS, 4), s(so), off))
            if masked:
                p("s_mov_b64 exec, -1")

        pend = []

        def issue_qk(tile):
            m, j, tt = tile
            lg.wait(("m", j), ("s", tile))
            p(smf((AQ, AK)[m] + 4 * tt, MA + 4 * j, v(STG0, 8) if tile in lds_qk else wt(*tile)))
            if pend:
                t2 = pend.pop()
                rdtile(STG0, qk_addr[t2], ("s", t2))
            if tile in lds_qk:
                i = lds_qk.index(tile)
                if i + 1 < len(lds_qk):
                    pend.append(lds_qk[i + 1])

        vt = {0: [0, 1, 6], 1: [2, 3, 7], 2: [4, 5], 3: []}[w]
        KX = [[52, 56, 60, 64], [68, 0, 4, 8]]

        def ldkx(kt, ks):
            p("buffer_load_dwordx4 %s, %s, %s, %s offen offset:%d sc1" % (v(KX[kt][ks], 4), v(L16), s(SWS, 4), s((S_KX0, S_KX1)[kt]), ks * 1024))

        def ldvx(i):
            et = vt[i]
            so, off = (S_VX, et * 1024) if et < 4 else (S_T0, (et - 4) * 1024)
            p("buffer_load_dwordx4 %s, %s, %s, %s offen offset:%d sc1" % (v(VXF + 4 * i, 4), v(L16), s(SWS, 4), s(so), off))

        def wrmem(j):
            lg.op("ds_write_b128 %s, %s offset:%d" % (v(L16), v(MA + 4 * j, 4), L_MEM + j * 1024), "wm")

        def rdmem(j):
            lg.op("ds_read_b128 %s, %s offset:%d" % (v(MA + 4 * j, 4), v(L16), L_MEM + j * 1024), ("m", j))

        def prefetch():
            p("s_add_u32 %s, %s, 1" % (s(S_T0), s(S_STEP)))
            kv_wait(S_T0)
            p("v_lshlrev_b32 %s, 3, %s" % (v(T0), v(L16)))
            p("s_mov_b32 m0, %d" % L_SX)
            p("s_add_u32 %s, %s, 0x%x" % (s(S_T0), s(S_M0), OFF_VX - OFF_KX))
            p("buffer_load_dword %s, %s, %s offen lds" % (v(T0), s(SWS, 4), s(S_M0)))
            p("buffer_load_dword %s, %s, %s offen lds" % (v(T0), s(SWS, 4), s(S_T0)))
            p("s_add_u32 %s, %s, %d" % (s(S_M0), s(S_M0), KVS))

        p.label(W + "PRE")
        bases()
        p("s_add_u32 %s, %s, 4096" % (s(S_T0), s(S_VX)))
        p("s_add_u32 %s, %s, 4096" % (s(S_T1), s(S_MB)))
        p("s_add_u32 %s, %s, 8192" % (s(S_T2), s(S_MB)))
        stamp(0)
        def prework():
            if w < 3:
                rdtile(STG0, qk_addr[lds_qk[0]], ("s", lds_qk[0]))
            for r in range(16):
                p("v_mov_b32 %s, 0" % v(AQ + r))
        if not (own1 and SETMID):
            prework()
        tm = MA + 4 * h2ord[-1]
        A = list(seqA)
        if B3:
            p("s_barrier")
        no = len(own1)
        if AW and w < 3:
            p("s_waitcnt vmcnt(0)")
        for d in range(DEP):
            fetch(own1)
            if d == 0 and SETMID:
                prework()
        p.label(W + "CHK1")
        p("s_waitcnt vmcnt(%d)" % (no * (DEP - 1)))
        masks([MA + 4 * j for j in own1], [tm, tm + 1, tm + 2])
        p("s_cbranch_scc1 %sRETRY1" % W)
        stamp(1)
        for j in own1:
            wrmem(j)
        if w == 3:
            for ks in range(4):
                ldkx(0, ks)
            ldkx(1, 0)
        for _ in range(4):
            issue_qk(A.pop(0))
        lg.wait("wm")
        p("s_barrier")
        stamp(2)
        for j in h2ord:
            rdmem(j)
        stamp(3)
        while A:
            issue_qk(A.pop(0))
        stamp(4)
        for i, tile in enumerate(seqQ):
            issue_qk(tile)
            if w == 3 and i < 3:
                ldkx(1, i + 1)
            if w < 3 and 2 <= i < 2 + len(vt):
                ldvx(i - 2)
        if w < 3:
            p("s_add_u32 %s, %s, %d" % (s(S_VX), s(S_VX), KVS))
        if w == 3:
            for r in (S_KX0, S_KX1):
                p("s_add_u32 %s, %s, %d" % (s(r), s(r), KVS))
        stamp(5)
        Kq = [(lambda t=t: issue_qk(t)) for t in seqK]
        bg(Kq, 2)
        cq = combine(AQ)
        for i, x in enumerate(cq):
            p(x)
            if i % 3 == 2:
                bg(Kq)
        lg.op("ds_write_b64 %s, %s offset:%d" % (v(QWA), v(AQ, 2), L_Q + 512 * w), "wq")
        if w < 2:
            rdtile(STG0, slot_addr(w, 3), ("v", 0))
        STG = [8, 16, 24, STG0, VXF]
        NST = len(STG)
        OA = AQ
        ACC = [0, 4, 32, QF, 0] if w < 3 else [0, 4, 32, QF, 24]
        lt = [t for t in range(nt) if t not in reg_wo]

        if w < 3:
            Z = zero(AQ + 2, 6)
            for i in range(3):
                bg(Kq)
                bg(Z, 1)
            lg.wait("wq")
            p("s_barrier")
            bg(Kq)
            p(zero(AQ, 2)[0])
            bg(Kq, 99)
            stamp(6)
            AVs = [AQ, AQ + 4, AK + 4]
            nv = len(vt)

            def vr(j, tt):
                p(smf(AVs[tt], MA + 4 * j, wt(2, j, tt)))

            vr(0, 0)
            vr(0, 1)
            for x in combine(AK):
                p(x)
            lg.op("ds_write_b64 %s, %s offset:%d" % (v(QWA), v(AK, 2), L_K + 512 * w), "wk")
            if nv == 3:
                for x in zero(AVs[2], 4):
                    p(x)
                slots = {0: STG0, 1: STG0, 2: STG0, 3: 0, 4: STG0, 5: 0, 6: 8, 7: STG0, 8: 0}

                def vl(j):
                    lg.wait(("v", j))
                    p(smf(AVs[2], MA + 4 * j, v(slots[j], 8)))

                def req(j):
                    rdtile(slots[j], slot_addr(2 * j + w, 3), ("v", j))
                vr(1, 0); vl(0); vr(1, 1)
                lg.wait("wk")
                p("s_barrier")
                stamp(7)
                req(1); vr(2, 0)
                vr(2, 1); vr(3, 0); vl(1); vr(3, 1); req(2); req(3); vr(4, 0); vr(4, 1); vr(5, 0)
                vl(2); vl(3); vr(5, 1); req(4); req(5); req(6); vr(6, 0); vr(6, 1); vr(7, 0)
                vl(4); vl(5); req(7); vl(6); req(8); vr(7, 1); vr(8, 0); vr(8, 1)
                vl(7); vl(8)
            else:
                vr(1, 0); vr(1, 1); vr(2, 0)
                lg.wait("wk")
                p("s_barrier")
                stamp(7)
                if PFW == 2:
                    prefetch()
                p("v_add_u32 %s, %s, %s" % (v(T0), s(S_H288), v(L16)))
                lg.op("ds_read_b128 %s, %s offset:%d" % (v(STG0, 4), v(T0), L_MEM), "hx")
                vr(2, 1)
                for j in range(3, 9):
                    vr(j, 0)
                    vr(j, 1)
                    if j == 4:
                        lg.wait("hx")
                        p("s_mov_b64 exec, 0x3ffff")
                        p("buffer_store_dwordx4 %s, %s, %s, %s offen sc1" % (v(STG0, 4), v(T0), s(SWS, 4), s(S_HIST)))
                        p("s_mov_b64 exec, -1")
                        p("s_add_u32 %s, %s, 9216" % (s(S_HIST), s(S_HIST)))
            for i in range(2):
                rdtile(STG[i], slot_addr(lt[i], w), ("w", lt[i]))
            for i in range(nv):
                p("v_cvt_pk_bf16_f32 %s, %s, %s" % (v(AVs[i]), v(AVs[i]), v(AVs[i] + 1)))
                p("v_cvt_pk_bf16_f32 %s, %s, %s" % (v(AVs[i] + 1), v(AVs[i] + 2), v(AVs[i] + 3)))
            rdtile(STG[2], slot_addr(lt[2], w), ("w", lt[2]))
            rdtile(STG[3], slot_addr(lt[3], w), ("w", lt[3]))

            def vexport():
                if NOEXP:
                    return
                p("v_lshrrev_b32 %s, 1, %s" % (v(T0), v(L16)))
                for i, et in enumerate(vt):
                    p("buffer_store_dwordx2 %s, %s, %s, %s offen offset:%d %s" % (v(AVs[i], 2), v(T0), s(SWS, 4), s(S_VM), et * 512, EXP))
                p("s_add_u32 %s, %s, %d" % (s(S_VM), s(S_VM), EXS))
            p("v_lshrrev_b32 %s, 1, %s" % (v(T0), v(SXR)))
            p("s_waitcnt vmcnt(%d)" % (3 if w == 2 else 0))
            stamp(8)
            p("s_barrier")
            stamp(9)
            PX, PM = AK, AQ + 2
            lg.op("ds_read_b128 %s, %s offset:%d" % (v(PX, 4), v(SXR), L_PX), "px")
            lg.op("ds_read_b64 %s, %s offset:%d" % (v(PM, 2), v(T0), L_PM), "pm")
            OX = [0, 4, 32]
            lg.wait("px")
            for i in range(nv):
                p("v_mfma_f32_16x16x32_bf16 %s, %s, %s, 0" % (v(OX[i], 4), v(VXF + 4 * i, 4), v(PX, 4)))
            lg.wait("pm")
            for i in range(nv):
                p("v_mfma_f32_16x16x16_bf16 %s, %s, %s, %s" % (v(OX[i], 4), v(AVs[i], 2), v(PM, 2), v(OX[i], 4)))
            p("v_cvt_pk_bf16_f32 %s, %s, %s" % (v(0), v(0), v(1)))
            p("v_cvt_pk_bf16_f32 %s, %s, %s" % (v(1), v(2), v(3)))
            p("v_cvt_pk_bf16_f32 %s, %s, %s" % (v(2), v(4), v(5)))
            p("v_cvt_pk_bf16_f32 %s, %s, %s" % (v(3), v(6), v(7)))
            lg.op("ds_write_b128 %s, %s offset:%d" % (v(SXR), v(0, 4), L_O + 512 * w), "wo")
            if nv == 3:
                p("v_cvt_pk_bf16_f32 %s, %s, %s" % (v(32), v(32), v(33)))
                p("v_cvt_pk_bf16_f32 %s, %s, %s" % (v(33), v(34), v(35)))
                lg.op("ds_write_b64 %s, %s offset:%d" % (v(SXR), v(32, 2), L_O + 512 * 3 + 8 * w), "wo")
            stamp(10)
            for x in zero(ACC[1], 4) + zero(ACC[3], 4):
                p(x)
            npre = 4
        else:
            bg(Kq, 3)
            lg.wait("wq")
            p("s_barrier")
            QFR = [MA + 4 * j for j in h2ord[:4]]
            bg(Kq, 1)
            for ks in range(4):
                if ks == 3:
                    bg(Kq, 1)
                for b in range(2):
                    lg.op("ds_read_b64_tr_b16 %s, %s offset:%d" % (v(QFR[ks] + 2 * b, 2), v(TRA), L_Q + (32 * ks + 16 * b) * 16), ("q", ks))
            bg(Kq, 99)
            stamp(6)
            KFR = [52, 56, 60, 64]
            SX = AQ
            SM = AK
            MX, LX, FX, TM = AK + 4, AK + 5, AK + 6, AK + 7
            XS = []
            for ks in range(4):
                for kt in range(2):
                    def xs(ks=ks, kt=kt):
                        lg.wait(("q", ks))
                        p("v_mfma_f32_16x16x32_bf16 %s, %s, %s, %s" % (v(SX + 4 * kt, 4), v(KX[kt][ks], 4), v(QFR[ks], 4), "0" if ks == 0 else v(SX + 4 * kt, 4)))
                    XS.append(xs)
            p("s_waitcnt vmcnt(0)")
            bg(XS, 2)
            CK = combine(AK)
            for i, x in enumerate(CK):
                p(x)
                if i in (3, 7):
                    bg(XS)
            lg.op("ds_write_b64 %s, %s offset:%d" % (v(QWA), v(AK, 2), L_K + 512 * w), "wk")
            bg(XS, 99)
            X = []
            X.append("v_bfe_u32 %s, %s, 7, 1" % (v(T1), v(L16)))
            X.append("v_lshl_add_u32 %s, %s, 3, %s" % (v(T1), v(T1), v(SXR)))
            X.append("v_lshrrev_b32 %s, 1, %s" % (v(T2), v(SXR)))
            for r in range(4):
                X.append("v_cndmask_b32 %s, %s, %s, %s" % (v(SX + r), v(SX + r), v(SX + 4 + r), s(S_PART, 2)))
            X.append("v_max3_f32 %s, %s, %s, %s" % (v(MX), v(SX), v(SX + 1), v(SX + 2)))
            X.append("v_max_f32 %s, %s, %s" % (v(MX), v(MX), v(SX + 3)))
            X.append("v_max_f32_dpp %s, %s, %s row_ror:8 row_mask:0xf bank_mask:0xf" % (v(MX), v(MX), v(MX)))
            X.append("v_mov_b32 %s, %s" % (v(T0), v(MX)))
            X.append("v_permlane32_swap_b32 %s, %s" % (v(MX), v(T0)))
            X.append("v_max_f32 %s, %s, %s" % (v(MX), v(MX), v(T0)))
            lg.wait("wk")
            p("s_barrier")
            stamp(7)
            for ks in range(4):
                for b in range(2):
                    lg.op("ds_read_b64_tr_b16 %s, %s offset:%d" % (v(KFR[ks] + 2 * b, 2), v(TRA), L_K + (32 * ks + 16 * b) * 16), ("k", ks))
            bg(X, 7)
            for ks in range(4):
                lg.wait(("k", ks))
                p("v_mfma_f32_16x16x32_bf16 %s, %s, %s, %s" % (v(SM, 4), v(KFR[ks], 4), v(QFR[ks], 4), "0" if ks == 0 else v(SM, 4)))
                bg(X, 2)
            bg(X, 99)
            p("v_max3_f32 %s, %s, %s, %s" % (v(TM), v(SM), v(SM + 1), v(SM + 2)))
            p("v_max3_f32 %s, %s, %s, %s" % (v(TM), v(TM), v(SM + 3), v(MX)))
            p("v_mov_b32 %s, %s" % (v(MX), v(TM)))
            p("v_permlane16_swap_b32 %s, %s" % (v(TM), v(MX)))
            p("v_max_f32 %s, %s, %s" % (v(TM), v(TM), v(MX)))
            p("v_mul_f32 %s, %s, %s" % (v(FX), s(S_NC), v(TM)))
            p("v_mul_f32 %s, %s, %s" % (v(TM), s(S_NC), v(TM)))
            for b in (SM, SM + 2, SX, SX + 2):
                p("v_pk_fma_f32 %s, %s, %s, %s" % (v(b, 2), v(b, 2), s(S_C2, 2), v(FX, 2)))
            for b in (SM, SX):
                for r in range(4):
                    p("v_exp_f32 %s, %s" % (v(b + r), v(b + r)))
            p("v_pk_add_f32 %s, %s, %s" % (v(MX, 2), v(SM, 2), v(SM + 2, 2)))
            p("v_pk_add_f32 %s, %s, %s" % (v(FX, 2), v(SX, 2), v(SX + 2, 2)))
            p("v_pk_fma_f32 %s, %s, %s, %s" % (v(MX, 2), v(MX, 2), s(S_Q2, 2), v(FX, 2)))
            p("v_add_f32 %s, %s, %s" % (v(LX), v(MX), v(LX)))
            p("v_add_f32_dpp %s, %s, %s row_ror:8 row_mask:0xf bank_mask:0xf" % (v(LX), v(LX), v(LX)))
            p("v_mov_b32 %s, %s" % (v(T0), v(LX)))
            p("v_permlane16_swap_b32 %s, %s" % (v(LX), v(T0)))
            p("v_add_f32 %s, %s, %s" % (v(LX), v(LX), v(T0)))
            p("v_mov_b32 %s, %s" % (v(T0), v(LX)))
            p("v_permlane32_swap_b32 %s, %s" % (v(LX), v(T0)))
            p("v_add_f32 %s, %s, %s" % (v(LX), v(LX), v(T0)))
            p("v_rcp_f32 %s, %s" % (v(MX), v(LX)))
            p("v_rcp_f32 %s, %s" % (v(LX), v(LX)))
            for b in (SM, SM + 2, SX, SX + 2):
                p("v_pk_mul_f32 %s, %s, %s" % (v(b, 2), v(b, 2), v(MX, 2)))
            p("v_cvt_pk_bf16_f32 %s, %s, %s" % (v(SM), v(SM), v(SM + 1)))
            p("v_cvt_pk_bf16_f32 %s, %s, %s" % (v(SM + 1), v(SM + 2), v(SM + 3)))
            lg.op("ds_write_b64 %s, %s offset:%d" % (v(T2), v(SM, 2), L_PM), "wp")
            p("v_cvt_pk_bf16_f32 %s, %s, %s" % (v(SX), v(SX), v(SX + 1)))
            p("v_cvt_pk_bf16_f32 %s, %s, %s" % (v(SX + 1), v(SX + 2), v(SX + 3)))
            lg.op("ds_write_b64 %s, %s offset:%d" % (v(T1), v(SX, 2), L_PX), "wp")
            lg.all()
            stamp(8)
            p("s_barrier")
            stamp(9)
            if PFW == 3:
                prefetch()
            bases()
            for i in range(len(lt)):
                rdtile(STG[i], slot_addr(lt[i], w), ("w", lt[i]))
            stamp(10)
            for t in range(5):
                for x in zero(ACC[t], 4):
                    p(x)
            npre = len(lt)
        p("s_mul_i32 %s, %s, 9216" % (s(S_PB), s(S_H)))
        p("s_add_u32 %s, %s, %s" % (s(S_PB), s(S_PB), s(S_PAR)))
        p("s_add_u32 %s, %s, 4096" % (s(S_T0), s(S_PB)))
        p("s_add_u32 %s, %s, 7168" % (s(S_T1), s(S_PB)))
        lg.wait("wo")
        stamp(11)
        p("s_barrier")
        stamp(12)
        for ks in range(4):
            lg.op("ds_read_b128 %s, %s offset:%d" % (v(OA + 4 * ks, 4), v(SXR), L_O + 512 * ks), ("o", ks))
        slot_of = {t: i for i, t in enumerate(lt[:npre])}
        if w < 3:
            rdtile(STG[4], slot_addr(lt[4], w), ("w", lt[4]))
            slot_of[lt[4]] = 4
            npre = 5
            for x in zero(ACC[0], 4) + zero(ACC[2], 4):
                p(x)
        nxt = npre
        freed = []

        def post(tau):
            A0 = ACC[tau]
            so, off = [(S_PB, 0), (S_PB, 2048), (S_T0, 0), (S_T0, 2048), (S_T1, 0)][tau]
            L = []
            L.append("v_cvt_pk_bf16_f32 %s, %s, %s" % (v(A0), v(A0), v(A0 + 1)))
            L.append("v_cvt_pk_bf16_f32 %s, %s, %s" % (v(A0 + 1), v(A0 + 2), v(A0 + 3)))
            L.append("v_and_or_b32 %s, %s, -2, %s" % (v(A0), v(A0), s(S_PH)))
            L.append("buffer_store_dwordx2 %s, %s, %s, %s offen offset:%d %s" % (v(A0, 2), v(QWA), s(SWS, 4), s(so), off + 512 * w, ST))
            if tau == 0 and w == 2:
                L += zero(A0, 4)
            return L

        PQ = []
        for t in range(nt):
            tau, ks = divmod(t, 4)
            lg.wait(("o", ks), ("w", t))
            if ks == 0 and tau == 4:
                bg(PQ, 99)
            if t in lt:
                p(smf(ACC[tau], OA + 4 * ks, v(STG[slot_of[t]], 8)))
            else:
                p(smf(ACC[tau], OA + 4 * ks, wt(*wo_reg[t])))
            if freed:
                sl = freed.pop()
                if nxt < len(lt):
                    rdtile(STG[sl], slot_addr(lt[nxt], w), ("w", lt[nxt]))
                    slot_of[lt[nxt]] = sl
                    nxt += 1
            if t in lt:
                freed.append(slot_of[t])
            if ks == 2 and tau >= 1:
                bg(PQ, 99)
                PQ = post(tau - 1)
            bg(PQ, 2)
        bg(PQ, 99)
        for x in post(nt // 4 - 1):
            p(x)
        assert not lg.log
        stamp(13)
        p("s_add_u32 %s, %s, 16384" % (s(S_T3), s(S_MB)))
        p("s_and_b32 %s, %s, 0x%x" % (s(S_T3), s(S_T3), OFF_MB | 0xffff))
        if w == TW:
            RD, SEL, RA, RP, RACC = 16, 32, 36, 37, 40
            p("v_lshrrev_b32 %s, 5, %s" % (v(T0), v(L16)))
            p("v_mul_u32_u24 %s, 9216, %s" % (v(T0), v(T0)))
            p("v_and_b32 %s, 16, %s" % (v(RP), v(L16)))
            p("v_add_u32 %s, %s, %s" % (v(RA), v(T0), v(RP)))
            p("s_lshl_b32 %s, %s, 5" % (s(S_T0), s(S_H)))
            p("s_add_u32 %s, %s, %s" % (s(S_RL), s(S_T0), s(S_PAR)))
            p("s_add_u32 %s, %s, 8192" % (s(S_RL), s(S_RL)))
            p("v_bfe_u32 %s, %s, 4, 4" % (v(T0), v(L16)))
            p("v_and_b32 %s, 1, %s" % (v(T1), v(T0)))
            p("v_lshlrev_b32 %s, 4, %s" % (v(T1), v(T1)))
            p("v_mov_b32 %s, 0x3f80" % v(T2))
            p("v_lshlrev_b32 %s, %s, %s" % (v(T1), v(T1), v(T2)))
            p("v_lshrrev_b32 %s, 1, %s" % (v(T0), v(T0)))
            for r in range(4):
                p("v_cmp_eq_u32 vcc, %d, %s" % (r, v(T0)))
                p("v_cndmask_b32 %s, 0, %s, vcc" % (v(SEL + r), v(T1)))
            p("s_lshr_b32 %s, %s, 2" % (s(S_T0), s(S_H)))
            p("s_lshl_b32 %s, %s, 7" % (s(S_T0), s(S_T0)))
            p("s_and_b32 %s, %s, 3" % (s(S_T1), s(S_H)))
            p("s_lshl_b32 %s, %s, 2" % (s(S_T1), s(S_T1)))
            p("s_add_u32 %s, %s, %s" % (s(S_T0), s(S_T0), s(S_T1)))
            p("s_add_u32 %s, %s, 8192" % (s(S_T0), s(S_T0)))
            p("s_add_u32 s58, %s, %s" % (s(S_T3), s(S_T0)))
            p("s_add_u32 %s, %s, %s" % (s(S_PMB), s(S_MB), s(S_T0)))
            p("s_add_u32 s59, %s, 0x%x" % (s(S_T0), OFF_HIST + nsteps * 9216))
            p("v_mov_b32 v8, 0x%x" % SENT)
            p("s_waitcnt vmcnt(0)")
            p.label(W + "TRED")
            p("buffer_load_dwordx4 %s, %s, %s, %s offen sc1" % (v(RD, 4), v(RA), s(SWS, 4), s(S_RL)))
            budget()
            p("s_waitcnt vmcnt(0)")
            p("v_mfma_f32_16x16x32_bf16 %s, %s, %s, 0" % (v(RACC, 4), v(RD, 4), v(SEL, 4)))
            p("v_bitop3_b32 v44, %s, %s, %s bitop3:0x7e" % (v(RD), v(RD + 2), s(S_PH)))
            p("v_and_b32 v44, 1, v44")
            p("v_cmp_ne_u32 vcc, 0, v44")
            p("s_cbranch_vccnz %sTRED" % W)
            stamp(14)
            p("v_pk_add_f32 %s, %s, %s" % (v(RACC, 2), v(RACC, 2), v(RACC + 2, 2)))
            for sw in ("16", "32"):
                p("v_mov_b64 %s, %s" % (v(RACC + 2, 2), v(RACC, 2)))
                p("v_permlane%s_swap_b32 %s, %s" % (sw, v(RACC), v(RACC + 2)))
                p("v_permlane%s_swap_b32 %s, %s" % (sw, v(RACC + 1), v(RACC + 3)))
                p("v_pk_add_f32 %s, %s, %s" % (v(RACC, 2), v(RACC, 2), v(RACC + 2, 2)))
            p("v_cvt_pk_bf16_f32 %s, %s, %s" % (v(RACC), v(RACC), v(RACC + 1)))
            p("s_mov_b64 exec, 0xff")
            p("buffer_store_dword %s, %s, %s, s58 offen %s" % (v(RACC), v(L16), s(SWS, 4), ST))
            p("buffer_store_dword v8, %s, %s, %s offen %s" % (v(L16), s(SWS, 4), s(S_PMB), ST))
            lh = p.newlabel("NOH")
            p("s_cmp_lt_u32 %s, %d" % (s(S_STEP), nsteps - 1))
            p("s_cbranch_scc1 %s" % lh)
            p("buffer_store_dword %s, %s, %s, s59 offen sc1" % (v(RACC), v(L16), s(SWS, 4)))
            p.label(lh)
            p("s_mov_b64 exec, -1")
        if w < 2:
            labn = W + "NORED"
            RD = 16
            SEL = 32
            RA = 36
            RP = 37
            RACC = 40
            p("v_lshrrev_b32 %s, 7, %s" % (v(T0), v(L16)))
            p("v_mul_u32_u24 %s, 9216, %s" % (v(T0), v(T0)))
            p("v_and_b32 %s, 0x70, %s" % (v(RP), v(L16)))
            p("v_add_u32 %s, %s, %s" % (v(RA), v(T0), v(RP)))
            p("s_add_u32 %s, %s, %s" % (s(S_RL), s(S_PUB), s(S_PAR)))
            p("s_add_u32 %s, %s, %d" % (s(S_T0), s(S_RL), 73728))
            p("s_add_u32 %s, %s, %d" % (s(S_T1), s(S_RL), 2 * 73728))
            p("s_add_u32 %s, %s, %d" % (s(S_T2), s(S_RL), 3 * 73728))
            soffs = [S_RL, S_T0, S_T1, S_T2]

            def rload(masked=False):
                for ld in range(4):
                    if masked:
                        p("s_mov_b64 exec, %s" % s(MSK[ld], 2))
                    p("buffer_load_dwordx4 %s, %s, %s, %s offen sc1" % (v(RD + 4 * ld, 4), v(RA), s(SWS, 4), s(soffs[ld])))
                if masked:
                    p("s_mov_b64 exec, -1")

            SET = []
            SET.append("v_bfe_u32 %s, %s, 4, 4" % (v(T0), v(L16)))
            SET.append("v_and_b32 %s, 1, %s" % (v(T1), v(T0)))
            SET.append("v_lshlrev_b32 %s, 4, %s" % (v(T1), v(T1)))
            SET.append("v_mov_b32 %s, 0x3f80" % v(T2))
            SET.append("v_lshlrev_b32 %s, %s, %s" % (v(T1), v(T1), v(T2)))
            SET.append("v_lshrrev_b32 %s, 1, %s" % (v(T0), v(T0)))
            for r in range(4):
                SET.append("v_cmp_eq_u32 vcc, %d, %s" % (r, v(T0)))
                SET.append("v_cndmask_b32 %s, 0, %s, vcc" % (v(SEL + r), v(T1)))
            SET.append("v_bfe_u32 %s, %s, 8, 1" % (v(T2), v(L16)))
            SET.append("v_lshl_add_u32 %s, %s, 3, %s" % (v(RP), v(T2), v(RP)))
            SET.append("v_bfe_u32 %s, %s, 9, 1" % (v(T2), v(L16)))
            SET.append("v_lshl_add_u32 %s, %s, 2, %s" % (v(RP), v(T2), v(RP)))
            SET.append("s_add_u32 s58, %s, %s" % (s(S_T3), s(S_PUB)))
            SET.append("s_add_u32 %s, %s, %s" % (s(S_PMB), s(S_MB), s(S_PUB)))
            SET.append("v_mov_b32 v8, 0x%x" % SENT)

            def unit(tag, d0, d1, first):
                if first and w > 0 and not SETMID:
                    bg(SET, 99)
                for _ in range(d0):
                    p("s_nop 15")
                if VW[w] >= 0:
                    p("s_waitcnt vmcnt(%d)" % VW[w])
                rload()
                bg(SET, 99)
                for d in range(1, RDEP):
                    for _ in range(d1):
                        p("s_nop 7")
                    rload()
                p("s_branch %sRED1%s" % (W, tag))
                p.label(W + "RED" + tag)
                for ld in range(4):
                    p("v_and_b32 %s, 1, %s" % (v(44 + ld), v(44 + ld)))
                    p("v_cmp_ne_u32 %s, 0, %s" % (s(MSK[ld], 2), v(44 + ld)))
                rload(True)
                budget()
                p.label(W + "RED1" + tag)
                p("s_waitcnt vmcnt(%d)" % (4 * (RDEP - 1)))
                for ld in range(4):
                    b = RD + 4 * ld
                    p("v_bitop3_b32 %s, %s, %s, %s bitop3:0x7e" % (v(44 + ld), v(b), v(b + 2), s(S_PH)))
                p("v_or3_b32 v48, v44, v45, v46")
                p("v_or_b32 v48, v48, v47")
                p("v_and_b32 v48, 1, v48")
                p("v_cmp_ne_u32 vcc, 0, v48")
                for ld in range(4):
                    b = RD + 4 * ld
                    p("v_mfma_f32_16x16x32_bf16 %s, %s, %s, %s" % (v(RACC, 4), v(b, 4), v(SEL, 4), "0" if ld == 0 else v(RACC, 4)))
                    if ld == 0:
                        p("s_cbranch_vccnz %sRED%s" % (W, tag))
                if first:
                    stamp(14)
                p("v_permlane32_swap_b32 %s, %s" % (v(RACC), v(RACC + 2)))
                p("v_permlane32_swap_b32 %s, %s" % (v(RACC + 1), v(RACC + 3)))
                p("v_pk_add_f32 %s, %s, %s" % (v(RACC, 2), v(RACC, 2), v(RACC + 2, 2)))
                p("v_cvt_pk_bf16_f32 %s, %s, %s" % (v(RACC), v(RACC), v(RACC + 1)))
                p("s_mov_b64 exec, %s" % s(S_PUBM, 2))
                p("buffer_store_dword %s, %s, %s, s58 offen %s" % (v(RACC), v(RP), s(SWS, 4), ST))
                p("buffer_store_dword v8, %s, %s, %s offen %s" % (v(RP), s(SWS, 4), s(S_PMB), ST))
                lh = p.newlabel("NOH")
                p("s_cmp_lt_u32 %s, %d" % (s(S_STEP), nsteps - 1))
                p("s_cbranch_scc1 %s" % lh)
                p("s_add_u32 s59, %s, 0x%x" % (s(S_PUB), OFF_HIST + nsteps * 9216))
                p("buffer_store_dword %s, %s, %s, s59 offen sc1" % (v(RACC), v(RP), s(SWS, 4)))
                p.label(lh)
                p("s_mov_b64 exec, -1")

            unit("A", RD0[w], RD1[w], True)
            p.label(labn)
        stamp(15)
        p("s_mov_b32 %s, %s" % (s(S_MB), s(S_T3)))
        p("s_xor_b32 %s, %s, 0x%x" % (s(S_PAR), s(S_PAR), PB_STR))
        p("s_and_b32 %s, %s, 1" % (s(S_T0), s(S_STEP)))
        p("s_xor_b32 %s, %s, %s" % (s(S_PH), s(S_PH), s(S_T0)))
        p("s_add_u32 %s, %s, 1" % (s(S_STEP), s(S_STEP)))
        if stamps and w == 3 or stamps == 2:
            flush_stamps()
        if stamps:
            p("s_add_u32 %s, %s, 128" % (s(S_STO), s(S_STO)))
        p("s_cmp_lt_u32 %s, %d" % (s(S_STEP), nsteps))
        p("s_cbranch_scc1 %sPRE" % W)
        p("s_branch REC_DONE")
        if own1:
            p.label(W + "RETRY1")
            fetch(own1, True)
            budget()
            p("s_branch %sCHK1" % W)


    for w in range(4):
        gen_wave(w)
```

```python
import sys
from asmlib import *
from layout import *
import rec
import worker as wk

kw = dict(a.split("=") for a in sys.argv[2:] if "=" in a)
kw = {k: (int(x) if x.isdigit() else x) for k, x in kw.items()}
NP = kw.pop("NP", 2)
NG = kw.pop("NG", 5)
OVF = kw.pop("OVF", 32)
wk.TSTAMP[0] = bool(kw.pop("TS", 0))
NAME = "gated_mix__memory_aug_recurrent_mem_tr__linear_attn_block__prompt"

q = Prog()
NI = 64
q("s_cmp_ge_u32 s2, %d" % NI)
q("s_cbranch_scc1 I_DONE")
wk.srd(q, 4, D_WS, WS_BYTES)
q("s_lshl_b32 s3, s2, 12")
q("v_lshlrev_b32 v1, 4, v0")
q("v_add_u32 v1, s3, v1")
for r in range(4):
    q("v_mov_b32 v%d, 0x%x" % (4 + r, rec.SENT))
    q("v_mov_b32 v%d, 0" % (8 + r))
q("s_waitcnt lgkmcnt(0)")
for o in (OFF_PB2, OFF_PB2 + 0x40000, OFF_PB2 + PB_STR, OFF_PB2 + PB_STR + 0x40000):
    q("s_mov_b32 s8, 0x%x" % o)
    q("buffer_store_dwordx4 v[8:11], v1, s[4:7], s8 offen")
for o in (OFF_MB, OFF_MB + 0x40000, OFF_MB + 0x80000):
    q("s_mov_b32 s8, 0x%x" % o)
    q("buffer_store_dwordx4 v[4:7], v1, s[4:7], s8 offen")
q("s_cmp_ge_u32 s2, 16")
q("s_cbranch_scc1 I_DONE")
q("s_mov_b32 s8, 0x%x" % OFF_FLAG)
q("buffer_store_dwordx4 v[8:11], v1, s[4:7], s8 offen")
q.label("I_DONE")
q("s_endpgm")

p = Prog()
DBGT = kw.pop("DBGT", 0)
if DBGT:
    p("s_memrealtime s[98:99]")
    p("s_waitcnt lgkmcnt(0)")
    p("s_mov_b32 s97, s98")
p("s_cmp_ge_u32 s2, 256")
p("s_cbranch_scc1 X_DONE")
wk.srd(p, 4, D_WS, WS_BYTES)
p("s_load_dwordx2 s[12:13], s[0:1], %d" % (D_DBG * 8))
p("s_mov_b32 s14, 256")
p("s_mov_b32 s15, 0x20000")
p("s_getreg_b32 s3, hwreg(HW_REG_XCC_ID, 0, 3)")
p("v_lshrrev_b32 v1, 6, v0")
p("v_mov_b32 v2, 1")
p("v_readfirstlane_b32 s20, v1")
p("s_lshl_b32 s21, s3, 4")
p("v_mov_b32 v3, s21")
p("v_mov_b32 v4, 0")
p("s_mov_b32 s22, 2000000")
p("s_mov_b32 s23, 0")
p("s_lshl_b32 s24, s2, 12")
p("v_lshlrev_b32 v5, 4, v0")
p("v_add_u32 v5, s24, v5")
for r in range(4):
    p("v_mov_b32 v%d, 0x%x" % (8 + r, rec.SENT))
    p("v_mov_b32 v%d, 0" % (12 + r))
p("s_mov_b32 s25, 0x%x" % OFF_PB2)
p("s_mov_b32 s26, 0x%x" % OFF_MB)
p("s_mov_b32 s27, 0x%x" % OFF_FLAG)
p("s_waitcnt lgkmcnt(0)")
p("s_cmp_lg_u32 s20, 0")
p("s_cbranch_scc1 ROLE_I")
p("s_mov_b64 exec, 1")
p("buffer_atomic_add v2, v3, s[12:15], 0 offen sc0")
p("s_mov_b64 exec, -1")
p.label("ROLE_I")
p("buffer_store_dwordx4 v[12:15], v5, s[4:7], s25 offen sc1")
p("s_cmp_ge_u32 s2, 160")
p("s_cbranch_scc1 ROLE_I2")
p("buffer_store_dwordx4 v[8:11], v5, s[4:7], s26 offen sc1")
p("s_cmp_ge_u32 s2, 16")
p("s_cbranch_scc1 ROLE_I2")
p("buffer_store_dwordx4 v[12:15], v5, s[4:7], s27 offen sc1")
p.label("ROLE_I2")
p("s_waitcnt vmcnt(0)")
p("s_barrier")
p("s_cmp_lg_u32 s20, 0")
p("s_cbranch_scc1 ROLE_WAIT")
p("s_mov_b64 exec, 1")
p("v_readfirstlane_b32 s24, v2")
p("v_mov_b32 v2, 1")
p("buffer_atomic_add v2, v4, s[12:15], s23 offen offset:128")
p("s_lshl_b32 s21, s3, 5")
p("s_add_u32 s21, s21, s24")
p("s_cmp_lt_u32 s24, %d" % OVF)
p("s_cbranch_scc1 ROLE_SET")
p("v_mov_b32 v5, 1")
p("buffer_atomic_add v5, v4, s[12:15], s23 offen offset:192 sc0")
p.label("ROLE_P")
p("buffer_load_dword v6, v4, s[12:15], s23 offen offset:128 sc1")
p("s_waitcnt vmcnt(0)")
p("v_readfirstlane_b32 s24, v6")
p("s_sub_u32 s22, s22, 1")
p("s_cbranch_scc1 ROLE_GIVEUP")
p("s_cmp_lt_u32 s24, 256")
p("s_cbranch_scc1 ROLE_P")
p("v_readfirstlane_b32 s25, v5")
for x in range(8):
    p("buffer_load_dword v6, v4, s[12:15], s23 offen offset:%d sc1" % (16 * x))
    p("s_waitcnt vmcnt(0)")
    p("v_readfirstlane_b32 s24, v6")
    p("s_min_u32 s24, s24, %d" % OVF)
    p("s_sub_u32 s26, 32, s24")
    p("s_add_u32 s21, s24, s25")
    p("s_add_u32 s21, s21, %d" % (32 * x))
    p("s_cmp_lt_u32 s25, s26")
    p("s_cbranch_scc1 ROLE_SET")
    p("s_sub_u32 s25, s25, s26")
p.label("ROLE_GIVEUP")
p("s_mov_b32 s21, 1000")
p.label("ROLE_SET")
p("v_mov_b32 v2, s21")
p("ds_write_b32 v4, v2")
p("s_mov_b64 exec, -1")
p("s_waitcnt lgkmcnt(0)")
p.label("ROLE_WAIT")
p("s_barrier")
p("ds_read_b32 v2, v4")
p("s_waitcnt lgkmcnt(0)")
p("v_readfirstlane_b32 s21, v2")
p("s_barrier")
p("s_cmp_ge_u32 s21, 256")
p("s_cbranch_scc1 X_DONE")
p("s_mov_b32 s96, s21")
if wk.TSTAMP[0]:
    wk.srd(p, 4, D_WS, WS_BYTES)
    p("s_waitcnt lgkmcnt(0)")
    wk.wstamp(p, 1, "s96")
p("s_cmp_ge_u32 s21, 32")
p("s_cbranch_scc1 WORKER")
p("s_mov_b32 %s, s21" % s(rec.S_H))
rec.gen_rec(p, census=OVF, ONE=1, DBGT=DBGT, TS=wk.TSTAMP[0], **kw)
p.label("WORKER")
p("s_sub_u32 %s, s21, 32" % s(wk.S_RANK))
wk.ONE[0] = True
wk.worker_setup(p)
p("s_cmp_ge_u32 %s, 160" % s(wk.S_RANK))
p("s_cbranch_scc1 W_BB")
wk.gen_gemm1(p, "W_NEXT")
p.label("W_BB")
wk.gen_bbranch(p, "W_FIN")
p.label("W_NEXT")
wk.wstamp(p, 3, "s96")
p("s_cmp_ge_u32 %s, 128" % s(wk.S_RANK))
p("s_cbranch_scc1 W_FINQ")
wk.gen_attn(p, "REC_DONE")
p.label("W_FINQ")
p("s_add_u32 %s, %s, 96" % (s(wk.S_RANK), s(wk.S_RANK)))
p.label("W_FIN")
wk.wstamp(p, 6, "s96")
p("s_sub_u32 %s, %s, 160" % (s(wk.S_A), s(wk.S_RANK)))
p("s_cmp_ge_u32 %s, %d" % (s(wk.S_A), 18 * NG))
p("s_cbranch_scc1 REC_DONE")
wk.gen_final(p, "REC_DONE", NG)
p.label("REC_FAIL")
p.label("W_FAIL")
p("s_load_dwordx2 s[12:13], s[0:1], %d" % (D_DBG * 8))
p("s_mov_b32 s14, 256")
p("s_mov_b32 s15, 0x20000")
p("v_mov_b32 v0, 0")
p("v_mov_b32 v1, s2")
p("v_add_u32 v1, 0x1000, v1")
p("s_waitcnt lgkmcnt(0)")
p("buffer_store_dword v1, v0, s[12:15], 0 offen offset:252")
p("s_endpgm")
p.label("REC_DONE")
wk.wstamp(p, 7, "s96")
if DBGT:
    p("s_load_dwordx2 s[12:13], s[0:1], %d" % (D_DBG * 8))
    p("s_memrealtime s[98:99]")
    p("s_mov_b32 s14, 256")
    p("s_mov_b32 s15, 0x20000")
    p("s_waitcnt lgkmcnt(0)")
    p("v_mov_b32 v0, 0")
    p("v_mov_b32 v1, s98")
    p("s_not_b32 s97, s97")
    p("v_mov_b32 v2, s97")
    p("v_mov_b32 v3, s65")
    p("s_mov_b64 exec, 1")
    p("buffer_atomic_umax v1, v0, s[12:15], 0 offen offset:4")
    p("buffer_atomic_umax v2, v0, s[12:15], 0 offen offset:8")
    p("s_cmp_ge_u32 s96, 32")
    p("s_cbranch_scc1 X_DONE")
    p("buffer_atomic_umax v1, v0, s[12:15], 0 offen offset:12")
    p("buffer_atomic_umax v3, v0, s[12:15], 0 offen offset:20")
p.label("X_DONE")
p("s_endpgm")
l0 = fix_hazards(q.lines)
l1 = fix_hazards(p.lines, verbose=True)
txt = build_file([("main_kernel", 256, 256, 163840)],
                 [("main_kernel", l1, 512, 102, 256)])
open(sys.argv[1], "w").write(txt)
print(len(l1), "lines", len(txt), "bytes")
```
